```python
import torch

def _softmax(x, axis=-1):
    return torch.softmax(x, dim=axis)
def _gelu(x):
    return torch.nn.functional.gelu(x, approximate="tanh")
def _silu(x):
    return torch.nn.functional.silu(x)
def _sigmoid(x):
    return torch.sigmoid(x)
def _layernorm(x, axis=-1, eps=1e-5):
    m = x.mean(dim=axis, keepdim=True)
    v = x.var(dim=axis, keepdim=True, unbiased=False)
    return (x - m) / torch.sqrt(v + eps)
def _scatter_add(tgt, idx, src, axis=0):
    return tgt.clone().index_add_(axis, idx, src)
def _segment_sum(src, seg, n):
    out = torch.zeros((n,) + src.shape[1:], dtype=src.dtype)
    return out.index_add_(0, seg, src)
def _pad(x, pw):
    flat = tuple(v for pair in reversed(pw) for v in pair)
    return torch.nn.functional.pad(x, flat)

kernel_name = 'standalone__gqa_block_cached__near_ridge'

def setup_inputs():

    _w = (lambda a: (lambda t: t.to(torch.bfloat16) if t.is_floating_point() else t)(torch.as_tensor(a)))
    B, Sq, D = 16, 64, 640
    Hq, Hkv, Sk, Dh = 32, 32, 512, 192
    assert Hq % Hkv == 0, (Hq, Hkv)
    return {
        "x": _w((lambda *s: torch.randn(*s, dtype=torch.bfloat16) * 0.8)(B, Sq, D)),
        "k_cache": _w((lambda *s: torch.randn(*s, dtype=torch.bfloat16) * 0.8)(B, Hkv, Sk, Dh)),
        "v_cache": _w((lambda *s: torch.randn(*s, dtype=torch.bfloat16) * 0.05)(B, Hkv, Sk, Dh)),
        "wq": _w((lambda *s: torch.randn(*s, dtype=torch.bfloat16) * 0.8)(D, Hq * Dh) * (D ** -0.5)),
        "wo": _w((lambda *s: torch.randn(*s, dtype=torch.bfloat16) * 0.05)(Hq * Dh, D) * ((Hq * Dh) ** -0.5)),
    }

def reference(x, k_cache, v_cache, wq, wo):
    B, Sq, D = x.shape
    Hq, Dh = 32, 192
    Hkv = k_cache.shape[1]
    rep = Hq // Hkv
    q = (lambda x, *d: x.permute(*d))((x @ wq).reshape(B, Sq, Hq, Dh), 0, 2, 1, 3)
    k = (lambda x, n, axis: torch.repeat_interleave(x, n, dim=axis))(k_cache, rep, axis=1)
    v = (lambda x, n, axis: torch.repeat_interleave(x, n, dim=axis))(v_cache, rep, axis=1)
    scores = torch.einsum("bhqd,bhkd->bhqk", q, k) * (Dh ** -0.5)
    p = _softmax(scores, axis=-1)
    o = torch.einsum("bhqk,bhkd->bhqd", p, v)
    return (lambda x, *d: x.permute(*d))(o, 0, 2, 1, 3).reshape(B, Sq, Hq * Dh) @ wo
```

```python
class Em:
    def __init__(self, name=""):
        self.name = name
        self.lines = []
        self.hist = []
        self.lgkm = []
        self.vm = []
        self.nbar = 0
        self.stats = {}
        self.ninstr = 0

    def raw(self, text):
        self.lines.append(text)

    def comment(self, text):
        self.lines.append("    ; " + text)

    def label(self, name):
        self.lines.append(name + ":")

    def _push(self, kind, w, r, states=1):
        self.hist.append((kind, frozenset(w), frozenset(r), states))
        if len(self.hist) > 40:
            self.hist.pop(0)

    def nop(self, n):
        while n > 0:
            k = min(n, 16)
            self.lines.append(f"    s_nop {k-1}")
            self._push('nop', (), (), k)
            self.ninstr += 1
            n -= k

    def _need(self, kind, w, r, srcc=()):
        need = 0
        dist = 0
        W = set(w); R = set(r)
        for (k, hw, hr, st) in reversed(self.hist):
            req = 0
            hsrcc = set()
            if k.startswith('mfma'):
                hsrcc = set(x[1] for x in hr if isinstance(x, tuple) and x[0] == 'C')
            if k in ('valu', 'trans', 'permlane', 'readlane_v'):
                if kind.startswith('mfma') and (hw & (R | set(srcc))):
                    req = max(req, 2)
                if kind == 'permlane' and (hw & (R | W)):
                    req = max(req, 2)
                if kind == 'dpp' and (hw & R):
                    req = max(req, 2)
                if kind == 'readlane' and (hw & R):
                    req = max(req, 1)
                sw = set(x for x in hw if isinstance(x, str))
                if sw:
                    if kind in ('vload', 'vstore', 'dma') and (sw & R):
                        req = max(req, 5)
                    if kind in ('valu', 'trans', 'permlane', 'dpp') and (sw & R):
                        req = max(req, 2)
                    if kind in ('readlane',) and (sw & R):
                        req = max(req, 4)
                    if kind in ('salu',) and (sw & R):
                        req = max(req, 4)
            if k == 'readlane':
                sw = set(x for x in hw if isinstance(x, str))
                if kind in ('vload', 'vstore', 'dma') and (sw & R):
                    req = max(req, 5)
                if kind in ('valu', 'trans', 'permlane', 'dpp') and (sw & R):
                    req = max(req, 2)
                if kind in ('salu',) and (sw & R):
                    req = max(req, 4)
            if k == 'trans':
                if kind in ('valu', 'permlane', 'dpp', 'ds_write', 'vstore', 'readlane') and (hw & R):
                    req = max(req, 1)
                if kind.startswith('mfma') and (hw & (R | set(srcc))):
                    req = max(req, 2)
            if k.startswith('mfma'):
                p = 4 if k == 'mfma4' else 8
                nraw = 8 if p == 4 else 12
                novl = 6 if p == 4 else 10
                nwar = 3 if p == 4 else 7
                if kind.startswith('mfma'):
                    if hw & R:
                        req = max(req, nraw)
                    sc = set(srcc)
                    if hw & sc:
                        if not (hw == sc and k == kind):
                            req = max(req, novl)
                    if (hw & W) and not (hw == W and k == kind and hw == sc):
                        req = max(req, novl)
                else:
                    if hw & (R | W):
                        req = max(req, nraw)
                    if kind in ('valu', 'trans', 'permlane', 'dpp', 'ds_read', 'vload') and (hsrcc & W):
                        req = max(req, nwar)
            if k == 'salu' and 'm0' in hw and kind == 'dma':
                req = max(req, 1)
            if k == 'vstore' and kind in ('valu', 'trans', 'permlane', 'dpp') and (set(hr) & W):
                req = max(req, 2)
            if k == 'vstore' and kind in ('ds_read', 'vload') and (set(hr) & W):
                req = max(req, 1)
            if req > dist:
                need = max(need, req - dist)
            dist += st
            if dist >= 24:
                break
        return need

    def _memdeps(self, regs):
        regs = set(regs)
        idx = -1
        for i, d in enumerate(self.lgkm):
            if d & regs:
                idx = i
        if idx >= 0:
            n = len(self.lgkm) - 1 - idx
            n = min(n, 15)
            self.wait(lgkm=n)
        idx = -1
        for i, d in enumerate(self.vm):
            if isinstance(d, tuple) and d[0] == 'v' and (d[1] & regs):
                idx = i
        if idx >= 0:
            n = len(self.vm) - 1 - idx
            self.wait(vm=min(n, 63))

    def wait(self, vm=None, lgkm=None):
        parts = []
        if vm is not None:
            if len(self.vm) > vm:
                parts.append(f"vmcnt({vm})")
                self.vm = self.vm[len(self.vm) - vm:] if vm > 0 else []
        if lgkm is not None:
            if len(self.lgkm) > lgkm:
                parts.append(f"lgkmcnt({lgkm})")
                self.lgkm = self.lgkm[len(self.lgkm) - lgkm:] if lgkm > 0 else []
        if parts:
            self.lines.append("    s_waitcnt " + " ".join(parts))
            self._push('wait', (), ())
            self.ninstr += 1

    def I(self, text, kind, w=(), r=(), srcc=(), tag=None):
        w = list(w); r = list(r); srcc = list(srcc)
        vregs = [x for x in (w + r + srcc) if isinstance(x, int)]
        self._memdeps(vregs)
        if kind in ('ds_read', 'ds_write') and len(self.lgkm) >= 15:
            self.wait(lgkm=14)
        n = self._need(kind, w, r, srcc)
        if n:
            self.nop(n)
            self.stats['nop'] = self.stats.get('nop', 0) + n
        self.lines.append("    " + text)
        self.ninstr += 1
        self.stats[kind] = self.stats.get(kind, 0) + 1
        if kind.startswith('mfma'):
            self._push(kind, w, [x for x in r] + [('C', c) for c in srcc])
        else:
            self._push(kind, w, r)
        if kind == 'ds_read':
            self.lgkm.append(set(x for x in w if isinstance(x, int)))
        elif kind == 'ds_write':
            self.lgkm.append(set())
        elif kind == 'dma':
            self.vm.append(tag)
        elif kind == 'vload':
            self.vm.append(('v', set(x for x in w if isinstance(x, int))))
        elif kind == 'vstore':
            self.vm.append(('st', tag))
        assert len(self.vm) <= 63, "vmcnt overflow"

    def salu(self, text, w=(), r=()):
        self.I(text, 'salu', w, r)

    def valu(self, text, w=(), r=()):
        self.I(text, 'valu', w, r)

    def wait_tile(self, tile):
        idx = -1
        for i, d in enumerate(self.vm):
            if d == tile:
                idx = i
        if idx >= 0:
            self.wait(vm=len(self.vm) - 1 - idx)

    def barrier(self):
        self.wait(lgkm=0)
        self.lines.append("    s_barrier")
        self._push('barrier', (), ())
        self.nbar += 1
        self.ninstr += 1

def vr(a, n=1):
    return f"v{a}" if n == 1 else f"v[{a}:{a+n-1}]"
def sr(a, n=1):
    return f"s{a}" if n == 1 else f"s[{a}:{a+n-1}]"
def R(a, n):
    return list(range(a, a + n))
```

```python
import sys, struct
from emit import Em, vr, sr, R

KN = "standalone__gqa_block_cached__near_ridge_kernel"
KN2 = "gqa_reduce_kernel"

def f32(x):
    return struct.unpack("<I", struct.pack("<f", x))[0]

class Cfg:
    dbg = None
    nt_kv = True
    w0_slots = 4
    kpre = 8

QO = 0
W1 = 24576
HB = 65536
HSZ = 98304

S_WG = 2; S_WAVE = 3; S_W = 4; S_B = 5; S_HP = 6; S_ROT = 7
S_PTR = 16
SRD_K = 32; SRD_V = 36; SRD_WQ = 40; SRD_X = 44; SRD_WO = 48; SRD_P = 52
S_W3072 = 60; S_W1024 = 61; S_W2048 = 62; S_W5120 = 63; S_WQCOL = 64; S_C = 65
S_T0 = 66; S_T1 = 67; S_T2 = 68; S_T3 = 69; S_KT = 70; S_W6144 = 71; S_DH12 = 72

class Tile:
    def __init__(s, kind, name, addr, size, **kw):
        s.kind = kind; s.name = name; s.addr = addr; s.size = size
        s.consume = []
        s.issue = None; s.by = None
        s.__dict__.update(kw)
    def __repr__(s): return s.name

def build_schedule(cfg):
    T0 = 1
    sch = {}
    tiles = []
    W0 = []
    for i in range(20):
        t = Tile('w0', f"w0_{i}", (i % cfg.w0_slots) * 16384, 16384, hd=0, i=i)
        t.consume = [T0 + i]; t.by = 'B'
        W0.append(t)
    tQ0 = T0 + 20
    tK0 = tQ0 + 1
    H = []
    pos = 0
    tk = tK0
    info = {}
    for hd in range(2):
        info[('k', hd)] = tk
        for j in range(16):
            t = Tile('k', f"k{hd}_{j}", HB + pos, 12288, hd=hd, j=j)
            pos = (pos + 12288) % HSZ
            t.consume = [tk]; tk += 1; t.by = 'B'
            H.append(t)
        info[('v', hd)] = tk
        for sl in range(3):
            for j in range(8):
                t = Tile('v', f"v{hd}_{sl}_{j}", HB + pos, 8192, hd=hd, sl=sl, j=j)
                pos = (pos + 8192) % HSZ
                t.consume = [tk]; tk += 1; t.by = 'B'
                H.append(t)
    for t in H[:cfg.kpre]:
        t.by = 'A'
    tEnd = tk
    W1t = []
    tq1 = tK0 + 2
    for i in range(20):
        t = Tile('wq1', f"wq1_{i}", W1 + (i % 3) * 12288, 12288, hd=1, i=i)
        t.consume = [tq1 + i]; t.by = 'A'
        W1t.append(t)
    tQ1 = tq1 + 20
    v0 = info[('v', 0)]
    assert tQ1 < v0 + 7, (tQ1, v0)
    WO = []
    slot = 0
    for hd in range(2):
        vstart = info[('v', hd)]
        for sl in range(3):
            tO = vstart + 8 * sl + 7
            for a in range(4):
                final = (hd == 1 and sl == 2)
                if final:
                    addr = [HB + 0, HB + 20480, W1 + 0, HB + 40960][a]
                    t = Tile('wo', f"wo{hd}_{sl}_{a}", addr, 20480, hd=hd, sl=sl, a=a)
                    t.consume = [tO + 1]
                else:
                    t = Tile('wo', f"wo{hd}_{sl}_{a}", W1 + (slot % 2) * 20480, 20480, hd=hd, sl=sl, a=a)
                    slot += 1
                    t.consume = [tO + 1 + 2 * a, tO + 2 + 2 * a]
                t.by = 'A'
                WO.append(t)
    nticks = tEnd + 1
    free_at = [0] * 160
    streams = [W0, H, W1t, WO]
    allt = sorted([t for s in streams for t in s], key=lambda t: (t.consume[0], t.name))
    last_issue = {}
    for t in allt:
        lo = t.addr // 1024; hi = (t.addr + t.size) // 1024
        e = max(free_at[lo:hi])
        key = t.kind if t.kind in ('w0', 'wq1', 'wo') else 'h'
        e = max(e, last_issue.get(key, 0))
        t.issue = e
        last_issue[key] = e
        assert t.issue < t.consume[0], (t, t.issue, t.consume)
        for k in range(lo, hi):
            free_at[k] = t.consume[-1] + 1
        if t.kind != 'w0' and lo < 24:
            raise Exception("overlaps QO " + t.name)
    return dict(nticks=nticks, W0=W0, H=H, W1t=W1t, WO=WO, tQ0=tQ0, tQ1=tQ1, info=info, tEnd=tEnd, allt=allt)

def dma_tile(e, t, cfg, dreg):
    nt = " nt" if cfg.nt_kv else ""
    if t.kind == 'k':
        e.salu(f"s_add_u32 m0, s{S_W3072}, {t.addr}", w=['m0'])
        e.salu(f"s_mov_b32 s{S_T0}, {t.hd*196608 + t.j*12288}", w=[f's{S_T0}'])
        for p in range(3):
            off = f" offset:{1024*p}" if p else ""
            e.I(f"buffer_load_dwordx4 v{dreg['K'][p]}, s[{SRD_K}:{SRD_K+3}], s{S_T0} offen{off}{nt} lds", 'dma', r=[dreg['K'][p], 'm0'], tag=t)
    elif t.kind == 'v':
        e.salu(f"s_add_u32 m0, s{S_W2048}, {t.addr}", w=['m0'])
        e.salu(f"s_mov_b32 s{S_T0}, {t.hd*196608 + t.j*64*384 + t.sl*128}", w=[f's{S_T0}'])
        for p in range(2):
            off = f" offset:{1024*p}" if p else ""
            e.I(f"buffer_load_dwordx4 v{dreg['V'][p]}, s[{SRD_V}:{SRD_V+3}], s{S_T0} offen{off}{nt} lds", 'dma', r=[dreg['V'][p], 'm0'], tag=t)
    elif t.kind in ('w0', 'wq1'):
        e.salu(f"s_add_u32 s{S_KT}, s{S_ROT}, {t.i}")
        e.salu(f"s_sub_u32 s{S_T1}, s{S_KT}, 20")
        e.salu(f"s_cmp_ge_u32 s{S_KT}, 20")
        e.salu(f"s_cselect_b32 s{S_KT}, s{S_T1}, s{S_KT}")
        e.salu(f"s_mul_i32 s{S_T0}, s{S_KT}, {32*12288}")
        e.salu(f"s_add_u32 s{S_T0}, s{S_T0}, s{S_WQCOL}")
        if t.hd:
            e.salu(f"s_add_u32 s{S_T0}, s{S_T0}, 384")
        e.salu(f"s_add_u32 m0, s{S_W3072}, {t.addr}", w=['m0'])
        for p in range(3):
            off = f" offset:{1024*p}" if p else ""
            e.I(f"buffer_load_dwordx4 v{dreg['WQ'][p]}, s[{SRD_WQ}:{SRD_WQ+3}], s{S_T0} offen{off} lds", 'dma', r=[dreg['WQ'][p], 'm0'], tag=t)
        if t.kind == 'w0':
            e.salu(f"s_lshl_b32 s{S_T0}, s{S_KT}, 6")
            e.salu(f"s_add_u32 m0, s{S_W1024}, {t.addr + 12288}", w=['m0'])
            e.I(f"buffer_load_dwordx4 v{dreg['X']}, s[{SRD_X}:{SRD_X+3}], s{S_T0} offen lds", 'dma', r=[dreg['X'], 'm0'], tag=t)
    elif t.kind == 'wo':
        e.salu(f"s_add_u32 m0, s{S_W5120}, {t.addr}", w=['m0'])
        e.salu(f"s_mov_b32 s{S_T0}, {(t.hd*192 + 64*t.sl + 16*t.a)*1280}")
        for p in range(4):
            off = f" offset:{1024*p}" if p else ""
            e.I(f"buffer_load_dwordx4 v{dreg['WO'][p]}, s[{SRD_WO}:{SRD_WO+3}], s{S_T0} offen{off} lds", 'dma', r=[dreg['WO'][p], 'm0'], tag=t)
        e.salu(f"s_add_u32 m0, s{S_W5120}, {t.addr + 4096}", w=['m0'])
        e.I(f"buffer_load_dwordx4 v{dreg['WO'][4]}, s[{SRD_WO}:{SRD_WO+3}], s{S_T0} offen lds", 'dma', r=[dreg['WO'][4], 'm0'], tag=t)

def V(e, text, w, r=()):
    e.valu(text, w=list(w), r=list(r))

def calc_dK(e, dst, t0, t1):
    e.salu(f"s_lshl_b32 s{S_T0}, s{S_W}, 2")
    for p in range(3):
        V(e, f"v_add_u32 v{t0}, {64*p}, v0", [t0], [0])
        V(e, f"v_mul_u32_u24 v{t0}, 171, v{t0}", [t0], [t0])
        V(e, f"v_lshrrev_b32 v{t0}, 13, v{t0}", [t0], [t0])
        V(e, f"v_add_u32 v{t0}, s{S_T0}, v{t0}", [t0], [t0])
        V(e, f"v_and_b32 v{t0}, 7, v{t0}", [t0], [t0])
        V(e, f"v_xor_b32 v{t0}, v{t0}, v0", [t0], [t0, 0])
        V(e, f"v_lshlrev_b32 v{t0}, 4, v{t0}", [t0], [t0])
        V(e, f"v_add_u32 v{dst[p]}, s{S_W3072}, v{t0}", [dst[p]], [t0])

def calc_dWQ(e, dst, t0, t1, t2):
    e.salu(f"s_mul_i32 s{S_T0}, s{S_W}, {8*12288}")
    e.salu(f"s_mov_b32 s{S_T1}, 12288")
    for p in range(3):
        V(e, f"v_add_u32 v{t0}, {64*p}, v0", [t0], [0])
        V(e, f"v_mul_u32_u24 v{t1}, 171, v{t0}", [t1], [t0])
        V(e, f"v_lshrrev_b32 v{t1}, 12, v{t1}", [t1], [t1])
        V(e, f"v_mul_u32_u24 v{t2}, 24, v{t1}", [t2], [t1])
        V(e, f"v_sub_u32 v{t0}, v{t0}, v{t2}", [t0], [t0, t2])
        V(e, f"v_and_b32 v{t2}, 2, v{t1}", [t2], [t1])
        V(e, f"v_lshlrev_b32 v{t2}, 1, v{t2}", [t2], [t2])
        V(e, f"v_xor_b32 v{t0}, v{t0}, v{t2}", [t0], [t0, t2])
        V(e, f"v_lshlrev_b32 v{t0}, 4, v{t0}", [t0], [t0])
        V(e, f"v_mul_lo_u32 v{t1}, v{t1}, s{S_T1}", [t1], [t1])
        V(e, f"v_add_u32 v{t0}, v{t0}, v{t1}", [t0], [t0, t1])
        V(e, f"v_add_u32 v{t0}, s{S_T0}, v{t0}", [t0], [t0])
        if p:
            V(e, f"v_subrev_u32 v{dst[p]}, {1024*p}, v{t0}", [dst[p]], [t0])
        else:
            V(e, f"v_mov_b32 v{dst[p]}, v{t0}", [dst[p]], [t0])

def calc_dX(e, dst, t0, t1):
    e.salu(f"s_mul_i32 s{S_T0}, s{S_W}, {16*1280}")
    V(e, f"v_lshrrev_b32 v{t0}, 2, v0", [t0], [0])
    V(e, f"v_mul_u32_u24 v{t0}, 1280, v{t0}", [t0], [t0])
    V(e, f"v_lshrrev_b32 v{t1}, 4, v0", [t1], [0])
    V(e, f"v_xor_b32 v{t1}, v{t1}, v0", [t1], [t1, 0])
    V(e, f"v_and_b32 v{t1}, 3, v{t1}", [t1], [t1])
    V(e, f"v_lshlrev_b32 v{t1}, 4, v{t1}", [t1], [t1])
    V(e, f"v_add_u32 v{t0}, v{t0}, v{t1}", [t0], [t0, t1])
    V(e, f"v_add_u32 v{dst}, s{S_T0}, v{t0}", [dst], [t0])

def calc_dV(e, dst, t0, t1):
    e.salu(f"s_mul_i32 s{S_T0}, s{S_W}, {16*384}")
    V(e, f"v_lshrrev_b32 v{t0}, 3, v0", [t0], [0])
    V(e, f"v_and_b32 v{t1}, 6, v{t0}", [t1], [t0])
    V(e, f"v_xor_b32 v{t1}, v{t1}, v0", [t1], [t1, 0])
    V(e, f"v_and_b32 v{t1}, 7, v{t1}", [t1], [t1])
    V(e, f"v_lshlrev_b32 v{t1}, 4, v{t1}", [t1], [t1])
    V(e, f"v_mul_u32_u24 v{t0}, 384, v{t0}", [t0], [t0])
    V(e, f"v_add_u32 v{t0}, v{t0}, v{t1}", [t0], [t0, t1])
    V(e, f"v_add_u32 v{dst[0]}, s{S_T0}, v{t0}", [dst[0]], [t0])
    V(e, f"v_add_u32 v{dst[1]}, {8*384 - 1024}, v{dst[0]}", [dst[1]], [dst[0]])

def calc_dWO(e, dst, t0, t1):
    e.salu(f"s_mul_i32 s{S_T0}, s{S_W}, 320")
    for p in range(5):
        V(e, f"v_add_u32 v{t0}, {64*p}, v0", [t0], [0])
        V(e, f"v_add_u32 v{t0}, s{S_T0}, v{t0}", [t0], [t0])
        V(e, f"v_mul_u32_u24 v{t0}, 3277, v{t0}", [t0], [t0])
        V(e, f"v_lshrrev_b32 v{t0}, 18, v{t0}", [t0], [t0])
        V(e, f"v_and_b32 v{t0}, 3, v{t0}", [t0], [t0])
        V(e, f"v_lshlrev_b32 v{t0}, 2, v{t0}", [t0], [t0])
        V(e, f"v_xor_b32 v{t0}, v{t0}, v0", [t0], [t0, 0])
        V(e, f"v_lshlrev_b32 v{t0}, 4, v{t0}", [t0], [t0])
        V(e, f"v_add_u32 v{dst[p]}, s{S_W5120}, v{t0}", [dst[p]], [t0])
        if p == 4:
            V(e, f"v_add_u32 v{dst[p]}, 4096, v{dst[p]}", [dst[p]], [dst[p]])

def mfma16(e, d, a, b, c):
    cs = "0" if c is None else vr(c, 4)
    e.I(f"v_mfma_f32_16x16x32_bf16 {vr(d,4)}, {vr(a,4)}, {vr(b,4)}, {cs}", 'mfma4', w=R(d, 4), r=R(a, 4) + R(b, 4), srcc=([] if c is None else R(c, 4)))
def mfma32(e, d, a, b, c):
    cs = "0" if c is None else vr(c, 16)
    e.I(f"v_mfma_f32_32x32x16_bf16 {vr(d,16)}, {vr(a,4)}, {vr(b,4)}, {cs}", 'mfma8', w=R(d, 16), r=R(a, 4) + R(b, 4), srcc=([] if c is None else R(c, 16)))
def dsr128(e, d, a, off):
    assert 0 <= off < 65536, off
    e.I(f"ds_read_b128 {vr(d,4)}, v{a} offset:{off}", 'ds_read', w=R(d, 4), r=[a])
def dsrtr(e, d, a, off):
    assert 0 <= off < 65536, off
    e.I(f"ds_read_b64_tr_b16 {vr(d,2)}, v{a} offset:{off}", 'ds_read', w=R(d, 2), r=[a])
def dsw64(e, a, d, off):
    assert 0 <= off < 65536, off
    e.I(f"ds_write_b64 v{a}, {vr(d,2)} offset:{off}", 'ds_write', r=[a, d, d + 1])
def cvtpk(e, d, a, b):
    e.valu(f"v_cvt_pk_bf16_f32 v{d}, v{a}, v{b}", w=[d], r=[a, b])

def gen_B(cfg, S):
    e = Em('B')
    dreg = dict(K=[1, 2, 3], WQ=[4, 5, 6], X=7, V=[8, 9])
    kA = [10, 11]; vA = [12, 13, 14, 15]; oA = [16, 17, 18, 19]; TT = [20, 21, 22, 23]
    vm, vmc, vinvl, t0, t1, t2 = 24, 25, 26, 27, 28, 29
    ONES = 32; LACC = 36; OACC = 40; QF = 56; FR = 80; SB = 128
    e.label("L_B")
    calc_dWQ(e, dreg['WQ'], t0, t1, t2)
    calc_dX(e, dreg['X'], t0, t1)
    issue = {}
    for t in S['allt']:
        if t.by == 'B':
            issue.setdefault(t.issue, []).append(t)
    cons = {}
    for t in S['H']:
        cons[t.consume[0]] = t
    needB = {}
    for t in S['allt']:
        if t.by == 'B':
            needB.setdefault(t.consume[0], []).append(t)
    def do_issue(tk):
        for t in issue.get(tk, []):
            dma_tile(e, t, cfg, dreg)
    do_issue(0)
    calc_dK(e, dreg['K'], t0, t1)
    calc_dV(e, dreg['V'], t0, t1)
    V(e, f"v_and_b32 v{t0}, 15, v0", [t0], [0])
    V(e, f"v_lshrrev_b32 v{t1}, 1, v{t0}", [t1], [t0])
    V(e, f"v_lshrrev_b32 v{t2}, 4, v0", [t2], [0])
    V(e, f"v_xor_b32 v{t2}, v{t2}, v{t1}", [t2], [t1, t2])
    V(e, f"v_lshlrev_b32 v{t2}, 4, v{t2}", [t2], [t2])
    V(e, f"v_mul_u32_u24 v{kA[0]}, 384, v{t0}", [kA[0]], [t0])
    V(e, f"v_add_u32 v{kA[0]}, v{kA[0]}, v{t2}", [kA[0]], [kA[0], t2])
    V(e, f"v_xor_b32 v{t2}, 64, v{t2}", [t2], [t2])
    V(e, f"v_mul_u32_u24 v{kA[1]}, 384, v{t0}", [kA[1]], [t0])
    V(e, f"v_add_u32 v{kA[1]}, v{kA[1]}, v{t2}", [kA[1]], [kA[1], t2])
    V(e, f"v_mul_u32_u24 v{t2}, 384, v{t0}", [t2], [t0])
    V(e, f"v_add_u32 v{t2}, s{S_W6144}, v{t2}", [t2], [t2])
    V(e, f"v_lshrrev_b32 v{vm}, 4, v0", [vm], [0])
    V(e, f"v_and_b32 v{vmc}, 1, v{vm}", [vmc], [vm])
    V(e, f"v_lshlrev_b32 v{vmc}, 3, v{vmc}", [vmc], [vmc])
    V(e, f"v_add_u32 v{t2}, v{t2}, v{vmc}", [t2], [t2, vmc])
    V(e, f"v_lshrrev_b32 v{vm}, 1, v{vm}", [vm], [vm])
    for dt in range(4):
        V(e, f"v_add_u32 v{vmc}, {2*dt}, v{vm}", [vmc], [vm])
        V(e, f"v_xor_b32 v{vmc}, v{vmc}, v{t1}", [vmc], [vmc, t1])
        V(e, f"v_lshlrev_b32 v{vmc}, 4, v{vmc}", [vmc], [vmc])
        V(e, f"v_add_u32 v{oA[dt]}, v{t2}, v{vmc}", [oA[dt]], [t2, vmc])
    V(e, f"v_lshrrev_b32 v{t0}, 2, v0", [t0], [0])
    V(e, f"v_and_b32 v{t1}, 6, v{t0}", [t1], [t0])
    V(e, f"v_lshlrev_b32 v{t0}, 7, v{t0}", [t0], [t0])
    V(e, f"v_and_b32 v{t2}, 3, v0", [t2], [0])
    V(e, f"v_lshlrev_b32 v{t2}, 3, v{t2}", [t2], [t2])
    V(e, f"v_add_u32 v{t0}, v{t0}, v{t2}", [t0], [t0, t2])
    for dt in range(4):
        V(e, f"v_xor_b32 v{t2}, {2*dt}, v{t1}", [t2], [t1])
        V(e, f"v_lshlrev_b32 v{t2}, 4, v{t2}", [t2], [t2])
        V(e, f"v_add_u32 v{vA[dt]}, v{t0}, v{t2}", [vA[dt]], [t0, t2])
    for i in range(4):
        V(e, f"v_mov_b32 v{ONES+i}, 0x3f803f80", [ONES + i])

    def load_qfrags():
        V(e, f"v_add_u32 v{TT[0]}, s{S_W6144}, v{kA[0]}", [TT[0]], [kA[0]])
        V(e, f"v_add_u32 v{TT[1]}, s{S_W6144}, v{kA[1]}", [TT[1]], [kA[1]])
        for s in range(6):
            dsr128(e, QF + 4 * s, TT[s % 2], QO + (s // 2) * 128)

    def maxtile(jt):
        b = SB + 8 * jt
        if jt == 0:
            e.valu(f"v_max3_f32 v{vm}, v{b}, v{b+1}, v{b+2}", w=[vm], r=[b, b + 1, b + 2])
            e.valu(f"v_max3_f32 v{vm}, v{vm}, v{b+3}, v{b+4}", w=[vm], r=[vm, b + 3, b + 4])
            e.valu(f"v_max3_f32 v{vm}, v{vm}, v{b+5}, v{b+6}", w=[vm], r=[vm, b + 5, b + 6])
            e.valu(f"v_max_f32 v{vm}, v{vm}, v{b+7}", w=[vm], r=[vm, b + 7])
        else:
            for i in range(4):
                e.valu(f"v_max3_f32 v{vm}, v{vm}, v{b+2*i}, v{b+2*i+1}", w=[vm], r=[vm, b + 2 * i, b + 2 * i + 1])

    def qk(t, tk):
        win = t.addr
        rel = 0
        if t.j == 0:
            load_qfrags() if t.hd == 0 else None
        V(e, f"v_add_u32 v{TT[2]}, {win}, v{kA[0]}", [TT[2]], [kA[0]])
        V(e, f"v_add_u32 v{TT[3]}, {win}, v{kA[1]}", [TT[3]], [kA[1]])
        for tp in range(2):
            for s in range(6):
                dsr128(e, FR + 4 * (6 * tp + s), TT[2 + s % 2], rel + tp * 6144 + (s // 2) * 128)
        do_issue(tk)
        if t.j > 0:
            maxtile(t.j - 1)
        for tp in range(2):
            d = SB + 4 * (2 * t.j + tp)
            for s in range(6):
                mfma16(e, d, FR + 4 * (6 * tp + s), QF + 4 * s, None if s == 0 else d)

    def softmax_fin():
        maxtile(15)
        V(e, f"v_mov_b32 v{t0}, v{vm}", [t0], [vm])
        e.I(f"v_permlane32_swap_b32 v{t0}, v{vm}", 'permlane', w=[t0, vm], r=[t0, vm])
        V(e, f"v_max_f32 v{vm}, v{vm}, v{t0}", [vm], [vm, t0])
        V(e, f"v_mov_b32 v{t0}, v{vm}", [t0], [vm])
        e.I(f"v_permlane16_swap_b32 v{t0}, v{vm}", 'permlane', w=[t0, vm], r=[t0, vm])
        V(e, f"v_max_f32 v{vm}, v{vm}, v{t0}", [vm], [vm, t0])
        V(e, f"v_mul_f32 v{vmc}, s{S_C}, v{vm}", [vmc], [vm])

    def expstep(sp):
        b = SB + 8 * sp
        for i in range(8):
            e.valu(f"v_fma_f32 v{b+i}, v{b+i}, s{S_C}, -v{vmc}", w=[b + i], r=[b + i, vmc])
        for i in range(8):
            e.I(f"v_exp_f32 v{b+i}, v{b+i}", 'trans', w=[b + i], r=[b + i])
        for i in range(4):
            cvtpk(e, b + i, b + 2 * i, b + 2 * i + 1)

    def pv(t, tk):
        win = t.addr
        rel = 0
        if t.sl == 0 and t.j == 0:
            softmax_fin()
        if t.sl == 0 and t.j == 7 and t.hd == 0:
            load_qfrags()
        for dt in range(4):
            V(e, f"v_add_u32 v{TT[dt]}, {win}, v{vA[dt]}", [TT[dt]], [vA[dt]])
        for ks in range(2):
            for dt in range(4):
                for h in range(2):
                    dsrtr(e, FR + 16 * ks + 4 * dt + 2 * h, TT[dt], rel + ks * 4096 + h * 2048)
        do_issue(tk)
        if t.sl == 0:
            expstep(2 * t.j); expstep(2 * t.j + 1)
        for ks in range(2):
            sp = 2 * t.j + ks
            P = SB + 8 * sp
            first = (t.j == 0 and ks == 0)
            if t.sl == 0:
                mfma16(e, LACC, ONES, P, None if first else LACC)
            for dt in range(4):
                mfma16(e, OACC + 4 * dt, FR + 16 * ks + 4 * dt, P, None if first else OACC + 4 * dt)
        if t.j == 7:
            if t.sl == 0:
                e.I(f"v_rcp_f32 v{vinvl}, v{LACC}", 'trans', w=[vinvl], r=[LACC])
            for dt in range(4):
                o = OACC + 4 * dt
                for i in range(4):
                    V(e, f"v_mul_f32 v{o+i}, v{o+i}, v{vinvl}", [o + i], [o + i, vinvl])
                cvtpk(e, o, o, o + 1)
                cvtpk(e, o + 1, o + 2, o + 3)
                dsw64(e, oA[dt], o, QO + 128 * t.sl)

    for tk in range(0, S['nticks']):
        if tk > 0:
            e.comment(f"---- B tick {tk}")
            e.barrier()
            t = cons.get(tk)
            if t is None:
                do_issue(tk)
            elif t.kind == 'k':
                qk(t, tk)
            else:
                pv(t, tk)
        for t in needB.get(tk + 1, []):
            e.wait_tile(t)
    e.raw("    s_endpgm")
    return e

def gen_A(cfg, S):
    e = Em('A')
    e.label("L_A")
    dreg = dict(K=[1, 2, 3], WQ=[4, 5, 6])
    wA = [7, 8, 9]; xA = [10, 11]; t0, t1, t2, t3 = 12, 13, 14, 15
    QACC = 32; XR = 96
    FS = [16, 20, 24, 28, 80, 84, 88, 92]
    calc_dK(e, dreg['K'], t0, t1)
    issue = {}
    for t in S['allt']:
        if t.by == 'A':
            issue.setdefault(t.issue, []).append(t)
    needA = {}
    for t in S['allt']:
        if t.by == 'A':
            needA.setdefault(t.consume[0], []).append(t)
    def do_issue(tk):
        for t in issue.get(tk, []):
            dma_tile(e, t, cfg, dreg)
    do_issue(0)
    calc_dWQ(e, dreg['WQ'], t0, t1, t2)
    V(e, f"v_lshrrev_b32 v{t0}, 5, v0", [t0], [0])
    V(e, f"v_lshlrev_b32 v{t0}, 3, v{t0}", [t0], [t0])
    V(e, f"v_bfe_u32 v{t1}, v0, 2, 2", [t1], [0])
    V(e, f"v_add_u32 v{t0}, v{t0}, v{t1}", [t0], [t0, t1])
    V(e, f"v_mul_u32_u24 v{t0}, 384, v{t0}", [t0], [t0])
    V(e, f"v_and_b32 v{t2}, 1, v0", [t2], [0])
    V(e, f"v_lshlrev_b32 v{t2}, 3, v{t2}", [t2], [t2])
    V(e, f"v_add_u32 v{t0}, v{t0}, v{t2}", [t0], [t0, t2])
    V(e, f"v_and_b32 v{t1}, 2, v{t1}", [t1], [t1])
    V(e, f"v_lshlrev_b32 v{t1}, 1, v{t1}", [t1], [t1])
    V(e, f"v_bfe_u32 v{t2}, v0, 4, 1", [t2], [0])
    V(e, f"v_lshlrev_b32 v{t2}, 1, v{t2}", [t2], [t2])
    V(e, f"v_bfe_u32 v{t3}, v0, 1, 1", [t3], [0])
    V(e, f"v_add_u32 v{t2}, v{t2}, v{t3}", [t2], [t2, t3])
    V(e, f"v_add_u32 v{t2}, s{S_DH12}, v{t2}", [t2], [t2])
    for j in range(3):
        V(e, f"v_add_u32 v{t3}, {4*j}, v{t2}", [t3], [t2])
        V(e, f"v_xor_b32 v{t3}, v{t3}, v{t1}", [t3], [t3, t1])
        V(e, f"v_lshlrev_b32 v{t3}, 4, v{t3}", [t3], [t3])
        V(e, f"v_add_u32 v{wA[j]}, v{t0}, v{t3}", [wA[j]], [t0, t3])
    e.salu(f"s_and_b32 s{S_T0}, s{S_W}, 1")
    e.salu(f"s_lshl_b32 s{S_T1}, s{S_T0}, 5")
    V(e, f"v_and_b32 v{t0}, 31, v0", [t0], [0])
    V(e, f"v_add_u32 v{t0}, s{S_T1}, v{t0}", [t0], [t0])
    V(e, f"v_bfe_u32 v{t1}, v{t0}, 2, 2", [t1], [t0])
    V(e, f"v_lshrrev_b32 v{t2}, 5, v0", [t2], [0])
    V(e, f"v_lshlrev_b32 v{t0}, 6, v{t0}", [t0], [t0])
    for s in range(2):
        V(e, f"v_add_u32 v{t3}, {2*s}, v{t2}", [t3], [t2])
        V(e, f"v_xor_b32 v{t3}, v{t3}, v{t1}", [t3], [t3, t1])
        V(e, f"v_lshlrev_b32 v{t3}, 4, v{t3}", [t3], [t3])
        V(e, f"v_add_u32 v{xA[s]}, v{t0}, v{t3}", [xA[s]], [t0, t3])

    consA = {}
    for t in S['W0'] + S['W1t']:
        consA[t.consume[0]] = ('q', t)
    for t in S['WO']:
        for n, c in enumerate(t.consume):
            consA.setdefault(c, []) if False else None
    woc = {}
    for t in S['WO']:
        for n, c in enumerate(t.consume):
            woc.setdefault(c, []).append((t, n))

    def qproj(t, tk):
        i = t.i
        for s in range(2):
            if t.hd == 0:
                dsr128(e, XR + 4 * (2 * i + s), xA[s], t.addr + 12288)
            for j in range(3):
                for h in range(2):
                    dsrtr(e, FS[3 * s + j] + 2 * h, wA[j], t.addr + s * 16 * 384 + h * 4 * 384)
        do_issue(tk)
        for s in range(2):
            for j in range(3):
                d = QACC + 16 * j
                mfma32(e, d, FS[3 * s + j], XR + 4 * (2 * i + s), None if (i == 0 and s == 0) else d)

    def qfin():
        e.salu(f"s_and_b32 s{S_T0}, s{S_W}, 1")
        e.salu(f"s_lshl_b32 s{S_T1}, s{S_T0}, 5")
        V(e, f"v_and_b32 v{t0}, 31, v0", [t0], [0])
        V(e, f"v_add_u32 v{t0}, s{S_T1}, v{t0}", [t0], [t0])
        V(e, f"v_bfe_u32 v{t1}, v{t0}, 1, 3", [t1], [t0])
        V(e, f"v_mul_u32_u24 v{t0}, 384, v{t0}", [t0], [t0])
        V(e, f"v_lshrrev_b32 v{t2}, 5, v0", [t2], [0])
        V(e, f"v_lshlrev_b32 v{t2}, 3, v{t2}", [t2], [t2])
        V(e, f"v_add_u32 v{t0}, v{t0}, v{t2}", [t0], [t0, t2])
        for j in range(3):
            for g in range(4):
                a = QACC + 16 * j + 4 * g
                cvtpk(e, a, a, a + 1)
                cvtpk(e, a + 1, a + 2, a + 3)
                e.salu(f"s_add_u32 s{S_T0}, s{S_DH12}, {4*j+g}")
                tt = t2 if g % 2 == 0 else t3
                V(e, f"v_xor_b32 v{tt}, s{S_T0}, v{t1}", [tt], [t1])
                V(e, f"v_lshl_add_u32 v{tt}, v{tt}, 4, v{t0}", [tt], [tt, t0])
                dsw64(e, tt, a, QO)

    dWO = [1, 2, 3, 4, 5]; woA = [6, 7, 8, 9]; ofA = [10, 11, 12, 13]; woH = [16, 17, 18, 19]
    OF = 32
    AS = [48, 52, 56, 60, 64, 68, 72, 76, 80, 84, 88, 92]
    OUT = XR
    def setup_out():
        calc_dWO(e, dWO, t0 + 2, t3 + 0) if False else None
        u0, u1 = 14, 15
        calc_dWO(e, dWO, u0, u1)
        dreg['WO'] = dWO
        a0, a1, a2, a3 = 20, 21, 22, 23
        V(e, f"v_lshrrev_b32 v{a0}, 5, v0", [a0], [0])
        V(e, f"v_lshlrev_b32 v{a0}, 3, v{a0}", [a0], [a0])
        V(e, f"v_bfe_u32 v{a1}, v0, 2, 2", [a1], [0])
        V(e, f"v_add_u32 v{a0}, v{a0}, v{a1}", [a0], [a0, a1])
        V(e, f"v_mul_u32_u24 v{a0}, 1280, v{a0}", [a0], [a0])
        V(e, f"v_bfe_u32 v{a2}, v0, 1, 1", [a2], [0])
        V(e, f"v_lshlrev_b32 v{a2}, 3, v{a2}", [a2], [a2])
        V(e, f"v_add_u32 v{a0}, v{a0}, v{a2}", [a0], [a0, a2])
        V(e, f"v_bfe_u32 v{a2}, v0, 4, 1", [a2], [0])
        V(e, f"v_lshlrev_b32 v{a2}, 1, v{a2}", [a2], [a2])
        V(e, f"v_and_b32 v{a3}, 1, v0", [a3], [0])
        V(e, f"v_add_u32 v{a2}, v{a2}, v{a3}", [a2], [a2, a3])
        V(e, f"v_lshl_add_u32 v{a0}, v{a2}, 4, v{a0}", [a0], [a2, a0])
        e.salu(f"s_lshr_b32 s{S_T0}, s{S_W}, 1")
        e.salu(f"s_mul_i32 s{S_T0}, s{S_T0}, 10")
        for j in range(4):
            e.salu(f"s_add_u32 s{S_T1}, s{S_T0}, {j}")
            V(e, f"v_xor_b32 v{a2}, s{S_T1}, v{a1}", [a2], [a1])
            V(e, f"v_lshl_add_u32 v{woA[j]}, v{a2}, 6, v{a0}", [woA[j]], [a2, a0])
            V(e, f"v_add_u32 v{woH[j]}, 65536, v{woA[j]}", [woH[j]], [woA[j]])
        e.salu(f"s_and_b32 s{S_T0}, s{S_W}, 1")
        e.salu(f"s_lshl_b32 s{S_T1}, s{S_T0}, 5")
        V(e, f"v_and_b32 v{a0}, 31, v0", [a0], [0])
        V(e, f"v_add_u32 v{a0}, s{S_T1}, v{a0}", [a0], [a0])
        V(e, f"v_bfe_u32 v{a1}, v{a0}, 1, 3", [a1], [a0])
        V(e, f"v_mul_u32_u24 v{a0}, 384, v{a0}", [a0], [a0])
        V(e, f"v_lshrrev_b32 v{a2}, 5, v0", [a2], [0])
        for ss in range(4):
            V(e, f"v_add_u32 v{a3}, {2*ss}, v{a2}", [a3], [a2])
            V(e, f"v_xor_b32 v{a3}, v{a3}, v{a1}", [a3], [a3, a1])
            V(e, f"v_lshl_add_u32 v{ofA[ss]}, v{a3}, 4, v{a0}", [ofA[ss]], [a3, a0])

    def wo_reads(t, js, slots):
        hi = t.addr >= 65536
        base = t.addr - (65536 if hi else 0)
        for j, sl in zip(js, slots):
            areg = (woH if hi else woA)[j % 4]
            for h in range(2):
                dsrtr(e, sl + 2 * h, areg, base + h * 4 * 1280 + (j // 4) * 256)

    def outproj_half(t, n, tk):
        first_ever = (t.hd == 0 and t.sl == 0 and t.a == 0)
        if t.a == 0 and n == 0:
            for ss in range(4):
                dsr128(e, OF + 4 * ss, ofA[ss], QO + 128 * t.sl)
        js = list(range(5 * n, 5 * n + 5))
        slots = AS[:5]
        wo_reads(t, js, slots)
        do_issue(tk)
        for j, sl in zip(js, slots):
            d = OUT + 16 * j
            mfma32(e, d, sl, OF + 4 * t.a, None if first_ever else d)

    def outproj_final(ts, tk):
        sl_ = ts[0][0].sl
        for ss in range(4):
            dsr128(e, OF + 4 * ss, ofA[ss], QO + 128 * sl_)
        tl = sorted([t for t, n in ts], key=lambda t: t.a)
        sv = 14
        V(e, f"v_lshlrev_b32 v{sv}, 4, v0", [sv], [0])
        e.salu(f"s_mul_i32 s{S_T2}, s{S_W}, {20*1024}")
        sets = [AS[0:4], AS[4:8], AS[8:12]]
        def reads(j):
            for a in range(4):
                wo_reads(tl[a], [j], [sets[j % 3][a]])
        def store(j):
            d = OUT + 16 * j
            for o in range(2):
                b = d + 8 * o
                for i in range(4):
                    cvtpk(e, b + i, b + 2 * i, b + 2 * i + 1)
                e.salu(f"s_add_u32 s{S_T3}, s{S_T2}, {(2*j+o)*1024}")
                e.I(f"buffer_store_dwordx4 {vr(b,4)}, v{sv}, s[{SRD_P}:{SRD_P+3}], s{S_T3} offen", 'vstore', r=R(b, 4) + [sv])
        reads(0); reads(1)
        for j in range(10):
            if j + 2 < 10:
                reads(j + 2)
            d = OUT + 16 * j
            for a in range(4):
                mfma32(e, d, sets[j % 3][a], OF + 4 * a, d)
            if j >= 2:
                store(j - 2)
        store(8); store(9)

    did_setup = False
    for tk in range(0, S['nticks']):
        if tk > 0:
            e.comment(f"---- A tick {tk}")
            e.barrier()
            if tk == S['tQ1'] + 1:
                pass
            if tk in consA:
                qproj(consA[tk][1], tk)
            elif tk == S['tQ0']:
                qfin(); do_issue(tk)
            elif tk == S['tQ1']:
                qfin()
                setup_out(); did_setup = True
                do_issue(tk)
            elif tk in woc:
                lst = woc[tk]
                if len(lst) == 1:
                    outproj_half(lst[0][0], lst[0][1], tk)
                else:
                    do_issue(tk)
                    outproj_final(lst, tk)
            else:
                do_issue(tk)
        for t in needA.get(tk + 1, []):
            e.wait_tile(t)
    e.raw("    s_endpgm")
    return e

def prologue():
    e = Em('P')
    e.salu(f"s_cmp_ge_u32 s{S_WG}, 256")
    e.raw("    s_cbranch_scc1 L_exit")
    e.raw(f"    s_load_dwordx16 s[{S_PTR}:{S_PTR+15}], s[0:1], 0")
    e.valu("v_lshrrev_b32 v1, 6, v0", w=[1], r=[0])
    e.I(f"v_readfirstlane_b32 s{S_WAVE}, v1", 'readlane', w=[f's{S_WAVE}'], r=[1])
    e.valu("v_and_b32 v0, 63, v0", w=[0], r=[0])
    e.I(f"s_and_b32 s{S_W}, s{S_WAVE}, 3", 'salu', r=[f's{S_WAVE}'])
    e.salu(f"s_and_b32 s{S_T0}, s{S_WG}, 7")
    e.salu(f"s_lshr_b32 s{S_T1}, s{S_WG}, 3")
    e.salu(f"s_lshr_b32 s{S_T2}, s{S_T1}, 4")
    e.salu(f"s_lshl_b32 s{S_HP}, s{S_T0}, 1")
    e.salu(f"s_add_u32 s{S_HP}, s{S_HP}, s{S_T2}")
    e.salu(f"s_and_b32 s{S_B}, s{S_T1}, 15")
    e.salu(f"s_mul_i32 s{S_ROT}, s{S_B}, 5")
    e.salu(f"s_lshr_b32 s{S_ROT}, s{S_ROT}, 2")
    e.salu(f"s_mul_i32 s{S_W3072}, s{S_W}, 3072")
    e.salu(f"s_lshl_b32 s{S_W1024}, s{S_W}, 10")
    e.salu(f"s_lshl_b32 s{S_W2048}, s{S_W}, 11")
    e.salu(f"s_mul_i32 s{S_W5120}, s{S_W}, 5120")
    e.salu(f"s_mul_i32 s{S_W6144}, s{S_W}, 6144")
    e.salu(f"s_mul_i32 s{S_WQCOL}, s{S_HP}, 768")
    e.salu(f"s_lshr_b32 s{S_DH12}, s{S_W}, 1")
    e.salu(f"s_mul_i32 s{S_DH12}, s{S_DH12}, 12")
    e.salu(f"s_mov_b32 s{S_C}, {f32((192 ** -0.5) * 1.4426950408889634):#x}")
    e.salu(f"s_lshl_b32 s{S_T0}, s{S_B}, 4")
    e.salu(f"s_add_u32 s{S_T0}, s{S_T0}, s{S_HP}")
    e.salu(f"s_mul_i32 s{S_T1}, s{S_T0}, 393216")
    e.salu(f"s_mul_i32 s{S_T2}, s{S_T0}, 81920")
    e.salu(f"s_mul_i32 s{S_T3}, s{S_B}, 81920")
    e.salu(f"s_mul_i32 s{S_KT}, s{S_HP}, {2*192*1280}")
    e.raw("    s_waitcnt lgkmcnt(0)")
    def srd(d, p, offs, size):
        if offs is None:
            e.salu(f"s_mov_b32 s{d}, s{p}")
            e.salu(f"s_and_b32 s{d+1}, s{p+1}, 0xffff")
        else:
            e.salu(f"s_add_u32 s{d}, s{p}, s{offs}")
            e.salu(f"s_addc_u32 s{d+1}, s{p+1}, 0")
            e.salu(f"s_and_b32 s{d+1}, s{d+1}, 0xffff")
        e.salu(f"s_mov_b32 s{d+2}, {size}")
        e.salu(f"s_mov_b32 s{d+3}, 0x20000")
    srd(SRD_WQ, S_PTR + 6, None, 640 * 12288)
    srd(SRD_X, S_PTR + 0, S_T3, 81920)
    srd(SRD_K, S_PTR + 2, S_T1, 393216)
    srd(SRD_V, S_PTR + 4, S_T1, 393216)
    srd(SRD_WO, S_PTR + 8, S_KT, 2 * 192 * 1280)
    srd(SRD_P, S_PTR + 14, S_T2, 81920)
    e.salu(f"s_cmp_ge_u32 s{S_WAVE}, 4")
    e.raw("    s_cbranch_scc1 L_B")
    return e

def gen_reduce():
    L = []
    A = L.append
    A(f".globl {KN2}")
    A(".p2align 8")
    A(f".type {KN2},@function")
    A(f"{KN2}:")
    A("    s_cmp_ge_u32 s2, 320")
    A("    s_cbranch_scc1 L_rexit")
    A("    s_load_dwordx2 s[4:5], s[0:1], 40")
    A("    s_load_dwordx2 s[6:7], s[0:1], 56")
    A("    v_lshrrev_b32 v1, 6, v0")
    A("    v_and_b32 v0, 63, v0")
    A("    v_readfirstlane_b32 s8, v1")
    A("    s_lshl_b32 s9, s2, 2")
    A("    s_nop 2")
    A("    s_add_u32 s9, s9, s8")
    A("    s_mul_hi_u32 s10, s9, 53687092")
    A("    s_mul_i32 s11, s10, 80")
    A("    s_sub_u32 s11, s9, s11")
    A("    s_mul_i32 s12, s10, 1310720")
    A("    s_lshl_b32 s13, s11, 10")
    A("    s_add_u32 s12, s12, s13")
    A("    v_lshlrev_b32 v2, 4, v0")
    A("    s_waitcnt lgkmcnt(0)")
    A("    s_add_u32 s16, s6, s12")
    A("    s_addc_u32 s17, s7, 0")
    A("    s_and_b32 s17, s17, 0xffff")
    A("    s_mov_b32 s18, 0x7fffffff" if False else f"    s_mov_b32 s18, {15*81920+1024}")
    A("    s_mov_b32 s19, 0x20000")
    for h in range(16):
        A(f"    s_mov_b32 s{24+h}, {h*81920}")
    for h in range(16):
        A(f"    buffer_load_dwordx4 v[{8+4*h}:{11+4*h}], v2, s[16:19], s{24+h} offen")
    A("    s_mul_hi_u32 s20, s11, 214748365")
    A("    s_mul_i32 s21, s20, 20")
    A("    s_sub_u32 s21, s11, s21")
    A("    s_and_b32 s22, s20, 1")
    A("    s_lshr_b32 s23, s20, 1")
    A("    s_mul_i32 s23, s23, 320")
    A("    s_lshl_b32 s21, s21, 4")
    A("    s_add_u32 s23, s23, s21")
    A("    s_lshl_b32 s22, s22, 5")
    A("    s_lshl_b32 s40, s10, 6")
    A("    s_add_u32 s22, s22, s40")
    A("    s_mul_i32 s22, s22, 1280")
    A("    s_lshl_b32 s23, s23, 1")
    A("    s_add_u32 s22, s22, s23")
    A("    v_and_b32 v3, 31, v0")
    A("    v_mul_u32_u24 v3, 1280, v3")
    A("    v_lshrrev_b32 v4, 5, v0")
    A("    v_lshlrev_b32 v4, 4, v4")
    A("    v_add_u32 v3, v3, v4")
    A("    s_mov_b32 s44, s4")
    A("    s_and_b32 s45, s5, 0xffff")
    A(f"    s_mov_b32 s46, {16*64*640*2}")
    A("    s_mov_b32 s47, 0x20000")
    for h in range(16):
        A(f"    s_waitcnt vmcnt({15-h})")
        for i in range(4):
            src = 8 + 4 * h + i
            if h == 0:
                A(f"    v_lshlrev_b32 v{72+2*i}, 16, v{src}")
                A(f"    v_and_b32 v{73+2*i}, 0xffff0000, v{src}")
            else:
                A(f"    v_lshlrev_b32 v5, 16, v{src}")
                A(f"    v_and_b32 v6, 0xffff0000, v{src}")
                A(f"    v_add_f32 v{72+2*i}, v{72+2*i}, v5")
                A(f"    v_add_f32 v{73+2*i}, v{73+2*i}, v6")
    for i in range(4):
        A(f"    v_cvt_pk_bf16_f32 v{80+i}, v{72+2*i}, v{73+2*i}")
    A("    buffer_store_dwordx4 v[80:83], v3, s[44:47], s22 offen")
    A("L_rexit:")
    A("    s_endpgm")
    return L

def kd(name, vgpr, sgpr=96):
    return [f".amdhsa_kernel {name}", f"  .amdhsa_next_free_vgpr {vgpr}", f"  .amdhsa_next_free_sgpr {sgpr}",
            f"  .amdhsa_accum_offset {vgpr}", "  .amdhsa_group_segment_fixed_size 0", "  .amdhsa_kernarg_size 64",
            "  .amdhsa_user_sgpr_count 2", "  .amdhsa_user_sgpr_kernarg_segment_ptr 1", "  .amdhsa_system_sgpr_workgroup_id_x 1",
            "  .amdhsa_float_denorm_mode_32 3", ".end_amdhsa_kernel"]

def generate(cfg, fn):
    S = build_schedule(cfg)
    P = prologue(); A = gen_A(cfg, S); B = gen_B(cfg, S)
    assert A.nbar == B.nbar, (A.nbar, B.nbar)
    L = []
    L.append(f"; @launch kernel={KN} grid=(256,1,1) block=(512,1,1) lds=163840")
    L.append(f"; @launch kernel={KN2} grid=(320,1,1) block=(256,1,1) lds=0")
    L.append('.amdgcn_target "amdgcn-amd-amdhsa--gfx950"')
    L.append(".text")
    L.append(f".globl {KN}")
    L.append(".p2align 8")
    L.append(f".type {KN},@function")
    L.append(f"{KN}:")
    L += P.lines + A.lines + B.lines
    L.append("L_exit:")
    L.append("    s_endpgm")
    L += gen_reduce()
    L.append('.section .rodata,"a"')
    L.append(".p2align 6")
    L += kd(KN, 256)
    L.append(".p2align 6")
    L += kd(KN2, 88)
    open(fn, "w").write("\n".join(L) + "\n")
    print("ticks", S['nticks'], "A instr", A.ninstr, A.stats, "B instr", B.ninstr, B.stats, file=sys.stderr)
    return S

if __name__ == "__main__":
    cfg = Cfg()
    S = generate(cfg, sys.argv[1] if len(sys.argv) > 1 else "k1.s")
    if "-v" in sys.argv:
        for t in S['allt']:
            print(t.name, hex(t.addr), "issue", t.issue, "by", t.by, "consume", t.consume)
```

```python
import sys, struct
from emit import Em, vr, sr, R

KN = "standalone__gqa_block_cached__near_ridge_kernel"
KN2 = "gqa_reduce_kernel"

def f32(x):
    return struct.unpack("<I", struct.pack("<f", x))[0]

class Cfg:
    dbg = None
    nt_kv = True
    w0_slots = 5
    w0_first = 2
    w0_lead = 4
    x_slots = 3
    xbase = 64 * 1024
    x_issue = [0, 0, 0, 3, 5, 7, 9, 11, 13, 15]
    kpre = 6
    kpre_ticks = [2, 4, 6, 8, 10, 12, 14, 16]
    W1 = 24576
    WSZ = 65536
    HB = 88 * 1024
    HSZ = 72 * 1024
    k_lead = 99
    v_lead = 99
    wo_lead = 99
    final_addr = [136 * 1024, 64 * 1024, 88 * 1024, 24 * 1024]
    rot = True
    touch_wq1 = 8
    touch_wo_lead = 10
    touch = True
    prof = False

QO = 0

S_WG = 2; S_WAVE = 3; S_W = 4; S_B = 5; S_HP = 6; S_ROT = 7
S_PTR = 16
SRD_K = 32; SRD_V = 36; SRD_WQ = 40; SRD_X = 44; SRD_WO = 48; SRD_P = 52
S_W3072 = 60; S_W1024 = 61; S_W2048 = 62; S_W5120 = 63; S_WQCOL = 64; S_C = 65
S_T0 = 66; S_T1 = 67; S_T2 = 68; S_T3 = 69; S_KT = 70; S_W6144 = 71; S_DH12 = 72; S_W64 = 73

class Tile:
    def __init__(s, kind, name, addr, size, **kw):
        s.kind = kind; s.name = name; s.addr = addr; s.size = size
        s.consume = []
        s.issue = None; s.by = None
        s.__dict__.update(kw)
    def __repr__(s): return s.name

def build_schedule(cfg):
    T0 = 1
    HB, HSZ, W1 = cfg.HB, cfg.HSZ, cfg.W1
    X = []
    for j in range(10):
        t = Tile('x', f"x_{j}", cfg.xbase + (j % cfg.x_slots) * 8192, 8192, j=j)
        t.consume = [T0 + 2 * j, T0 + 2 * j + 1]; t.by = 'A'
        t.earliest = cfg.x_issue[j]
        X.append(t)
    W0 = []
    for i in range(20):
        t = Tile('w0', f"w0_{i}", (i % cfg.w0_slots) * 12288, 12288, hd=0, i=i)
        t.consume = [T0 + i]; t.by = 'B'
        t.earliest = max(1, T0 + i - cfg.w0_lead) if i >= cfg.w0_first else 0
        W0.append(t)
    tQ0 = T0 + 20
    tK0 = tQ0 + 1
    H = []
    pos = 0
    tk = tK0
    info = {}
    for hd in range(2):
        info[('k', hd)] = tk
        for j in range(16):
            assert pos + 12288 <= HSZ
            t = Tile('k', f"k{hd}_{j}", HB + pos, 12288, hd=hd, j=j)
            pos = (pos + 12288) % HSZ
            t.consume = [tk]; tk += 1; t.by = 'B'
            t.earliest = max(0, t.consume[0] - cfg.k_lead)
            H.append(t)
        info[('v', hd)] = tk
        for sl in range(3):
            for j in range(8):
                assert pos + 8192 <= HSZ
                t = Tile('v', f"v{hd}_{sl}_{j}", HB + pos, 8192, hd=hd, sl=sl, j=j)
                pos = (pos + 8192) % HSZ
                t.consume = [tk]; tk += 1; t.by = 'B'
                t.earliest = max(0, t.consume[0] - cfg.v_lead)
                H.append(t)
    for n, t in enumerate(H[:cfg.kpre]):
        t.by = 'A'
        t.earliest = cfg.kpre_ticks[n]
    tEnd = tk
    W1t = []
    tq1 = tK0 + 2
    nq1 = cfg.WSZ // 12288
    for i in range(20):
        t = Tile('wq1', f"wq1_{i}", W1 + (i % nq1) * 12288, 12288, hd=1, i=i)
        t.consume = [tq1 + i]; t.by = 'A'
        t.earliest = 0
        W1t.append(t)
    tQ1 = tq1 + 20
    v0 = info[('v', 0)]
    assert tQ1 < v0 + 7, (tQ1, v0)
    WO = []
    slot = 0
    nwo = cfg.WSZ // 20480
    for hd in range(2):
        vstart = info[('v', hd)]
        for sl in range(3):
            tO = vstart + 8 * sl + 7
            for a in range(4):
                final = (hd == 1 and sl == 2)
                if final:
                    addr = cfg.final_addr[a]
                    t = Tile('wo', f"wo{hd}_{sl}_{a}", addr, 20480, hd=hd, sl=sl, a=a)
                    t.consume = [tO + 1]
                else:
                    t = Tile('wo', f"wo{hd}_{sl}_{a}", W1 + (slot % nwo) * 20480, 20480, hd=hd, sl=sl, a=a)
                    slot += 1
                    t.consume = [tO + 1 + 2 * a, tO + 2 + 2 * a]
                t.by = 'A'
                t.earliest = max(tQ1, t.consume[0] - cfg.wo_lead)
                WO.append(t)
    nticks = tEnd + 1
    free_at = [0] * 160
    streams = [X, W0, H, W1t, WO]
    allt = sorted([t for s in streams for t in s], key=lambda t: (t.consume[0], t.name))
    last_issue = {}
    for t in allt:
        lo = t.addr // 1024; hi = (t.addr + t.size) // 1024
        e = max(free_at[lo:hi])
        key = t.kind if t.kind in ('x', 'w0', 'wq1', 'wo') else 'h'
        if not getattr(t, 'noorder', False):
            e = max(e, last_issue.get(key, 0))
        e = max(e, t.earliest)
        t.issue = e
        last_issue[key] = e
        assert t.issue < t.consume[0], (t, t.issue, t.consume)
        for k in range(lo, hi):
            free_at[k] = t.consume[-1] + 1
        if t.kind not in ('w0',) and lo < 24:
            raise Exception("overlaps QO " + t.name)
    for t in W0:
        if t.addr < 24576:
            assert t.consume[-1] < tQ0
    return dict(nticks=nticks, X=X, W0=W0, H=H, W1t=W1t, WO=WO, tQ0=tQ0, tQ1=tQ1, info=info, tEnd=tEnd, allt=allt)

def dma_tile(e, t, cfg, dreg):
    nt = " nt" if cfg.nt_kv else ""
    if t.kind == 'k':
        e.salu(f"s_add_u32 m0, s{S_W3072}, {t.addr}", w=['m0'])
        e.salu(f"s_mov_b32 s{S_T0}, {t.hd*196608 + t.j*12288}", w=[f's{S_T0}'])
        for p in range(3):
            off = f" offset:{1024*p}" if p else ""
            e.I(f"buffer_load_dwordx4 v{dreg['K'][p]}, s[{SRD_K}:{SRD_K+3}], s{S_T0} offen{off}{nt} lds", 'dma', r=[dreg['K'][p], 'm0'], tag=t)
    elif t.kind == 'v':
        e.salu(f"s_add_u32 m0, s{S_W2048}, {t.addr}", w=['m0'])
        e.salu(f"s_mov_b32 s{S_T0}, {t.hd*196608 + t.j*64*384 + t.sl*128}", w=[f's{S_T0}'])
        for p in range(2):
            off = f" offset:{1024*p}" if p else ""
            e.I(f"buffer_load_dwordx4 v{dreg['V'][p]}, s[{SRD_V}:{SRD_V+3}], s{S_T0} offen{off}{nt} lds", 'dma', r=[dreg['V'][p], 'm0'], tag=t)
    elif t.kind in ('w0', 'wq1'):
        if cfg.rot:
            e.salu(f"s_add_u32 s{S_KT}, s{S_ROT}, {t.i}")
            e.salu(f"s_sub_u32 s{S_T1}, s{S_KT}, 20")
            e.salu(f"s_cmp_ge_u32 s{S_KT}, 20")
            e.salu(f"s_cselect_b32 s{S_KT}, s{S_T1}, s{S_KT}")
            e.salu(f"s_mul_i32 s{S_T0}, s{S_KT}, {32*12288}")
            e.salu(f"s_add_u32 s{S_T0}, s{S_T0}, s{S_WQCOL}")
            if t.hd:
                e.salu(f"s_add_u32 s{S_T0}, s{S_T0}, 384")
        else:
            e.salu(f"s_add_u32 s{S_T0}, s{S_WQCOL}, {t.i*32*12288 + t.hd*384}")
        e.salu(f"s_add_u32 m0, s{S_W3072}, {t.addr}", w=['m0'])
        for p in range(3):
            off = f" offset:{1024*p}" if p else ""
            e.I(f"buffer_load_dwordx4 v{dreg['WQ'][p]}, s[{SRD_WQ}:{SRD_WQ+3}], s{S_T0} offen{off} lds", 'dma', r=[dreg['WQ'][p], 'm0'], tag=t)
    elif t.kind == 'x':
        if cfg.rot:
            e.salu(f"s_add_u32 s{S_KT}, s{S_ROT}, {2*t.j}")
            e.salu(f"s_sub_u32 s{S_T1}, s{S_KT}, 20")
            e.salu(f"s_cmp_ge_u32 s{S_KT}, 20")
            e.salu(f"s_cselect_b32 s{S_KT}, s{S_T1}, s{S_KT}")
            e.salu(f"s_lshl_b32 s{S_T0}, s{S_KT}, 6")
        else:
            e.salu(f"s_mov_b32 s{S_T0}, {t.j*128}")
        e.salu(f"s_add_u32 m0, s{S_W2048}, {t.addr}", w=['m0'])
        for p in range(2):
            off = f" offset:{1024*p}" if p else ""
            e.I(f"buffer_load_dwordx4 v{dreg['X'][p]}, s[{SRD_X}:{SRD_X+3}], s{S_T0} offen{off} lds", 'dma', r=[dreg['X'][p], 'm0'], tag=t)
    elif t.kind == 'wo':
        e.salu(f"s_add_u32 m0, s{S_W5120}, {t.addr}", w=['m0'])
        e.salu(f"s_mov_b32 s{S_T0}, {(t.hd*192 + 64*t.sl + 16*t.a)*1280}")
        for p in range(4):
            off = f" offset:{1024*p}" if p else ""
            e.I(f"buffer_load_dwordx4 v{dreg['WO'][p]}, s[{SRD_WO}:{SRD_WO+3}], s{S_T0} offen{off} lds", 'dma', r=[dreg['WO'][p], 'm0'], tag=t)
        e.salu(f"s_add_u32 m0, s{S_W5120}, {t.addr + 4096}", w=['m0'])
        e.I(f"buffer_load_dwordx4 v{dreg['WO'][4]}, s[{SRD_WO}:{SRD_WO+3}], s{S_T0} offen lds", 'dma', r=[dreg['WO'][4], 'm0'], tag=t)

def V(e, text, w, r=()):
    e.valu(text, w=list(w), r=list(r))

def calc_dK(e, dst, t0, t1):
    e.salu(f"s_lshl_b32 s{S_T0}, s{S_W}, 2")
    for p in range(3):
        V(e, f"v_add_u32 v{t0}, {64*p}, v0", [t0], [0])
        V(e, f"v_mul_u32_u24 v{t0}, 171, v{t0}", [t0], [t0])
        V(e, f"v_lshrrev_b32 v{t0}, 13, v{t0}", [t0], [t0])
        V(e, f"v_add_u32 v{t0}, s{S_T0}, v{t0}", [t0], [t0])
        V(e, f"v_and_b32 v{t0}, 7, v{t0}", [t0], [t0])
        V(e, f"v_xor_b32 v{t0}, v{t0}, v0", [t0], [t0, 0])
        V(e, f"v_lshlrev_b32 v{t0}, 4, v{t0}", [t0], [t0])
        V(e, f"v_add_u32 v{dst[p]}, s{S_W3072}, v{t0}", [dst[p]], [t0])

def calc_dWQ(e, dst, t0, t1, t2):
    e.salu(f"s_mul_i32 s{S_T0}, s{S_W}, {8*12288}")
    e.salu(f"s_mov_b32 s{S_T1}, 12288")
    for p in range(3):
        V(e, f"v_add_u32 v{t0}, {64*p}, v0", [t0], [0])
        V(e, f"v_mul_u32_u24 v{t1}, 171, v{t0}", [t1], [t0])
        V(e, f"v_lshrrev_b32 v{t1}, 12, v{t1}", [t1], [t1])
        V(e, f"v_mul_u32_u24 v{t2}, 24, v{t1}", [t2], [t1])
        V(e, f"v_sub_u32 v{t0}, v{t0}, v{t2}", [t0], [t0, t2])
        V(e, f"v_and_b32 v{t2}, 2, v{t1}", [t2], [t1])
        V(e, f"v_lshlrev_b32 v{t2}, 1, v{t2}", [t2], [t2])
        V(e, f"v_xor_b32 v{t0}, v{t0}, v{t2}", [t0], [t0, t2])
        V(e, f"v_lshlrev_b32 v{t0}, 4, v{t0}", [t0], [t0])
        V(e, f"v_mul_lo_u32 v{t1}, v{t1}, s{S_T1}", [t1], [t1])
        V(e, f"v_add_u32 v{t0}, v{t0}, v{t1}", [t0], [t0, t1])
        V(e, f"v_add_u32 v{t0}, s{S_T0}, v{t0}", [t0], [t0])
        if p:
            V(e, f"v_subrev_u32 v{dst[p]}, {1024*p}, v{t0}", [dst[p]], [t0])
        else:
            V(e, f"v_mov_b32 v{dst[p]}, v{t0}", [dst[p]], [t0])

def calc_dX(e, dst, t0, t1):
    e.salu(f"s_mul_i32 s{S_T0}, s{S_W}, {16*1280}")
    for p in range(2):
        V(e, f"v_lshrrev_b32 v{t0}, 3, v0", [t0], [0])
        V(e, f"v_lshrrev_b32 v{t1}, 4, v0", [t1], [0])
        if p:
            V(e, f"v_add_u32 v{t1}, 4, v{t1}", [t1], [t1])
        V(e, f"v_xor_b32 v{t1}, v{t1}, v0", [t1], [t1, 0])
        V(e, f"v_and_b32 v{t1}, 7, v{t1}", [t1], [t1])
        V(e, f"v_lshlrev_b32 v{t1}, 4, v{t1}", [t1], [t1])
        V(e, f"v_mul_u32_u24 v{t0}, 1280, v{t0}", [t0], [t0])
        V(e, f"v_add_u32 v{t0}, v{t0}, v{t1}", [t0], [t0, t1])
        if p:
            V(e, f"v_add_u32 v{t0}, {8*1280 - 1024}, v{t0}", [t0], [t0])
        V(e, f"v_add_u32 v{dst[p]}, s{S_T0}, v{t0}", [dst[p]], [t0])

def calc_dV(e, dst, t0, t1):
    e.salu(f"s_mul_i32 s{S_T0}, s{S_W}, {16*384}")
    V(e, f"v_lshrrev_b32 v{t0}, 3, v0", [t0], [0])
    V(e, f"v_and_b32 v{t1}, 6, v{t0}", [t1], [t0])
    V(e, f"v_xor_b32 v{t1}, v{t1}, v0", [t1], [t1, 0])
    V(e, f"v_and_b32 v{t1}, 7, v{t1}", [t1], [t1])
    V(e, f"v_lshlrev_b32 v{t1}, 4, v{t1}", [t1], [t1])
    V(e, f"v_mul_u32_u24 v{t0}, 384, v{t0}", [t0], [t0])
    V(e, f"v_add_u32 v{t0}, v{t0}, v{t1}", [t0], [t0, t1])
    V(e, f"v_add_u32 v{dst[0]}, s{S_T0}, v{t0}", [dst[0]], [t0])
    V(e, f"v_add_u32 v{dst[1]}, {8*384 - 1024}, v{dst[0]}", [dst[1]], [dst[0]])

def calc_dWO(e, dst, t0, t1):
    e.salu(f"s_mul_i32 s{S_T0}, s{S_W}, 320")
    for p in range(5):
        V(e, f"v_add_u32 v{t0}, {64*p}, v0", [t0], [0])
        V(e, f"v_add_u32 v{t0}, s{S_T0}, v{t0}", [t0], [t0])
        V(e, f"v_mul_u32_u24 v{t0}, 3277, v{t0}", [t0], [t0])
        V(e, f"v_lshrrev_b32 v{t0}, 18, v{t0}", [t0], [t0])
        V(e, f"v_and_b32 v{t0}, 3, v{t0}", [t0], [t0])
        V(e, f"v_lshlrev_b32 v{t0}, 2, v{t0}", [t0], [t0])
        V(e, f"v_xor_b32 v{t0}, v{t0}, v0", [t0], [t0, 0])
        V(e, f"v_lshlrev_b32 v{t0}, 4, v{t0}", [t0], [t0])
        V(e, f"v_add_u32 v{dst[p]}, s{S_W5120}, v{t0}", [dst[p]], [t0])
        if p == 4:
            V(e, f"v_add_u32 v{dst[p]}, 4096, v{dst[p]}", [dst[p]], [dst[p]])

def mfma16(e, d, a, b, c):
    cs = "0" if c is None else vr(c, 4)
    e.I(f"v_mfma_f32_16x16x32_bf16 {vr(d,4)}, {vr(a,4)}, {vr(b,4)}, {cs}", 'mfma4', w=R(d, 4), r=R(a, 4) + R(b, 4), srcc=([] if c is None else R(c, 4)))
def mfma32(e, d, a, b, c):
    cs = "0" if c is None else vr(c, 16)
    e.I(f"v_mfma_f32_32x32x16_bf16 {vr(d,16)}, {vr(a,4)}, {vr(b,4)}, {cs}", 'mfma8', w=R(d, 16), r=R(a, 4) + R(b, 4), srcc=([] if c is None else R(c, 16)))
def dsr128(e, d, a, off):
    assert 0 <= off < 65536, off
    e.I(f"ds_read_b128 {vr(d,4)}, v{a} offset:{off}", 'ds_read', w=R(d, 4), r=[a])
def dsrtr(e, d, a, off):
    assert 0 <= off < 65536, off
    e.I(f"ds_read_b64_tr_b16 {vr(d,2)}, v{a} offset:{off}", 'ds_read', w=R(d, 2), r=[a])
def dsw64(e, a, d, off):
    assert 0 <= off < 65536, off
    e.I(f"ds_write_b64 v{a}, {vr(d,2)} offset:{off}", 'ds_write', r=[a, d, d + 1])
def cvtpk(e, d, a, b):
    e.valu(f"v_cvt_pk_bf16_f32 v{d}, v{a}, v{b}", w=[d], r=[a, b])

def gen_B(cfg, S):
    e = Em('B')
    dreg = dict(K=[1, 2, 3], WQ=[4, 5, 6], V=[8, 9])
    kA = [10, 11]; vA = [12, 13, 14, 15]; oA = [16, 17, 18, 19]; TT = [20, 21, 22, 23]
    vm, vmc, vinvl, t0, t1, t2 = 24, 25, 26, 27, 28, 29
    ONES = 32; LACC = 36; OACC = 40; QF = 56; FR = 80; SB = 128
    e.label("L_B")
    calc_dWQ(e, dreg['WQ'], t0, t1, t2)
    issue = {}
    for t in S['allt']:
        if t.by == 'B':
            issue.setdefault(t.issue, []).append(t)
    cons = {}
    for t in S['H']:
        cons[t.consume[0]] = t
    needB = {}
    for t in S['allt']:
        if t.by == 'B':
            needB.setdefault(t.consume[0], []).append(t)
    def do_issue(tk):
        for t in issue.get(tk, []):
            dma_tile(e, t, cfg, dreg)
    stamp(e, cfg, 1)
    do_issue(0)
    stamp(e, cfg, 2)
    calc_dK(e, dreg['K'], t0, t1)
    calc_dV(e, dreg['V'], t0, t1)
    V(e, f"v_and_b32 v{t0}, 15, v0", [t0], [0])
    V(e, f"v_lshrrev_b32 v{t1}, 1, v{t0}", [t1], [t0])
    V(e, f"v_lshrrev_b32 v{t2}, 4, v0", [t2], [0])
    V(e, f"v_xor_b32 v{t2}, v{t2}, v{t1}", [t2], [t1, t2])
    V(e, f"v_lshlrev_b32 v{t2}, 4, v{t2}", [t2], [t2])
    V(e, f"v_mul_u32_u24 v{kA[0]}, 384, v{t0}", [kA[0]], [t0])
    V(e, f"v_add_u32 v{kA[0]}, v{kA[0]}, v{t2}", [kA[0]], [kA[0], t2])
    V(e, f"v_xor_b32 v{t2}, 64, v{t2}", [t2], [t2])
    V(e, f"v_mul_u32_u24 v{kA[1]}, 384, v{t0}", [kA[1]], [t0])
    V(e, f"v_add_u32 v{kA[1]}, v{kA[1]}, v{t2}", [kA[1]], [kA[1], t2])
    V(e, f"v_mul_u32_u24 v{t2}, 384, v{t0}", [t2], [t0])
    V(e, f"v_add_u32 v{t2}, s{S_W6144}, v{t2}", [t2], [t2])
    V(e, f"v_lshrrev_b32 v{vm}, 4, v0", [vm], [0])
    V(e, f"v_and_b32 v{vmc}, 1, v{vm}", [vmc], [vm])
    V(e, f"v_lshlrev_b32 v{vmc}, 3, v{vmc}", [vmc], [vmc])
    V(e, f"v_add_u32 v{t2}, v{t2}, v{vmc}", [t2], [t2, vmc])
    V(e, f"v_lshrrev_b32 v{vm}, 1, v{vm}", [vm], [vm])
    for dt in range(4):
        V(e, f"v_add_u32 v{vmc}, {2*dt}, v{vm}", [vmc], [vm])
        V(e, f"v_xor_b32 v{vmc}, v{vmc}, v{t1}", [vmc], [vmc, t1])
        V(e, f"v_lshlrev_b32 v{vmc}, 4, v{vmc}", [vmc], [vmc])
        V(e, f"v_add_u32 v{oA[dt]}, v{t2}, v{vmc}", [oA[dt]], [t2, vmc])
    V(e, f"v_lshrrev_b32 v{t0}, 2, v0", [t0], [0])
    V(e, f"v_and_b32 v{t1}, 6, v{t0}", [t1], [t0])
    V(e, f"v_lshlrev_b32 v{t0}, 7, v{t0}", [t0], [t0])
    V(e, f"v_and_b32 v{t2}, 3, v0", [t2], [0])
    V(e, f"v_lshlrev_b32 v{t2}, 3, v{t2}", [t2], [t2])
    V(e, f"v_add_u32 v{t0}, v{t0}, v{t2}", [t0], [t0, t2])
    for dt in range(4):
        V(e, f"v_xor_b32 v{t2}, {2*dt}, v{t1}", [t2], [t1])
        V(e, f"v_lshlrev_b32 v{t2}, 4, v{t2}", [t2], [t2])
        V(e, f"v_add_u32 v{vA[dt]}, v{t0}, v{t2}", [vA[dt]], [t0, t2])
    for i in range(4):
        V(e, f"v_mov_b32 v{ONES+i}, 0x3f803f80", [ONES + i])

    def load_qfrags():
        V(e, f"v_add_u32 v{TT[0]}, s{S_W6144}, v{kA[0]}", [TT[0]], [kA[0]])
        V(e, f"v_add_u32 v{TT[1]}, s{S_W6144}, v{kA[1]}", [TT[1]], [kA[1]])
        for s in range(6):
            dsr128(e, QF + 4 * s, TT[s % 2], QO + (s // 2) * 128)

    def maxtile(jt):
        b = SB + 8 * jt
        if jt == 0:
            e.valu(f"v_max3_f32 v{vm}, v{b}, v{b+1}, v{b+2}", w=[vm], r=[b, b + 1, b + 2])
            e.valu(f"v_max3_f32 v{vm}, v{vm}, v{b+3}, v{b+4}", w=[vm], r=[vm, b + 3, b + 4])
            e.valu(f"v_max3_f32 v{vm}, v{vm}, v{b+5}, v{b+6}", w=[vm], r=[vm, b + 5, b + 6])
            e.valu(f"v_max_f32 v{vm}, v{vm}, v{b+7}", w=[vm], r=[vm, b + 7])
        else:
            for i in range(4):
                e.valu(f"v_max3_f32 v{vm}, v{vm}, v{b+2*i}, v{b+2*i+1}", w=[vm], r=[vm, b + 2 * i, b + 2 * i + 1])

    def qk(t, tk):
        win = t.addr
        rel = 0
        if t.j == 0:
            load_qfrags() if t.hd == 0 else None
        V(e, f"v_add_u32 v{TT[2]}, {win}, v{kA[0]}", [TT[2]], [kA[0]])
        V(e, f"v_add_u32 v{TT[3]}, {win}, v{kA[1]}", [TT[3]], [kA[1]])
        for tp in range(2):
            for s in range(6):
                dsr128(e, FR + 4 * (6 * tp + s), TT[2 + s % 2], rel + tp * 6144 + (s // 2) * 128)
        do_issue(tk)
        if t.j > 0:
            maxtile(t.j - 1)
        for tp in range(2):
            d = SB + 4 * (2 * t.j + tp)
            for s in range(6):
                mfma16(e, d, FR + 4 * (6 * tp + s), QF + 4 * s, None if s == 0 else d)

    def softmax_fin():
        maxtile(15)
        V(e, f"v_mov_b32 v{t0}, v{vm}", [t0], [vm])
        e.I(f"v_permlane32_swap_b32 v{t0}, v{vm}", 'permlane', w=[t0, vm], r=[t0, vm])
        V(e, f"v_max_f32 v{vm}, v{vm}, v{t0}", [vm], [vm, t0])
        V(e, f"v_mov_b32 v{t0}, v{vm}", [t0], [vm])
        e.I(f"v_permlane16_swap_b32 v{t0}, v{vm}", 'permlane', w=[t0, vm], r=[t0, vm])
        V(e, f"v_max_f32 v{vm}, v{vm}, v{t0}", [vm], [vm, t0])
        V(e, f"v_mul_f32 v{vmc}, s{S_C}, v{vm}", [vmc], [vm])

    def expstep(sp):
        b = SB + 8 * sp
        for i in range(8):
            e.valu(f"v_fma_f32 v{b+i}, v{b+i}, s{S_C}, -v{vmc}", w=[b + i], r=[b + i, vmc])
        for i in range(8):
            e.I(f"v_exp_f32 v{b+i}, v{b+i}", 'trans', w=[b + i], r=[b + i])
        for i in range(4):
            cvtpk(e, b + i, b + 2 * i, b + 2 * i + 1)

    def pv(t, tk):
        win = t.addr
        rel = 0
        if t.sl == 0 and t.j == 0:
            softmax_fin()
        if t.sl == 0 and t.j == 7 and t.hd == 0:
            load_qfrags()
        for dt in range(4):
            V(e, f"v_add_u32 v{TT[dt]}, {win}, v{vA[dt]}", [TT[dt]], [vA[dt]])
        for ks in range(2):
            for dt in range(4):
                for h in range(2):
                    dsrtr(e, FR + 16 * ks + 4 * dt + 2 * h, TT[dt], rel + ks * 4096 + h * 2048)
        do_issue(tk)
        if t.sl == 0:
            expstep(2 * t.j); expstep(2 * t.j + 1)
        for ks in range(2):
            sp = 2 * t.j + ks
            P = SB + 8 * sp
            first = (t.j == 0 and ks == 0)
            if t.sl == 0:
                mfma16(e, LACC, ONES, P, None if first else LACC)
            for dt in range(4):
                mfma16(e, OACC + 4 * dt, FR + 16 * ks + 4 * dt, P, None if first else OACC + 4 * dt)
        if t.j == 7:
            if t.sl == 0:
                e.I(f"v_rcp_f32 v{vinvl}, v{LACC}", 'trans', w=[vinvl], r=[LACC])
            for dt in range(4):
                o = OACC + 4 * dt
                for i in range(4):
                    V(e, f"v_mul_f32 v{o+i}, v{o+i}, v{vinvl}", [o + i], [o + i, vinvl])
                cvtpk(e, o, o, o + 1)
                cvtpk(e, o + 1, o + 2, o + 3)
                dsw64(e, oA[dt], o, QO + 128 * t.sl)

    for tk in range(0, S['nticks']):
        if tk > 0:
            e.comment(f"---- B tick {tk}")
            if cfg.prof:
                e.raw("    s_memtime s[80:81]")
                e.raw("    s_waitcnt lgkmcnt(0)")
                e.lgkm = []
            e.barrier()
            if cfg.prof:
                e.raw(f"    v_writelane_b32 v{30 + tk // 64}, s80, {tk % 64}")
            t = cons.get(tk)
            if t is None:
                do_issue(tk)
            elif t.kind == 'k':
                qk(t, tk)
            else:
                pv(t, tk)
        if tk == 0: stamp(e, cfg, 3)
        lstamp(e, cfg, 1, 0, tk, 28, 29)
        for t in needB.get(tk + 1, []):
            e.wait_tile(t)
        lstamp(e, cfg, 1, 1, tk, 28, 29)
        if tk == 0: stamp(e, cfg, 4)
    if cfg.prof:
        e.raw("    s_memtime s[80:81]")
        e.raw("    s_waitcnt lgkmcnt(0)")
        e.raw(f"    v_writelane_b32 v31, s80, 63")
        e.raw(f"    v_writelane_b32 v30, s82, 0")
        for n in range(5):
            e.raw(f"    v_writelane_b32 v31, s{STAMPS[n]}, {48+n}")
        e.raw(f"    s_cmp_eq_u32 s{S_W}, 0")
        e.raw("    s_cbranch_scc0 L_Bdone")
        e.raw(f"    s_lshl_b32 s84, s{S_WG}, 9")
        e.raw(f"    s_add_u32 s84, s84, {64<<20}")
        e.raw(f"    s_add_u32 s88, s{S_PTR+14}, s84")
        e.raw(f"    s_addc_u32 s89, s{S_PTR+15}, 0")
        e.raw(f"    s_and_b32 s89, s89, 0xffff")
        e.raw(f"    s_mov_b32 s90, 512")
        e.raw(f"    s_mov_b32 s91, 0x20000")
        e.raw(f"    v_lshlrev_b32 v29, 2, v0")
        e.raw(f"    buffer_store_dword v30, v29, s[88:91], 0 offen")
        e.raw(f"    buffer_store_dword v31, v29, s[88:91], 0 offen offset:256")
        e.raw(f"    s_lshl_b32 s84, s{S_WG}, 11")
        e.raw(f"    s_add_u32 s84, s84, {(64<<20) + (1<<18)}")
        e.raw(f"    s_add_u32 s88, s{S_PTR+14}, s84")
        e.raw(f"    s_addc_u32 s89, s{S_PTR+15}, 0")
        e.raw(f"    s_and_b32 s89, s89, 0xffff")
        e.raw(f"    s_mov_b32 s90, 2048")
        e.raw(f"    v_lshlrev_b32 v28, 4, v0")
        e.raw(f"    v_add_u32 v27, {PROF_LDS}, v28")
        e.raw(f"    ds_read_b128 v[80:83], v27")
        e.raw(f"    ds_read_b128 v[84:87], v27 offset:1024")
        e.raw(f"    s_waitcnt lgkmcnt(0)")
        e.raw(f"    buffer_store_dwordx4 v[80:83], v28, s[88:91], 0 offen")
        e.raw(f"    buffer_store_dwordx4 v[84:87], v28, s[88:91], 0 offen offset:1024")
        e.raw("L_Bdone:")
    e.raw("    s_endpgm")
    return e

def gen_A(cfg, S):
    e = Em('A')
    e.label("L_A")
    dreg = dict(K=[1, 2, 3], WQ=[4, 5, 6], X=[88, 89])
    wA = [7, 8, 9]; xA = [10, 11, 90, 91]; t0, t1, t2, t3 = 12, 13, 14, 15
    QACC = 32; XR = 96
    FS = [16, 20, 24, 28, 80, 84, 88, 92]
    calc_dX(e, dreg['X'], t0, t1)
    issue = {}
    for t in S['allt']:
        if t.by == 'A':
            issue.setdefault(t.issue, []).append(t)
    needA = {}
    for t in S['allt']:
        if t.by == 'A':
            needA.setdefault(t.consume[0], []).append(t)
    touches = {}
    if cfg.touch:
        touches.setdefault(cfg.touch_wq1, []).append(('wq1',))
        for t in S['WO']:
            if t.a == 0:
                touches.setdefault(max(cfg.touch_wq1 + 1, t.issue - cfg.touch_wo_lead), []).append(('wo', t.hd, t.sl))
    def do_issue(tk):
        for t in issue.get(tk, []):
            dma_tile(e, t, cfg, dreg)
        for tc in touches.get(tk, []):
            if tc[0] == 'wq1':
                e.salu(f"s_mul_i32 s{S_T0}, s{S_B}, {40*12288}")
                e.salu(f"s_add_u32 s{S_T0}, s{S_T0}, s{S_WQCOL}")
                e.salu(f"s_add_u32 s{S_T0}, s{S_T0}, 384")
                e.I(f"buffer_load_dword v92, v94, s[{SRD_WQ}:{SRD_WQ+3}], s{S_T0} offen", 'vload', w=[92], r=[94])
            else:
                e.salu(f"s_mul_i32 s{S_T0}, s{S_B}, {40*128}")
                e.salu(f"s_add_u32 s{S_T0}, s{S_T0}, {(tc[1]*192 + 64*tc[2])*1280}")
                e.I(f"buffer_load_dword v93, v95, s[{SRD_WO}:{SRD_WO+3}], s{S_T0} offen", 'vload', w=[93], r=[95])
    stamp(e, cfg, 1)
    do_issue(0)
    stamp(e, cfg, 2)
    if cfg.touch:
        V(e, f"v_add_u32 v{t0}, s{S_W64}, v0", [t0], [0])
        V(e, f"v_mul_u32_u24 v{t1}, 171, v{t0}", [t1], [t0])
        V(e, f"v_lshrrev_b32 v{t1}, 9, v{t1}", [t1], [t1])
        V(e, f"v_mul_u32_u24 v{t2}, 3, v{t1}", [t2], [t1])
        V(e, f"v_sub_u32 v{t2}, v{t0}, v{t2}", [t2], [t0, t2])
        V(e, f"v_lshlrev_b32 v{t2}, 7, v{t2}", [t2], [t2])
        e.salu(f"s_mov_b32 s{S_T1}, 12288")
        V(e, f"v_mul_lo_u32 v{t1}, v{t1}, s{S_T1}", [t1], [t1])
        V(e, f"v_add_u32 v{t1}, v{t1}, v{t2}", [t1], [t1, t2])
        V(e, f"v_cmp_gt_u32 vcc, 120, v{t0}", ['vcc'], [t0])
        V(e, f"v_mov_b32 v{t2}, 0x7fffffff", [t2])
        e.valu(f"v_cndmask_b32 v94, v{t2}, v{t1}, vcc", w=[94], r=[t1, t2, 'vcc'])
        V(e, f"v_lshlrev_b32 v{t1}, 7, v{t0}", [t1], [t0])
        V(e, f"v_cmp_gt_u32 vcc, 40, v{t0}", ['vcc'], [t0])
        e.valu(f"v_cndmask_b32 v95, v{t2}, v{t1}, vcc", w=[95], r=[t1, t2, 'vcc'])
    calc_dK(e, dreg['K'], t0, t1)
    calc_dWQ(e, dreg['WQ'], t0, t1, t2)
    V(e, f"v_lshrrev_b32 v{t0}, 5, v0", [t0], [0])
    V(e, f"v_lshlrev_b32 v{t0}, 3, v{t0}", [t0], [t0])
    V(e, f"v_bfe_u32 v{t1}, v0, 2, 2", [t1], [0])
    V(e, f"v_add_u32 v{t0}, v{t0}, v{t1}", [t0], [t0, t1])
    V(e, f"v_mul_u32_u24 v{t0}, 384, v{t0}", [t0], [t0])
    V(e, f"v_and_b32 v{t2}, 1, v0", [t2], [0])
    V(e, f"v_lshlrev_b32 v{t2}, 3, v{t2}", [t2], [t2])
    V(e, f"v_add_u32 v{t0}, v{t0}, v{t2}", [t0], [t0, t2])
    V(e, f"v_and_b32 v{t1}, 2, v{t1}", [t1], [t1])
    V(e, f"v_lshlrev_b32 v{t1}, 1, v{t1}", [t1], [t1])
    V(e, f"v_bfe_u32 v{t2}, v0, 4, 1", [t2], [0])
    V(e, f"v_lshlrev_b32 v{t2}, 1, v{t2}", [t2], [t2])
    V(e, f"v_bfe_u32 v{t3}, v0, 1, 1", [t3], [0])
    V(e, f"v_add_u32 v{t2}, v{t2}, v{t3}", [t2], [t2, t3])
    V(e, f"v_add_u32 v{t2}, s{S_DH12}, v{t2}", [t2], [t2])
    for j in range(3):
        V(e, f"v_add_u32 v{t3}, {4*j}, v{t2}", [t3], [t2])
        V(e, f"v_xor_b32 v{t3}, v{t3}, v{t1}", [t3], [t3, t1])
        V(e, f"v_lshlrev_b32 v{t3}, 4, v{t3}", [t3], [t3])
        V(e, f"v_add_u32 v{wA[j]}, v{t0}, v{t3}", [wA[j]], [t0, t3])
    e.salu(f"s_and_b32 s{S_T0}, s{S_W}, 1")
    e.salu(f"s_lshl_b32 s{S_T1}, s{S_T0}, 5")
    V(e, f"v_and_b32 v{t0}, 31, v0", [t0], [0])
    V(e, f"v_add_u32 v{t0}, s{S_T1}, v{t0}", [t0], [t0])
    V(e, f"v_bfe_u32 v{t1}, v{t0}, 1, 3", [t1], [t0])
    V(e, f"v_lshrrev_b32 v{t2}, 5, v0", [t2], [0])
    V(e, f"v_lshlrev_b32 v{t0}, 7, v{t0}", [t0], [t0])
    V(e, f"v_add_u32 v{t0}, {cfg.xbase}, v{t0}", [t0], [t0])
    for m in range(4):
        V(e, f"v_add_u32 v{t3}, {2*m}, v{t2}", [t3], [t2])
        V(e, f"v_xor_b32 v{t3}, v{t3}, v{t1}", [t3], [t3, t1])
        V(e, f"v_lshlrev_b32 v{t3}, 4, v{t3}", [t3], [t3])
        V(e, f"v_add_u32 v{xA[m]}, v{t0}, v{t3}", [xA[m]], [t0, t3])

    consA = {}
    for t in S['W0'] + S['W1t']:
        consA[t.consume[0]] = ('q', t)
    for t in S['WO']:
        for n, c in enumerate(t.consume):
            consA.setdefault(c, []) if False else None
    woc = {}
    for t in S['WO']:
        for n, c in enumerate(t.consume):
            woc.setdefault(c, []).append((t, n))

    def qproj(t, tk):
        i = t.i
        for s in range(2):
            if t.hd == 0:
                m = 2 * (i % 2) + s
                xo = ((i // 2) % cfg.x_slots) * 8192
                if xo >= 65536:
                    V(e, f"v_add_u32 v{t3}, 65536, v{xA[m]}", [t3], [xA[m]])
                    dsr128(e, XR + 4 * (2 * i + s), t3, xo - 65536)
                else:
                    dsr128(e, XR + 4 * (2 * i + s), xA[m], xo)
            if t.addr + 12288 > 65536:
                if s == 0:
                    for j in range(3):
                        V(e, f"v_add_u32 v{[t0,t1,t2][j]}, {t.addr}, v{wA[j]}", [[t0,t1,t2][j]], [wA[j]])
                wr, wb = [t0, t1, t2], 0
            else:
                wr, wb = wA, t.addr
            for j in range(3):
                for h in range(2):
                    dsrtr(e, FS[3 * s + j] + 2 * h, wr[j], wb + s * 16 * 384 + h * 4 * 384)
        do_issue(tk)
        for s in range(2):
            for j in range(3):
                d = QACC + 16 * j
                mfma32(e, d, FS[3 * s + j], XR + 4 * (2 * i + s), None if (i == 0 and s == 0) else d)

    def qfin():
        e.salu(f"s_and_b32 s{S_T0}, s{S_W}, 1")
        e.salu(f"s_lshl_b32 s{S_T1}, s{S_T0}, 5")
        V(e, f"v_and_b32 v{t0}, 31, v0", [t0], [0])
        V(e, f"v_add_u32 v{t0}, s{S_T1}, v{t0}", [t0], [t0])
        V(e, f"v_bfe_u32 v{t1}, v{t0}, 1, 3", [t1], [t0])
        V(e, f"v_mul_u32_u24 v{t0}, 384, v{t0}", [t0], [t0])
        V(e, f"v_lshrrev_b32 v{t2}, 5, v0", [t2], [0])
        V(e, f"v_lshlrev_b32 v{t2}, 3, v{t2}", [t2], [t2])
        V(e, f"v_add_u32 v{t0}, v{t0}, v{t2}", [t0], [t0, t2])
        for j in range(3):
            for g in range(4):
                a = QACC + 16 * j + 4 * g
                cvtpk(e, a, a, a + 1)
                cvtpk(e, a + 1, a + 2, a + 3)
                e.salu(f"s_add_u32 s{S_T0}, s{S_DH12}, {4*j+g}")
                tt = t2 if g % 2 == 0 else t3
                V(e, f"v_xor_b32 v{tt}, s{S_T0}, v{t1}", [tt], [t1])
                V(e, f"v_lshl_add_u32 v{tt}, v{tt}, 4, v{t0}", [tt], [tt, t0])
                dsw64(e, tt, a, QO)

    dWO = [1, 2, 3, 4, 5]; woA = [6, 7, 8, 9]; ofA = [10, 11, 12, 13]; woH = [16, 17, 18, 19]
    OF = 32
    AS = [48, 52, 56, 60, 64, 68, 72, 76, 80, 84, 88, 92]
    OUT = XR
    def setup_out():
        calc_dWO(e, dWO, t0 + 2, t3 + 0) if False else None
        u0, u1 = 14, 15
        calc_dWO(e, dWO, u0, u1)
        dreg['WO'] = dWO
        a0, a1, a2, a3 = 20, 21, 22, 23
        V(e, f"v_lshrrev_b32 v{a0}, 5, v0", [a0], [0])
        V(e, f"v_lshlrev_b32 v{a0}, 3, v{a0}", [a0], [a0])
        V(e, f"v_bfe_u32 v{a1}, v0, 2, 2", [a1], [0])
        V(e, f"v_add_u32 v{a0}, v{a0}, v{a1}", [a0], [a0, a1])
        V(e, f"v_mul_u32_u24 v{a0}, 1280, v{a0}", [a0], [a0])
        V(e, f"v_bfe_u32 v{a2}, v0, 1, 1", [a2], [0])
        V(e, f"v_lshlrev_b32 v{a2}, 3, v{a2}", [a2], [a2])
        V(e, f"v_add_u32 v{a0}, v{a0}, v{a2}", [a0], [a0, a2])
        V(e, f"v_bfe_u32 v{a2}, v0, 4, 1", [a2], [0])
        V(e, f"v_lshlrev_b32 v{a2}, 1, v{a2}", [a2], [a2])
        V(e, f"v_and_b32 v{a3}, 1, v0", [a3], [0])
        V(e, f"v_add_u32 v{a2}, v{a2}, v{a3}", [a2], [a2, a3])
        V(e, f"v_lshl_add_u32 v{a0}, v{a2}, 4, v{a0}", [a0], [a2, a0])
        e.salu(f"s_lshr_b32 s{S_T0}, s{S_W}, 1")
        e.salu(f"s_mul_i32 s{S_T0}, s{S_T0}, 10")
        for j in range(4):
            e.salu(f"s_add_u32 s{S_T1}, s{S_T0}, {j}")
            V(e, f"v_xor_b32 v{a2}, s{S_T1}, v{a1}", [a2], [a1])
            V(e, f"v_lshl_add_u32 v{woA[j]}, v{a2}, 6, v{a0}", [woA[j]], [a2, a0])
        e.salu(f"s_and_b32 s{S_T0}, s{S_W}, 1")
        e.salu(f"s_lshl_b32 s{S_T1}, s{S_T0}, 5")
        V(e, f"v_and_b32 v{a0}, 31, v0", [a0], [0])
        V(e, f"v_add_u32 v{a0}, s{S_T1}, v{a0}", [a0], [a0])
        V(e, f"v_bfe_u32 v{a1}, v{a0}, 1, 3", [a1], [a0])
        V(e, f"v_mul_u32_u24 v{a0}, 384, v{a0}", [a0], [a0])
        V(e, f"v_lshrrev_b32 v{a2}, 5, v0", [a2], [0])
        for ss in range(4):
            V(e, f"v_add_u32 v{a3}, {2*ss}, v{a2}", [a3], [a2])
            V(e, f"v_xor_b32 v{a3}, v{a3}, v{a1}", [a3], [a3, a1])
            V(e, f"v_lshl_add_u32 v{ofA[ss]}, v{a3}, 4, v{a0}", [ofA[ss]], [a3, a0])

    wost = {}
    def wo_reads(t, js, slots):
        if t.addr + 20480 <= 65536:
            regs, base = woA, t.addr
        else:
            key = t.addr
            if key not in wost:
                sets_ = [[16, 17, 18, 19], [20, 21, 22, 23], [24, 25, 26, 27], [28, 29, 30, 31]]
                idx = wost.get('n', 0)
                regs = sets_[idx % 4]
                for k2 in [k for k, v in wost.items() if k != 'n' and v is regs]:
                    del wost[k2]
                wost['n'] = idx + 1
                for j in range(4):
                    V(e, f"v_add_u32 v{regs[j]}, {t.addr}, v{woA[j]}", [regs[j]], [woA[j]])
                wost[key] = regs
            regs, base = wost[key], 0
        for j, sl in zip(js, slots):
            areg = regs[j % 4]
            for h in range(2):
                dsrtr(e, sl + 2 * h, areg, base + h * 4 * 1280 + (j // 4) * 256)

    def outproj_half(t, n, tk):
        first_ever = (t.hd == 0 and t.sl == 0 and t.a == 0)
        if t.a == 0 and n == 0:
            for ss in range(4):
                dsr128(e, OF + 4 * ss, ofA[ss], QO + 128 * t.sl)
        js = list(range(5 * n, 5 * n + 5))
        slots = AS[:5]
        wo_reads(t, js, slots)
        do_issue(tk)
        for j, sl in zip(js, slots):
            d = OUT + 16 * j
            mfma32(e, d, sl, OF + 4 * t.a, None if first_ever else d)

    def outproj_final(ts, tk):
        sl_ = ts[0][0].sl
        for ss in range(4):
            dsr128(e, OF + 4 * ss, ofA[ss], QO + 128 * sl_)
        tl = sorted([t for t, n in ts], key=lambda t: t.a)
        sv = 14
        V(e, f"v_lshlrev_b32 v{sv}, 4, v0", [sv], [0])
        e.salu(f"s_mul_i32 s{S_T2}, s{S_W}, {20*1024}")
        sets = [AS[0:4], AS[4:8], AS[8:12]]
        def reads(j):
            for a in range(4):
                wo_reads(tl[a], [j], [sets[j % 3][a]])
        def store(j):
            d = OUT + 16 * j
            for o in range(2):
                b = d + 8 * o
                for i in range(4):
                    cvtpk(e, b + i, b + 2 * i, b + 2 * i + 1)
                e.salu(f"s_add_u32 s{S_T3}, s{S_T2}, {(2*j+o)*1024}")
                e.I(f"buffer_store_dwordx4 {vr(b,4)}, v{sv}, s[{SRD_P}:{SRD_P+3}], s{S_T3} offen", 'vstore', r=R(b, 4) + [sv])
        reads(0); reads(1)
        for j in range(10):
            if j + 2 < 10:
                reads(j + 2)
            d = OUT + 16 * j
            for a in range(4):
                mfma32(e, d, sets[j % 3][a], OF + 4 * a, d)
            if j >= 2:
                store(j - 2)
        store(8); store(9)

    did_setup = False
    for tk in range(0, S['nticks']):
        if tk > 0:
            e.comment(f"---- A tick {tk}")
            e.barrier()
            if tk == S['tQ1'] + 1:
                pass
            if tk in consA:
                qproj(consA[tk][1], tk)
            elif tk == S['tQ0']:
                qfin(); do_issue(tk)
            elif tk == S['tQ1']:
                qfin()
                setup_out(); did_setup = True
                do_issue(tk)
            elif tk in woc:
                lst = woc[tk]
                if len(lst) == 1:
                    outproj_half(lst[0][0], lst[0][1], tk)
                else:
                    do_issue(tk)
                    outproj_final(lst, tk)
            else:
                do_issue(tk)
        if tk == 0: stamp(e, cfg, 3)
        if tk < S['nticks'] - 1: lstamp(e, cfg, 0, 0, tk, 14, 15)
        for t in needA.get(tk + 1, []):
            e.wait_tile(t)
        if tk < S['nticks'] - 1: lstamp(e, cfg, 0, 1, tk, 14, 15)
        if tk == 0: stamp(e, cfg, 4)
    if cfg.prof:
        e.raw("    s_memtime s[80:81]")
        e.raw("    s_waitcnt vmcnt(0)")
        e.raw("    s_memtime s[86:87]")
        e.raw("    s_waitcnt lgkmcnt(0)")
        e.raw(f"    s_cmp_eq_u32 s{S_W}, 0")
        e.raw("    s_cbranch_scc0 L_Adone")
        e.raw(f"    s_lshl_b32 s84, s{S_WG}, 9")
        e.raw(f"    s_add_u32 s84, s84, {(64<<20) + (1<<17)}")
        e.raw(f"    s_add_u32 s88, s{S_PTR+14}, s84")
        e.raw(f"    s_addc_u32 s89, s{S_PTR+15}, 0")
        e.raw(f"    s_and_b32 s89, s89, 0xffff")
        e.raw(f"    s_mov_b32 s90, 512")
        e.raw(f"    s_mov_b32 s91, 0x20000")
        e.raw(f"    v_mov_b32 v28, s82")
        e.raw(f"    v_mov_b32 v29, s80")
        e.raw(f"    v_mov_b32 v30, s86")
        e.raw(f"    v_mov_b32 v27, 0")
        e.raw(f"    buffer_store_dwordx3 v[28:30], v27, s[88:91], 0 offen")
        for n in range(5):
            e.raw(f"    v_mov_b32 v28, s{STAMPS[n]}")
            e.raw(f"    buffer_store_dword v28, v27, s[88:91], 0 offen offset:{16+4*n}")
        e.raw("L_Adone:")
    e.raw("    s_endpgm")
    return e

STAMPS = [74, 75, 76, 77, 78, 79, 92, 93, 94, 95]
def stamp(e, cfg, n):
    if cfg.prof:
        e.raw("    s_memtime s[96:97]")
        e.raw("    s_waitcnt lgkmcnt(0)")
        e.lgkm = []
        e.raw(f"    s_mov_b32 s{STAMPS[n]}, s96")

PROF_LDS = 84 * 1024
def lstamp(e, cfg, grp, kind, tk, ta, tb):
    if cfg.prof and tk >= 21:
        e.raw("    s_memtime s[96:97]")
        e.raw("    s_waitcnt lgkmcnt(0)")
        e.lgkm = []
        e.raw(f"    v_mov_b32 v{ta}, s96")
        e.raw(f"    v_mov_b32 v{tb}, {PROF_LDS}")
        e.I(f"ds_write_b32 v{tb}, v{ta} offset:{(grp*2+kind)*512 + tk*4}", 'ds_write', r=[ta, tb])

def prologue(cfg):
    e = Em('P')
    e.salu(f"s_cmp_ge_u32 s{S_WG}, 256")
    e.raw("    s_cbranch_scc1 L_exit")
    e.raw(f"    s_load_dwordx16 s[{S_PTR}:{S_PTR+15}], s[0:1], 0")
    if cfg.prof:
        e.raw("    s_memtime s[82:83]")
    e.valu("v_lshrrev_b32 v1, 6, v0", w=[1], r=[0])
    e.I(f"v_readfirstlane_b32 s{S_WAVE}, v1", 'readlane', w=[f's{S_WAVE}'], r=[1])
    e.valu("v_and_b32 v0, 63, v0", w=[0], r=[0])
    e.I(f"s_and_b32 s{S_W}, s{S_WAVE}, 3", 'salu', r=[f's{S_WAVE}'])
    e.salu(f"s_and_b32 s{S_T0}, s{S_WG}, 7")
    e.salu(f"s_lshr_b32 s{S_T1}, s{S_WG}, 3")
    e.salu(f"s_lshr_b32 s{S_T2}, s{S_T1}, 4")
    e.salu(f"s_lshl_b32 s{S_HP}, s{S_T0}, 1")
    e.salu(f"s_add_u32 s{S_HP}, s{S_HP}, s{S_T2}")
    e.salu(f"s_and_b32 s{S_B}, s{S_T1}, 15")
    e.salu(f"s_mul_i32 s{S_ROT}, s{S_B}, 5")
    e.salu(f"s_lshr_b32 s{S_ROT}, s{S_ROT}, 3")
    e.salu(f"s_lshl_b32 s{S_ROT}, s{S_ROT}, 1")
    e.salu(f"s_mul_i32 s{S_W3072}, s{S_W}, 3072")
    e.salu(f"s_lshl_b32 s{S_W1024}, s{S_W}, 10")
    e.salu(f"s_lshl_b32 s{S_W2048}, s{S_W}, 11")
    e.salu(f"s_mul_i32 s{S_W5120}, s{S_W}, 5120")
    e.salu(f"s_mul_i32 s{S_W6144}, s{S_W}, 6144")
    e.salu(f"s_lshl_b32 s{S_W64}, s{S_W}, 6")
    e.salu(f"s_mul_i32 s{S_WQCOL}, s{S_HP}, 768")
    e.salu(f"s_lshr_b32 s{S_DH12}, s{S_W}, 1")
    e.salu(f"s_mul_i32 s{S_DH12}, s{S_DH12}, 12")
    e.salu(f"s_mov_b32 s{S_C}, {f32((192 ** -0.5) * 1.4426950408889634):#x}")
    e.salu(f"s_lshl_b32 s{S_T0}, s{S_B}, 4")
    e.salu(f"s_add_u32 s{S_T0}, s{S_T0}, s{S_HP}")
    e.salu(f"s_mul_i32 s{S_T1}, s{S_T0}, 393216")
    e.salu(f"s_mul_i32 s{S_T2}, s{S_T0}, 81920")
    e.salu(f"s_mul_i32 s{S_T3}, s{S_B}, 81920")
    e.salu(f"s_mul_i32 s{S_KT}, s{S_HP}, {2*192*1280}")
    e.raw("    s_waitcnt lgkmcnt(0)")
    stamp(e, cfg, 0)
    def srd(d, p, offs, size):
        if offs is None:
            e.salu(f"s_mov_b32 s{d}, s{p}")
            e.salu(f"s_and_b32 s{d+1}, s{p+1}, 0xffff")
        else:
            e.salu(f"s_add_u32 s{d}, s{p}, s{offs}")
            e.salu(f"s_addc_u32 s{d+1}, s{p+1}, 0")
            e.salu(f"s_and_b32 s{d+1}, s{d+1}, 0xffff")
        e.salu(f"s_mov_b32 s{d+2}, {size}")
        e.salu(f"s_mov_b32 s{d+3}, 0x20000")
    srd(SRD_WQ, S_PTR + 6, None, 640 * 12288)
    srd(SRD_X, S_PTR + 0, S_T3, 81920)
    srd(SRD_K, S_PTR + 2, S_T1, 393216)
    srd(SRD_V, S_PTR + 4, S_T1, 393216)
    srd(SRD_WO, S_PTR + 8, S_KT, 2 * 192 * 1280)
    srd(SRD_P, S_PTR + 14, S_T2, 81920)
    e.salu(f"s_cmp_ge_u32 s{S_WAVE}, 4")
    e.raw("    s_cbranch_scc1 L_B")
    return e

def gen_reduce():
    L = []
    A = L.append
    A(f".globl {KN2}")
    A(".p2align 8")
    A(f".type {KN2},@function")
    A(f"{KN2}:")
    A("    s_cmp_ge_u32 s2, 320")
    A("    s_cbranch_scc1 L_rexit")
    A("    s_load_dwordx2 s[4:5], s[0:1], 40")
    A("    s_load_dwordx2 s[6:7], s[0:1], 56")
    A("    v_lshrrev_b32 v1, 6, v0")
    A("    v_and_b32 v0, 63, v0")
    A("    v_readfirstlane_b32 s8, v1")
    A("    s_lshl_b32 s9, s2, 2")
    A("    s_nop 2")
    A("    s_add_u32 s9, s9, s8")
    A("    s_mul_hi_u32 s10, s9, 53687092")
    A("    s_mul_i32 s11, s10, 80")
    A("    s_sub_u32 s11, s9, s11")
    A("    s_mul_i32 s12, s10, 1310720")
    A("    s_lshl_b32 s13, s11, 10")
    A("    s_add_u32 s12, s12, s13")
    A("    v_lshlrev_b32 v2, 4, v0")
    A("    s_waitcnt lgkmcnt(0)")
    A("    s_add_u32 s16, s6, s12")
    A("    s_addc_u32 s17, s7, 0")
    A("    s_and_b32 s17, s17, 0xffff")
    A("    s_mov_b32 s18, 0x7fffffff" if False else f"    s_mov_b32 s18, {15*81920+1024}")
    A("    s_mov_b32 s19, 0x20000")
    for h in range(16):
        A(f"    s_mov_b32 s{24+h}, {h*81920}")
    for h in range(16):
        A(f"    buffer_load_dwordx4 v[{8+4*h}:{11+4*h}], v2, s[16:19], s{24+h} offen")
    A("    s_mul_hi_u32 s20, s11, 214748365")
    A("    s_mul_i32 s21, s20, 20")
    A("    s_sub_u32 s21, s11, s21")
    A("    s_and_b32 s22, s20, 1")
    A("    s_lshr_b32 s23, s20, 1")
    A("    s_mul_i32 s23, s23, 320")
    A("    s_lshl_b32 s21, s21, 4")
    A("    s_add_u32 s23, s23, s21")
    A("    s_lshl_b32 s22, s22, 5")
    A("    s_lshl_b32 s40, s10, 6")
    A("    s_add_u32 s22, s22, s40")
    A("    s_mul_i32 s22, s22, 1280")
    A("    s_lshl_b32 s23, s23, 1")
    A("    s_add_u32 s22, s22, s23")
    A("    v_and_b32 v3, 31, v0")
    A("    v_mul_u32_u24 v3, 1280, v3")
    A("    v_lshrrev_b32 v4, 5, v0")
    A("    v_lshlrev_b32 v4, 4, v4")
    A("    v_add_u32 v3, v3, v4")
    A("    s_mov_b32 s44, s4")
    A("    s_and_b32 s45, s5, 0xffff")
    A(f"    s_mov_b32 s46, {16*64*640*2}")
    A("    s_mov_b32 s47, 0x20000")
    for h in range(16):
        A(f"    s_waitcnt vmcnt({15-h})")
        for i in range(4):
            src = 8 + 4 * h + i
            if h == 0:
                A(f"    v_lshlrev_b32 v{72+2*i}, 16, v{src}")
                A(f"    v_and_b32 v{73+2*i}, 0xffff0000, v{src}")
            else:
                A(f"    v_lshlrev_b32 v5, 16, v{src}")
                A(f"    v_and_b32 v6, 0xffff0000, v{src}")
                A(f"    v_add_f32 v{72+2*i}, v{72+2*i}, v5")
                A(f"    v_add_f32 v{73+2*i}, v{73+2*i}, v6")
    for i in range(4):
        A(f"    v_cvt_pk_bf16_f32 v{80+i}, v{72+2*i}, v{73+2*i}")
    A("    buffer_store_dwordx4 v[80:83], v3, s[44:47], s22 offen")
    A("L_rexit:")
    A("    s_endpgm")
    return L

def kd(name, vgpr, sgpr=100):
    return [f".amdhsa_kernel {name}", f"  .amdhsa_next_free_vgpr {vgpr}", f"  .amdhsa_next_free_sgpr {sgpr}",
            f"  .amdhsa_accum_offset {vgpr}", "  .amdhsa_group_segment_fixed_size 0", "  .amdhsa_kernarg_size 64",
            "  .amdhsa_user_sgpr_count 2", "  .amdhsa_user_sgpr_kernarg_segment_ptr 1", "  .amdhsa_system_sgpr_workgroup_id_x 1",
            "  .amdhsa_float_denorm_mode_32 3", ".end_amdhsa_kernel"]

def generate(cfg, fn):
    S = build_schedule(cfg)
    P = prologue(cfg); A = gen_A(cfg, S); B = gen_B(cfg, S)
    assert A.nbar == B.nbar, (A.nbar, B.nbar)
    L = []
    L.append(f"; @launch kernel={KN} grid=(256,1,1) block=(512,1,1) lds=163840")
    L.append(f"; @launch kernel={KN2} grid=(320,1,1) block=(256,1,1) lds=0")
    L.append('.amdgcn_target "amdgcn-amd-amdhsa--gfx950"')
    L.append(".text")
    L.append(f".globl {KN}")
    L.append(".p2align 8")
    L.append(f".type {KN},@function")
    L.append(f"{KN}:")
    L += P.lines + A.lines + B.lines
    L.append("L_exit:")
    L.append("    s_endpgm")
    L += gen_reduce()
    L.append('.section .rodata,"a"')
    L.append(".p2align 6")
    L += kd(KN, 256)
    L.append(".p2align 6")
    L += kd(KN2, 88)
    open(fn, "w").write("\n".join(L) + "\n")
    print("ticks", S['nticks'], "A instr", A.ninstr, A.stats, "B instr", B.ninstr, B.stats, file=sys.stderr)
    return S

if __name__ == "__main__":
    cfg = Cfg()
    if "--prof" in sys.argv: cfg.prof = True
    for a in sys.argv[2:]:
        if "=" in a:
            k, v = a.split("=", 1)
            setattr(cfg, k, eval(v))
    S = generate(cfg, sys.argv[1] if len(sys.argv) > 1 else "k1.s")
    if "-v" in sys.argv:
        for t in S['allt']:
            print(t.name, hex(t.addr), "issue", t.issue, "by", t.by, "consume", t.consume)
```

```python
import sys, struct
from emit import Em, vr, sr, R
import gen as G
from gen import (Tile, V, calc_dK, calc_dWQ, calc_dX, calc_dV, calc_dWO, mfma16, mfma32, dsr128, dsrtr, dsw64, cvtpk, f32, kd,
                 gen_reduce, KN, KN2, QO, stamp, lstamp, STAMPS, PROF_LDS, dma_tile,
                 S_WG, S_WAVE, S_W, S_B, S_HP, S_ROT, S_PTR, SRD_K, SRD_V, SRD_WQ, SRD_X, SRD_WO, SRD_P,
                 S_W3072, S_W1024, S_W2048, S_W5120, S_WQCOL, S_C, S_T0, S_T1, S_T2, S_T3, S_KT, S_W6144, S_DH12, S_W64)

class Cfg:
    nt_kv = True
    prof = False
    rot = True
    touch = True
    w0_slots = 6
    xbase = 80 * 1024
    x_issue = [0, 0, 0, 1, 1, 1, 1, 2, 2, 2]
    w0_issue = None
    kpre = 6
    W1 = 0
    WSZ = 81920
    OB = 80 * 1024
    Q0B = 0
    Q1B = 56 * 1024
    HB = 88 * 1024
    HSZ = 72 * 1024
    touch_wq1 = 3
    touch_wo_lead = 5
    early_lead = 1
    b_pos = 0
    fineB = 21
    fineA = 15
    final_addr = None

def build_schedule(cfg):
    T0 = 1
    HB, HSZ, W1 = cfg.HB, cfg.HSZ, cfg.W1
    X = []
    for j in range(10):
        t = Tile('x', f"x_{j}", cfg.xbase + j * 8192, 8192, j=j)
        t.consume = [T0 + j]; t.by = 'A'; t.earliest = cfg.x_issue[j]
        X.append(t)
    W0 = []
    for i in range(20):
        t = Tile('w0', f"w0_{i}", (i % cfg.w0_slots) * 12288, 12288, hd=0, i=i)
        t.consume = [T0 + i // 2]; t.by = 'B'
        t.earliest = 0 if i < 2 else 1
        W0.append(t)
    tQ0 = T0 + 10
    tK0 = tQ0 + 1
    H = []
    pos = 0
    tk = tK0
    info = {}
    for hd in range(2):
        info[('k', hd)] = tk
        for j in range(16):
            assert pos + 12288 <= HSZ
            t = Tile('k', f"k{hd}_{j}", HB + pos, 12288, hd=hd, j=j)
            pos = (pos + 12288) % HSZ
            t.consume = [tk + j // 2]; t.by = 'B'; t.earliest = 0
            H.append(t)
        tk += 8
        info[('v', hd)] = tk
        for sl in range(3):
            for j in range(8):
                assert pos + 8192 <= HSZ
                t = Tile('v', f"v{hd}_{sl}_{j}", HB + pos, 8192, hd=hd, sl=sl, j=j)
                pos = (pos + 8192) % HSZ
                t.consume = [tk + j // 2]; t.by = 'B'; t.earliest = 0
                H.append(t)
            tk += 4
    for n, t in enumerate(H[:cfg.kpre]):
        t.by = 'A'
    tEnd = tk
    W1t = []
    tq1 = tK0
    nq1 = cfg.WSZ // 12288
    for i in range(20):
        t = Tile('wq1', f"wq1_{i}", W1 + ((i + 2) % nq1) * 12288, 12288, hd=1, i=i)
        t.consume = [tq1 + i // 2]; t.by = 'A'; t.earliest = 0
        W1t.append(t)
    tQ1 = tq1 + 10
    v0 = info[('v', 0)]
    assert tQ1 < v0 + 3, (tQ1, v0)
    WO = []
    slot = 0
    nwo = cfg.WSZ // 20480
    for hd in range(2):
        vstart = info[('v', hd)]
        for sl in range(3):
            tO = vstart + 4 * sl + 3
            for a in range(4):
                final = (hd == 1 and sl == 2)
                t = Tile('wo', f"wo{hd}_{sl}_{a}", None, 20480, hd=hd, sl=sl, a=a)
                if final:
                    t.addr = cfg.final_addr[a]
                    t.consume = [tO + 1]
                else:
                    t.addr = W1 + (slot % nwo) * 20480
                    slot += 1
                    t.consume = [tO + 1 + a]
                t.by = 'A'
                t.earliest = tQ0 + 1
                WO.append(t)
    nticks = tEnd + 1
    free_at = [0] * 160
    PQ = []
    q0 = Tile('q', 'Q0', cfg.Q0B, 24576); q0.fixed = tQ0; q0.consume = [tQ0 + 1]; q0.by = None; PQ.append(q0)
    q1 = Tile('q', 'Q1', cfg.Q1B, 24576); q1.fixed = tQ1; q1.consume = [v0 + 3]; q1.by = None; PQ.append(q1)
    ob = Tile('q', 'OB', cfg.OB, 8192); ob.fixed = v0 + 3; ob.consume = [tEnd]; ob.by = None; PQ.append(ob)
    streams = [X, W0, H, W1t, WO, PQ]
    def okey(t):
        first = t.fixed if t.kind == 'q' else t.consume[0]
        return (first, t.kind, getattr(t, 'i', 0), getattr(t, 'sl', 0), getattr(t, 'j', 0), getattr(t, 'a', 0))
    allt = sorted([t for s_ in streams for t in s_], key=okey)
    last_issue = {}
    for t in allt:
        lo = t.addr // 1024; hi = (t.addr + t.size) // 1024
        e = max(free_at[lo:hi])
        if t.kind == 'q':
            assert e <= t.fixed, (t, e, t.fixed)
            t.issue = t.fixed
        else:
            key = t.kind if t.kind in ('x', 'w0', 'wq1', 'wo') else 'h'
            e = max(e, last_issue.get(key, 0), t.earliest)
            t.issue = e
            last_issue[key] = e
            assert t.issue < t.consume[0], (t, t.issue, t.consume)
        for k in range(lo, hi):
            free_at[k] = t.consume[-1] + 1
    for a in allt:
        for b in allt:
            if a is b: continue
            if a.addr < b.addr + b.size and b.addr < a.addr + a.size:
                assert a.consume[-1] < b.issue or b.consume[-1] < a.issue, ("overlap", a, a.issue, a.consume, b, b.issue, b.consume)
    allt = [t for t in allt if t.kind != 'q']
    return dict(nticks=nticks, X=X, W0=W0, H=H, W1t=W1t, WO=WO, tQ0=tQ0, tQ1=tQ1, info=info, tEnd=tEnd, allt=allt)

def srd(e, d, p, offs, size):
    if offs is None:
        e.salu(f"s_mov_b32 s{d}, s{p}")
        e.salu(f"s_and_b32 s{d+1}, s{p+1}, 0xffff")
    else:
        e.salu(f"s_add_u32 s{d}, s{p}, s{offs}")
        e.salu(f"s_addc_u32 s{d+1}, s{p+1}, 0")
        e.salu(f"s_and_b32 s{d+1}, s{d+1}, 0xffff")
    e.salu(f"s_mov_b32 s{d+2}, {size}")
    e.salu(f"s_mov_b32 s{d+3}, 0x20000")

S_OKV = 56; S_OP = 57; S_OX = 58; S_OWO = 59
def build_srds(e, cfg, first):
    e.raw("    s_waitcnt lgkmcnt(0)")
    stamp(e, cfg, 0)
    lst = {
        'WQ': lambda: srd(e, SRD_WQ, S_PTR + 6, None, 640 * 12288),
        'X': lambda: srd(e, SRD_X, S_PTR + 0, S_OX, 81920),
        'K': lambda: srd(e, SRD_K, S_PTR + 2, S_OKV, 393216),
        'V': lambda: srd(e, SRD_V, S_PTR + 4, S_OKV, 393216),
        'WO': lambda: srd(e, SRD_WO, S_PTR + 8, S_OWO, 2 * 192 * 1280),
        'P': lambda: srd(e, SRD_P, S_PTR + 14, S_OP, 81920),
    }
    lst[first]()
    return [k for k in lst if k != first], lst

def prologue(cfg):
    e = Em('P')
    e.salu(f"s_cmp_ge_u32 s{S_WG}, 256")
    e.raw("    s_cbranch_scc1 L_exit")
    e.raw(f"    s_load_dwordx16 s[{S_PTR}:{S_PTR+15}], s[0:1], 0")
    if cfg.prof:
        e.raw("    s_memtime s[82:83]")
        e.raw("    s_memrealtime s[8:9]")
    e.valu("v_lshrrev_b32 v1, 6, v0", w=[1], r=[0])
    e.I(f"v_readfirstlane_b32 s{S_WAVE}, v1", 'readlane', w=[f's{S_WAVE}'], r=[1])
    e.valu("v_and_b32 v0, 63, v0", w=[0], r=[0])
    e.salu(f"s_and_b32 s{S_T0}, s{S_WG}, 7")
    e.salu(f"s_lshr_b32 s{S_T1}, s{S_WG}, 3")
    e.salu(f"s_lshr_b32 s{S_T2}, s{S_T1}, 4")
    e.salu(f"s_lshl_b32 s{S_HP}, s{S_T0}, 1")
    e.salu(f"s_add_u32 s{S_HP}, s{S_HP}, s{S_T2}")
    e.salu(f"s_and_b32 s{S_B}, s{S_T1}, 15")
    e.I(f"s_and_b32 s{S_W}, s{S_WAVE}, 3", 'salu', r=[f's{S_WAVE}'])
    e.salu(f"s_mul_i32 s{S_ROT}, s{S_B}, 5")
    e.salu(f"s_lshr_b32 s{S_ROT}, s{S_ROT}, 3")
    e.salu(f"s_lshl_b32 s{S_ROT}, s{S_ROT}, 1")
    e.salu(f"s_mul_i32 s{S_W3072}, s{S_W}, 3072")
    e.salu(f"s_lshl_b32 s{S_W1024}, s{S_W}, 10")
    e.salu(f"s_lshl_b32 s{S_W2048}, s{S_W}, 11")
    e.salu(f"s_mul_i32 s{S_W5120}, s{S_W}, 5120")
    e.salu(f"s_mul_i32 s{S_W6144}, s{S_W}, 6144")
    e.salu(f"s_lshl_b32 s{S_W64}, s{S_W}, 6")
    e.salu(f"s_mul_i32 s{S_WQCOL}, s{S_HP}, 768")
    e.salu(f"s_lshr_b32 s{S_DH12}, s{S_W}, 1")
    e.salu(f"s_mul_i32 s{S_DH12}, s{S_DH12}, 12")
    e.salu(f"s_mov_b32 s{S_C}, {f32((192 ** -0.5) * 1.4426950408889634):#x}")
    e.salu(f"s_lshl_b32 s{S_T0}, s{S_B}, 4")
    e.salu(f"s_add_u32 s{S_T0}, s{S_T0}, s{S_HP}")
    e.salu(f"s_mul_i32 s{S_OKV}, s{S_T0}, 393216")
    e.salu(f"s_mul_i32 s{S_OP}, s{S_T0}, 81920")
    e.salu(f"s_mul_i32 s{S_OX}, s{S_B}, 81920")
    e.salu(f"s_mul_i32 s{S_OWO}, s{S_HP}, {2*192*1280}")
    e.salu(f"s_cmp_ge_u32 s{S_WAVE}, 4")
    e.raw("    s_cbranch_scc1 L_B")
    return e

def plan(S, who):
    issue = {}; need = {}
    for t in S['allt']:
        if t.by == who:
            issue.setdefault(t.issue, []).append(t)
            need.setdefault(t.consume[0], []).append(t)
    return issue, need

class Fine:
    def __init__(s, e, cfg, reg, tick):
        s.e, s.cfg, s.reg, s.tick, s.n, s.cur = e, cfg, reg, tick, 0, -1
    def __call__(s, label=""):
        if s.cfg.prof and s.cur == s.tick and s.n < 12:
            s.e.raw("    s_memtime s[96:97]")
            s.e.raw("    s_waitcnt lgkmcnt(0)")
            s.e.lgkm = []
            s.e.raw(f"    v_writelane_b32 v{s.reg}, s96, {s.n}")
            print("fine", s.reg, s.n, label, file=sys.stderr)
            s.n += 1

def gen_B(cfg, S):
    e = Em('B')
    dreg = dict(K=[1, 2, 3], WQ=[4, 5, 6], V=[8, 9])
    kA = [10, 11]; vA = [12, 13, 14, 15]; oA = [16, 17, 18, 19]; TT = [20, 21, 22, 23]; TU = [7, 26 + 0, 30, 31]
    vm, vmc, vinvl, t0, t1, t2 = 24, 25, 26, 27, 28, 29
    ONES = 32; LACC = 36; OACC = 40; QF = 56; FR = 80; SB = 128
    qt = [27, 28]
    fine = Fine(e, cfg, 29, cfg.fineB)
    e.label("L_B")
    calc_dWQ(e, dreg['WQ'], t0, t1, t2)
    rest, lst = build_srds(e, cfg, 'WQ')
    issue, needB = plan(S, 'B')
    cons = {}
    for t in S['H']:
        cons.setdefault(t.consume[0], []).append(t)
    def do_issue(tk):
        for t in issue.get(tk, []):
            dma_tile(e, t, cfg, dreg)
    stamp(e, cfg, 1)
    do_issue(0)
    stamp(e, cfg, 2)
    for k in rest: lst[k]()
    calc_dK(e, dreg['K'], t0, t1)
    calc_dV(e, dreg['V'], t0, t1)
    V(e, f"v_and_b32 v{t0}, 15, v0", [t0], [0])
    V(e, f"v_lshrrev_b32 v{t1}, 1, v{t0}", [t1], [t0])
    V(e, f"v_lshrrev_b32 v{t2}, 4, v0", [t2], [0])
    V(e, f"v_xor_b32 v{t2}, v{t2}, v{t1}", [t2], [t1, t2])
    V(e, f"v_lshlrev_b32 v{t2}, 4, v{t2}", [t2], [t2])
    V(e, f"v_mul_u32_u24 v{kA[0]}, 384, v{t0}", [kA[0]], [t0])
    V(e, f"v_add_u32 v{kA[0]}, v{kA[0]}, v{t2}", [kA[0]], [kA[0], t2])
    V(e, f"v_xor_b32 v{t2}, 64, v{t2}", [t2], [t2])
    V(e, f"v_mul_u32_u24 v{kA[1]}, 384, v{t0}", [kA[1]], [t0])
    V(e, f"v_add_u32 v{kA[1]}, v{kA[1]}, v{t2}", [kA[1]], [kA[1], t2])
    V(e, f"v_lshlrev_b32 v{t2}, 7, v{t0}", [t2], [t0])
    V(e, f"v_add_u32 v{t2}, s{S_W2048}, v{t2}", [t2], [t2])
    V(e, f"v_add_u32 v{t2}, {cfg.OB}, v{t2}", [t2], [t2])
    V(e, f"v_lshrrev_b32 v{vm}, 4, v0", [vm], [0])
    V(e, f"v_and_b32 v{vmc}, 1, v{vm}", [vmc], [vm])
    V(e, f"v_lshlrev_b32 v{vmc}, 3, v{vmc}", [vmc], [vmc])
    V(e, f"v_add_u32 v{t2}, v{t2}, v{vmc}", [t2], [t2, vmc])
    V(e, f"v_lshrrev_b32 v{vm}, 1, v{vm}", [vm], [vm])
    for dt in range(4):
        V(e, f"v_add_u32 v{vmc}, {2*dt}, v{vm}", [vmc], [vm])
        V(e, f"v_xor_b32 v{vmc}, v{vmc}, v{t1}", [vmc], [vmc, t1])
        V(e, f"v_lshlrev_b32 v{vmc}, 4, v{vmc}", [vmc], [vmc])
        V(e, f"v_add_u32 v{oA[dt]}, v{t2}, v{vmc}", [oA[dt]], [t2, vmc])
    V(e, f"v_lshrrev_b32 v{t0}, 2, v0", [t0], [0])
    V(e, f"v_and_b32 v{t1}, 6, v{t0}", [t1], [t0])
    V(e, f"v_lshlrev_b32 v{t0}, 7, v{t0}", [t0], [t0])
    V(e, f"v_and_b32 v{t2}, 3, v0", [t2], [0])
    V(e, f"v_lshlrev_b32 v{t2}, 3, v{t2}", [t2], [t2])
    V(e, f"v_add_u32 v{t0}, v{t0}, v{t2}", [t0], [t0, t2])
    for dt in range(4):
        V(e, f"v_xor_b32 v{t2}, {2*dt}, v{t1}", [t2], [t1])
        V(e, f"v_lshlrev_b32 v{t2}, 4, v{t2}", [t2], [t2])
        V(e, f"v_add_u32 v{vA[dt]}, v{t0}, v{t2}", [vA[dt]], [t0, t2])
    for i in range(4):
        V(e, f"v_mov_b32 v{ONES+i}, 0x3f803f80", [ONES + i])

    def load_qfrags(qb):
        V(e, f"v_add_u32 v{qt[0]}, s{S_W6144}, v{kA[0]}", [qt[0]], [kA[0]])
        V(e, f"v_add_u32 v{qt[1]}, s{S_W6144}, v{kA[1]}", [qt[1]], [kA[1]])
        if qb:
            V(e, f"v_add_u32 v{qt[0]}, {qb}, v{qt[0]}", [qt[0]], [qt[0]])
            V(e, f"v_add_u32 v{qt[1]}, {qb}, v{qt[1]}", [qt[1]], [qt[1]])
        for s in range(6):
            dsr128(e, QF + 4 * s, qt[s % 2], (s // 2) * 128)

    def maxtile(jt):
        b = SB + 8 * jt
        if jt == 0:
            e.valu(f"v_max3_f32 v{vm}, v{b}, v{b+1}, v{b+2}", w=[vm], r=[b, b + 1, b + 2])
            e.valu(f"v_max3_f32 v{vm}, v{vm}, v{b+3}, v{b+4}", w=[vm], r=[vm, b + 3, b + 4])
            e.valu(f"v_max3_f32 v{vm}, v{vm}, v{b+5}, v{b+6}", w=[vm], r=[vm, b + 5, b + 6])
            e.valu(f"v_max_f32 v{vm}, v{vm}, v{b+7}", w=[vm], r=[vm, b + 7])
        else:
            for i in range(4):
                e.valu(f"v_max3_f32 v{vm}, v{vm}, v{b+2*i}, v{b+2*i+1}", w=[vm], r=[vm, b + 2 * i, b + 2 * i + 1])

    def qk2(ta, tb, tk):
        if ta.j == 0 and ta.hd == 0:
            load_qfrags(cfg.Q0B)
        for n, t in enumerate((ta, tb)):
            V(e, f"v_add_u32 v{TT[2*n]}, {t.addr}, v{kA[0]}", [TT[2*n]], [kA[0]])
            V(e, f"v_add_u32 v{TT[2*n+1]}, {t.addr}, v{kA[1]}", [TT[2*n+1]], [kA[1]])
        def reads(n, tp):
            for s in range(6):
                dsr128(e, FR + 4 * (6 * tp + s), TT[2 * n + s % 2], tp * 6144 + (s // 2) * 128)
        def mm(t, tp):
            d = SB + 4 * (2 * t.j + tp)
            for s in range(6):
                mfma16(e, d, FR + 4 * (6 * tp + s), QF + 4 * s, None if s == 0 else d)
        fine("start")
        reads(0, 0); reads(0, 1)
        if cfg.b_pos == 0: do_issue(tk)
        if ta.j > 0:
            maxtile(ta.j - 2); maxtile(ta.j - 1)
        mm(ta, 0); reads(1, 0)
        if cfg.b_pos == 1: do_issue(tk)
        mm(ta, 1); reads(1, 1)
        if cfg.b_pos == 2: do_issue(tk)
        mm(tb, 0); mm(tb, 1)
        if cfg.b_pos == 3: do_issue(tk)
        fine("mm b")

    def softmax_fin():
        maxtile(14); maxtile(15)
        V(e, f"v_mov_b32 v{t0}, v{vm}", [t0], [vm])
        e.I(f"v_permlane32_swap_b32 v{t0}, v{vm}", 'permlane', w=[t0, vm], r=[t0, vm])
        V(e, f"v_max_f32 v{vm}, v{vm}, v{t0}", [vm], [vm, t0])
        V(e, f"v_mov_b32 v{t0}, v{vm}", [t0], [vm])
        e.I(f"v_permlane16_swap_b32 v{t0}, v{vm}", 'permlane', w=[t0, vm], r=[t0, vm])
        V(e, f"v_max_f32 v{vm}, v{vm}, v{t0}", [vm], [vm, t0])
        V(e, f"v_mul_f32 v{vmc}, s{S_C}, v{vm}", [vmc], [vm])

    def expstep(sp):
        b = SB + 8 * sp
        for i in range(8):
            e.valu(f"v_fma_f32 v{b+i}, v{b+i}, s{S_C}, -v{vmc}", w=[b + i], r=[b + i, vmc])
        for i in range(8):
            e.I(f"v_exp_f32 v{b+i}, v{b+i}", 'trans', w=[b + i], r=[b + i])
        for i in range(4):
            cvtpk(e, b + i, b + 2 * i, b + 2 * i + 1)

    def pv2(ta, tb, tk):
        sl = ta.sl
        last = (tb.j == 7)
        if sl == 0 and last and ta.hd == 0:
            load_qfrags(cfg.Q1B)
        AR = [TT, [4, 5, 6, 7]]
        for n, t in enumerate((ta, tb)):
            for dt in range(4):
                V(e, f"v_add_u32 v{AR[n][dt]}, {t.addr}, v{vA[dt]}", [AR[n][dt]], [vA[dt]])
        def reads(q):
            n, ks = q // 2, q % 2
            for dt in range(4):
                for h in range(2):
                    dsrtr(e, FR + 16 * (q % 3) + 4 * dt + 2 * h, AR[n][dt], ks * 4096 + h * 2048)
        def mm(q):
            sp = 2 * ta.j + q
            P = SB + 8 * sp
            first = (ta.j == 0 and q == 0)
            for dt in range(4):
                mfma16(e, OACC + 4 * dt, FR + 16 * (q % 3) + 4 * dt, P, None if first else OACC + 4 * dt)
            if sl == 0:
                mfma16(e, LACC, ONES, P, None if first else LACC)
        fine("start")
        reads(0); reads(1); reads(2)
        if cfg.b_pos == 0: do_issue(tk)
        if sl == 0 and ta.j == 0:
            softmax_fin_deferred()
        for q in range(4):
            if sl == 0:
                expstep(2 * ta.j + q)
            mm(q)
            if q == 0:
                reads(3)
            if cfg.b_pos == q + 1 or (cfg.b_pos == 3 and q == 3 and False): do_issue(tk)
        if last:
            if sl == 0:
                e.I(f"v_rcp_f32 v{vinvl}, v{LACC}", 'trans', w=[vinvl], r=[LACC])
            for dt in range(4):
                o = OACC + 4 * dt
                for i in range(4):
                    V(e, f"v_mul_f32 v{o+i}, v{o+i}, v{vinvl}", [o + i], [o + i, vinvl])
                cvtpk(e, o, o, o + 1)
                cvtpk(e, o + 1, o + 2, o + 3)
                dsw64(e, oA[dt], o, 0)

    def softmax_fin_deferred():
        maxtile(14); maxtile(15)
        u = 27
        V(e, f"v_mov_b32 v{u}, v{vm}", [u], [vm])
        e.I(f"v_permlane32_swap_b32 v{u}, v{vm}", 'permlane', w=[u, vm], r=[u, vm])
        V(e, f"v_max_f32 v{vm}, v{vm}, v{u}", [vm], [vm, u])
        V(e, f"v_mov_b32 v{u}, v{vm}", [u], [vm])
        e.I(f"v_permlane16_swap_b32 v{u}, v{vm}", 'permlane', w=[u, vm], r=[u, vm])
        V(e, f"v_max_f32 v{vm}, v{vm}, v{u}", [vm], [vm, u])
        V(e, f"v_mul_f32 v{vmc}, s{S_C}, v{vm}", [vmc], [vm])

    for tk in range(0, S['nticks']):
        if tk > 0:
            e.comment(f"---- B tick {tk}")
            if cfg.prof:
                e.raw("    s_memtime s[80:81]")
                e.raw("    s_waitcnt lgkmcnt(0)")
                e.lgkm = []
            e.barrier()
            if cfg.prof:
                e.raw(f"    v_writelane_b32 v31, s80, {tk}")
            ts = cons.get(tk)
            fine.cur = tk
            if ts is None:
                do_issue(tk)
            elif ts[0].kind == 'k':
                qk2(ts[0], ts[1], tk)
            else:
                pv2(ts[0], ts[1], tk)
        if tk == 0: stamp(e, cfg, 3)
        lstamp2(e, cfg, 1, 0, tk, S)
        for t in needB.get(tk + 1, []):
            e.wait_tile(t)
        lstamp2(e, cfg, 1, 1, tk, S)
        if tk == 0: stamp(e, cfg, 4)
    if cfg.prof:
        e.raw("    s_memtime s[80:81]")
        e.raw("    s_waitcnt lgkmcnt(0)")
        e.raw(f"    v_writelane_b32 v31, s80, 63")
        e.raw(f"    v_writelane_b32 v31, s82, 0")
        for n in range(5):
            e.raw(f"    v_writelane_b32 v31, s{STAMPS[n]}, {56+n}")
        e.raw(f"    s_lshl_b32 s84, s{S_WG}, 3")
        e.raw(f"    s_add_u32 s84, s84, s{S_WAVE}")
        e.raw(f"    s_lshl_b32 s84, s84, 10")
        e.raw(f"    s_add_u32 s84, s84, {64<<20}")
        e.raw(f"    s_add_u32 s88, s{S_PTR+14}, s84")
        e.raw(f"    s_addc_u32 s89, s{S_PTR+15}, 0")
        e.raw(f"    s_and_b32 s89, s89, 0xffff")
        e.raw(f"    s_mov_b32 s90, 1024")
        e.raw(f"    s_mov_b32 s91, 0x20000")
        e.raw(f"    v_lshlrev_b32 v28, 2, v0")
        e.raw(f"    buffer_store_dword v31, v28, s[88:91], 0 offen")
        e.raw(f"    buffer_store_dword v29, v28, s[88:91], 0 offen offset:256")
        e.raw(f"    buffer_store_dword v30, v28, s[88:91], 0 offen offset:512")
    e.raw("    s_endpgm")
    return e

def lstamp2(e, cfg, grp, kind, tk, S):
    if not cfg.prof or tk > 62 or tk < cfg.prof_from: return
    e.raw("    s_memtime s[96:97]")
    e.raw("    s_waitcnt lgkmcnt(0)")
    e.lgkm = []
    reg = {(0, 0): 91, (0, 1): 92, (1, 0): 29, (1, 1): 30}[(grp, kind)]
    e.raw(f"    v_writelane_b32 v{reg}, s96, {tk}")

def gen_A(cfg, S):
    e = Em('A')
    e.label("L_A")
    dreg = dict(K=[1, 2, 3], WQ=[4, 5, 6], X=[88, 89])
    wA = [7, 8, 9]; xA = [10, 11, 90, 91]; t0, t1, t2, t3 = 12, 13, 14, 15
    QACC = 32; XR = 96
    FS = [16, 20, 24, 28, 80, 84]
    calc_dX(e, dreg['X'], t0, t1)
    rest, lst = build_srds(e, cfg, 'X')
    issue, needA = plan(S, 'A')
    touches = {}
    if cfg.touch:
        touches.setdefault(cfg.touch_wq1, []).append(('wq1',))
        for t in S['WO']:
            if t.a == 0:
                touches.setdefault(max(cfg.touch_wq1 + 1, t.issue - cfg.touch_wo_lead), []).append(('wo', t.hd, t.sl))
    def do_issue(tk, part='all'):
        for t in issue.get(tk, []):
            early = (t.consume[0] - t.issue) <= cfg.early_lead
            if part == 'all' or (part == 'start') == early:
                dma_tile(e, t, cfg, dreg)
        if part == 'start': return
        for tc in touches.get(tk, []):
            if tc[0] == 'wq1':
                e.salu(f"s_mul_i32 s{S_T0}, s{S_B}, {40*12288}")
                e.salu(f"s_add_u32 s{S_T0}, s{S_T0}, s{S_WQCOL}")
                e.salu(f"s_add_u32 s{S_T0}, s{S_T0}, 384")
                e.I(f"buffer_load_dword v93, v94, s[{SRD_WQ}:{SRD_WQ+3}], s{S_T0} offen", 'vload', w=[93], r=[94])
            else:
                e.salu(f"s_mul_i32 s{S_T0}, s{S_B}, {40*128}")
                e.salu(f"s_add_u32 s{S_T0}, s{S_T0}, {(tc[1]*192 + 64*tc[2])*1280}")
                e.I(f"buffer_load_dword v93, v95, s[{SRD_WO}:{SRD_WO+3}], s{S_T0} offen", 'vload', w=[93], r=[95])
    stamp(e, cfg, 1)
    do_issue(0)
    stamp(e, cfg, 2)
    for k in rest: lst[k]()
    if cfg.touch:
        V(e, f"v_add_u32 v{t0}, s{S_W64}, v0", [t0], [0])
        V(e, f"v_mul_u32_u24 v{t1}, 171, v{t0}", [t1], [t0])
        V(e, f"v_lshrrev_b32 v{t1}, 9, v{t1}", [t1], [t1])
        V(e, f"v_mul_u32_u24 v{t2}, 3, v{t1}", [t2], [t1])
        V(e, f"v_sub_u32 v{t2}, v{t0}, v{t2}", [t2], [t0, t2])
        V(e, f"v_lshlrev_b32 v{t2}, 7, v{t2}", [t2], [t2])
        e.salu(f"s_mov_b32 s{S_T1}, 12288")
        V(e, f"v_mul_lo_u32 v{t1}, v{t1}, s{S_T1}", [t1], [t1])
        V(e, f"v_add_u32 v{t1}, v{t1}, v{t2}", [t1], [t1, t2])
        V(e, f"v_cmp_gt_u32 vcc, 120, v{t0}", ['vcc'], [t0])
        V(e, f"v_mov_b32 v{t2}, 0x7fffffff", [t2])
        e.valu(f"v_cndmask_b32 v94, v{t2}, v{t1}, vcc", w=[94], r=[t1, t2, 'vcc'])
        V(e, f"v_lshlrev_b32 v{t1}, 7, v{t0}", [t1], [t0])
        V(e, f"v_cmp_gt_u32 vcc, 40, v{t0}", ['vcc'], [t0])
        e.valu(f"v_cndmask_b32 v95, v{t2}, v{t1}, vcc", w=[95], r=[t1, t2, 'vcc'])
    calc_dK(e, dreg['K'], t0, t1)
    calc_dWQ(e, dreg['WQ'], t0, t1, t2)
    V(e, f"v_lshrrev_b32 v{t0}, 5, v0", [t0], [0])
    V(e, f"v_lshlrev_b32 v{t0}, 3, v{t0}", [t0], [t0])
    V(e, f"v_bfe_u32 v{t1}, v0, 2, 2", [t1], [0])
    V(e, f"v_add_u32 v{t0}, v{t0}, v{t1}", [t0], [t0, t1])
    V(e, f"v_mul_u32_u24 v{t0}, 384, v{t0}", [t0], [t0])
    V(e, f"v_and_b32 v{t2}, 1, v0", [t2], [0])
    V(e, f"v_lshlrev_b32 v{t2}, 3, v{t2}", [t2], [t2])
    V(e, f"v_add_u32 v{t0}, v{t0}, v{t2}", [t0], [t0, t2])
    V(e, f"v_and_b32 v{t1}, 2, v{t1}", [t1], [t1])
    V(e, f"v_lshlrev_b32 v{t1}, 1, v{t1}", [t1], [t1])
    V(e, f"v_bfe_u32 v{t2}, v0, 4, 1", [t2], [0])
    V(e, f"v_lshlrev_b32 v{t2}, 1, v{t2}", [t2], [t2])
    V(e, f"v_bfe_u32 v{t3}, v0, 1, 1", [t3], [0])
    V(e, f"v_add_u32 v{t2}, v{t2}, v{t3}", [t2], [t2, t3])
    V(e, f"v_add_u32 v{t2}, s{S_DH12}, v{t2}", [t2], [t2])
    for j in range(3):
        V(e, f"v_add_u32 v{t3}, {4*j}, v{t2}", [t3], [t2])
        V(e, f"v_xor_b32 v{t3}, v{t3}, v{t1}", [t3], [t3, t1])
        V(e, f"v_lshlrev_b32 v{t3}, 4, v{t3}", [t3], [t3])
        V(e, f"v_add_u32 v{wA[j]}, v{t0}, v{t3}", [wA[j]], [t0, t3])
    e.salu(f"s_and_b32 s{S_T0}, s{S_W}, 1")
    e.salu(f"s_lshl_b32 s{S_T1}, s{S_T0}, 5")
    V(e, f"v_and_b32 v{t0}, 31, v0", [t0], [0])
    V(e, f"v_add_u32 v{t0}, s{S_T1}, v{t0}", [t0], [t0])
    V(e, f"v_bfe_u32 v{t1}, v{t0}, 1, 3", [t1], [t0])
    V(e, f"v_lshrrev_b32 v{t2}, 5, v0", [t2], [0])
    V(e, f"v_lshlrev_b32 v{t0}, 7, v{t0}", [t0], [t0])
    V(e, f"v_add_u32 v{t0}, {cfg.xbase}, v{t0}", [t0], [t0])
    for m in range(4):
        V(e, f"v_add_u32 v{t3}, {2*m}, v{t2}", [t3], [t2])
        V(e, f"v_xor_b32 v{t3}, v{t3}, v{t1}", [t3], [t3, t1])
        V(e, f"v_lshlrev_b32 v{t3}, 4, v{t3}", [t3], [t3])
        V(e, f"v_add_u32 v{xA[m]}, v{t0}, v{t3}", [xA[m]], [t0, t3])

    consA = {}
    for t in S['W0'] + S['W1t']:
        consA.setdefault(t.consume[0], []).append(t)
    woc = {}
    for t in S['WO']:
        woc.setdefault(t.consume[0], []).append(t)

    st = {'wB': False}
    wBr = [t0, t1, t2]
    def qproj2(ts, tk):
        regs = []
        for n, t in enumerate(ts):
            if t.addr + 12288 > 65536:
                if not st['wB']:
                    for j in range(3):
                        V(e, f"v_add_u32 v{wBr[j]}, 32768, v{wA[j]}", [wBr[j]], [wA[j]])
                    st['wB'] = True
                regs.append((wBr, t.addr - 32768))
            else:
                regs.append((wA, t.addr))
        def reads(q):
            n, s = q // 2, q % 2
            t = ts[n]
            if t.hd == 0:
                m = q
                xo = (t.i // 2) * 8192
                if xo >= 65536:
                    V(e, f"v_add_u32 v{t3}, 65536, v{xA[m]}", [t3], [xA[m]])
                    dsr128(e, XR + 4 * (2 * t.i + s), t3, xo - 65536)
                else:
                    dsr128(e, XR + 4 * (2 * t.i + s), xA[m], xo)
            wr, wb = regs[n]
            for j in range(3):
                for h in range(2):
                    dsrtr(e, FS[3 * (q % 2) + j] + 2 * h, wr[j], wb + s * 16 * 384 + h * 4 * 384)
        def mm(q):
            n, s = q // 2, q % 2
            t = ts[n]
            for j in range(3):
                d = QACC + 16 * j
                mfma32(e, d, FS[3 * (q % 2) + j], XR + 4 * (2 * t.i + s), None if (t.i == 0 and s == 0) else d)
        reads(0); reads(1)
        do_issue(tk, 'start')
        mm(0); reads(2); mm(1); reads(3); mm(2); mm(3)
        do_issue(tk, 'end')

    def qfin(qb):
        st['wB'] = False
        e.salu(f"s_and_b32 s{S_T0}, s{S_W}, 1")
        e.salu(f"s_lshl_b32 s{S_T1}, s{S_T0}, 5")
        V(e, f"v_and_b32 v{t0}, 31, v0", [t0], [0])
        V(e, f"v_add_u32 v{t0}, s{S_T1}, v{t0}", [t0], [t0])
        V(e, f"v_bfe_u32 v{t1}, v{t0}, 1, 3", [t1], [t0])
        V(e, f"v_mul_u32_u24 v{t0}, 384, v{t0}", [t0], [t0])
        V(e, f"v_lshrrev_b32 v{t2}, 5, v0", [t2], [0])
        V(e, f"v_lshlrev_b32 v{t2}, 3, v{t2}", [t2], [t2])
        V(e, f"v_add_u32 v{t0}, v{t0}, v{t2}", [t0], [t0, t2])
        if qb:
            V(e, f"v_add_u32 v{t0}, {qb}, v{t0}", [t0], [t0])
        for j in range(3):
            for g in range(4):
                a = QACC + 16 * j + 4 * g
                cvtpk(e, a, a, a + 1)
                cvtpk(e, a + 1, a + 2, a + 3)
                e.salu(f"s_add_u32 s{S_T0}, s{S_DH12}, {4*j+g}")
                tt = t2 if g % 2 == 0 else t3
                V(e, f"v_xor_b32 v{tt}, s{S_T0}, v{t1}", [tt], [t1])
                V(e, f"v_lshl_add_u32 v{tt}, v{tt}, 4, v{t0}", [tt], [tt, t0])
                dsw64(e, tt, a, 0)

    dWO = [1, 2, 3, 88, 89]; woA = [6, 7, 8, 9]; ofA = [10, 11, 12, 13]
    OF = 32
    AS = [48, 52, 56, 60, 64, 68, 72, 76, 80, 84, 88, 92]
    OUT = XR
    def setup_out1():
        calc_dWO(e, dWO, 15, 90)
        dreg['WO'] = dWO
    def setup_out2():
        a0, a1, a2, a3 = 20, 21, 22, 23
        V(e, f"v_lshrrev_b32 v{a0}, 5, v0", [a0], [0])
        V(e, f"v_lshlrev_b32 v{a0}, 3, v{a0}", [a0], [a0])
        V(e, f"v_bfe_u32 v{a1}, v0, 2, 2", [a1], [0])
        V(e, f"v_add_u32 v{a0}, v{a0}, v{a1}", [a0], [a0, a1])
        V(e, f"v_mul_u32_u24 v{a0}, 1280, v{a0}", [a0], [a0])
        V(e, f"v_bfe_u32 v{a2}, v0, 1, 1", [a2], [0])
        V(e, f"v_lshlrev_b32 v{a2}, 3, v{a2}", [a2], [a2])
        V(e, f"v_add_u32 v{a0}, v{a0}, v{a2}", [a0], [a0, a2])
        V(e, f"v_bfe_u32 v{a2}, v0, 4, 1", [a2], [0])
        V(e, f"v_lshlrev_b32 v{a2}, 1, v{a2}", [a2], [a2])
        V(e, f"v_and_b32 v{a3}, 1, v0", [a3], [0])
        V(e, f"v_add_u32 v{a2}, v{a2}, v{a3}", [a2], [a2, a3])
        V(e, f"v_lshl_add_u32 v{a0}, v{a2}, 4, v{a0}", [a0], [a2, a0])
        e.salu(f"s_lshr_b32 s{S_T0}, s{S_W}, 1")
        e.salu(f"s_mul_i32 s{S_T0}, s{S_T0}, 10")
        for j in range(4):
            e.salu(f"s_add_u32 s{S_T1}, s{S_T0}, {j}")
            V(e, f"v_xor_b32 v{a2}, s{S_T1}, v{a1}", [a2], [a1])
            V(e, f"v_lshl_add_u32 v{woA[j]}, v{a2}, 6, v{a0}", [woA[j]], [a2, a0])
        e.salu(f"s_and_b32 s{S_T0}, s{S_W}, 1")
        e.salu(f"s_lshl_b32 s{S_T1}, s{S_T0}, 5")
        V(e, f"v_and_b32 v{a0}, 31, v0", [a0], [0])
        V(e, f"v_add_u32 v{a0}, s{S_T1}, v{a0}", [a0], [a0])
        V(e, f"v_bfe_u32 v{a1}, v{a0}, 1, 3", [a1], [a0])
        V(e, f"v_lshlrev_b32 v{a0}, 7, v{a0}", [a0], [a0])
        V(e, f"v_add_u32 v{a0}, {cfg.OB}, v{a0}", [a0], [a0])
        V(e, f"v_lshrrev_b32 v{a2}, 5, v0", [a2], [0])
        for ss in range(4):
            V(e, f"v_add_u32 v{a3}, {2*ss}, v{a2}", [a3], [a2])
            V(e, f"v_xor_b32 v{a3}, v{a3}, v{a1}", [a3], [a3, a1])
            V(e, f"v_lshl_add_u32 v{ofA[ss]}, v{a3}, 4, v{a0}", [ofA[ss]], [a3, a0])

    wost = {}
    def wo_reads(t, js, slots):
        if t.addr + 20480 <= 65536:
            regs, base = woA, t.addr
        else:
            key = t.addr
            if key not in wost:
                sets_ = [[16, 17, 18, 19], [20, 21, 22, 23], [24, 25, 26, 27], [28, 29, 30, 31]]
                idx = wost.get('n', 0)
                regs = sets_[idx % 4]
                for k2 in [k for k, v in wost.items() if k != 'n' and v is regs]:
                    del wost[k2]
                wost['n'] = idx + 1
                for j in range(4):
                    V(e, f"v_add_u32 v{regs[j]}, {t.addr}, v{woA[j]}", [regs[j]], [woA[j]])
                wost[key] = regs
            regs, base = wost[key], 0
        for j, sl in zip(js, slots):
            areg = regs[j % 4]
            for h in range(2):
                dsrtr(e, sl + 2 * h, areg, base + h * 4 * 1280 + (j // 4) * 256)

    def outproj(t, tk):
        first_ever = (t.hd == 0 and t.sl == 0 and t.a == 0)
        if t.a == 0:
            for ss in range(4):
                dsr128(e, OF + 4 * ss, ofA[ss], 0)
        wo_reads(t, list(range(10)), AS[:10])
        do_issue(tk, 'start')
        for j in range(10):
            d = OUT + 16 * j
            mfma32(e, d, AS[j], OF + 4 * t.a, None if first_ever else d)
        do_issue(tk, 'end')

    def outproj_final(ts, tk):
        sl_ = ts[0].sl
        for ss in range(4):
            dsr128(e, OF + 4 * ss, ofA[ss], 0)
        tl = sorted(ts, key=lambda t: t.a)
        sv = 14
        V(e, f"v_lshlrev_b32 v{sv}, 4, v0", [sv], [0])
        e.salu(f"s_mul_i32 s{S_T2}, s{S_W}, {20*1024}")
        sets = [AS[0:4], AS[4:8], AS[8:12]]
        def reads(j):
            for a in range(4):
                wo_reads(tl[a], [j], [sets[j % 3][a]])
        def store(j):
            d = OUT + 16 * j
            for o in range(2):
                b = d + 8 * o
                for i in range(4):
                    cvtpk(e, b + i, b + 2 * i, b + 2 * i + 1)
                e.salu(f"s_add_u32 s{S_T3}, s{S_T2}, {(2*j+o)*1024}")
                e.I(f"buffer_store_dwordx4 {vr(b,4)}, v{sv}, s[{SRD_P}:{SRD_P+3}], s{S_T3} offen", 'vstore', r=R(b, 4) + [sv])
        reads(0); reads(1)
        for j in range(10):
            if j + 2 < 10:
                reads(j + 2)
            d = OUT + 16 * j
            for a in range(4):
                mfma32(e, d, sets[j % 3][a], OF + 4 * a, d)
            if j >= 2:
                store(j - 2)
        store(8); store(9)

    for tk in range(0, S['nticks']):
        if tk > 0:
            e.comment(f"---- A tick {tk}")
            e.barrier()
            if tk in consA:
                qproj2(consA[tk], tk)
            elif tk == S['tQ0']:
                qfin(cfg.Q0B); do_issue(tk); setup_out1()
            elif tk == S['tQ1']:
                qfin(cfg.Q1B)
                do_issue(tk)
            elif tk == S['tQ1'] + 1:
                setup_out2()
                do_issue(tk)
                assert tk not in woc
            elif tk in woc:
                lst_ = woc[tk]
                if len(lst_) == 1:
                    outproj(lst_[0], tk)
                else:
                    do_issue(tk)
                    if cfg.prof:
                        e.raw("    v_lshlrev_b32 v14, 2, v0")
                        e.raw("    v_add_u32 v14, 65536, v14")
                        e.raw(f"    s_lshr_b32 s84, s{S_W1024}, 1")
                        e.raw("    v_add_u32 v14, s84, v14")
                        e.raw("    ds_write_b32 v14, v91 offset:0")
                        e.raw("    ds_write_b32 v14, v92 offset:256")
                        e.raw("    s_waitcnt lgkmcnt(0)")
                    outproj_final(lst_, tk)
                    if cfg.prof:
                        e.raw("    s_waitcnt lgkmcnt(0)")
                        e.lgkm = []
                        e.raw("    v_lshlrev_b32 v15, 2, v0")
                        e.raw("    v_add_u32 v15, 65536, v15")
                        e.raw(f"    s_lshr_b32 s84, s{S_W1024}, 1")
                        e.raw("    v_add_u32 v15, s84, v15")
                        e.raw("    s_waitcnt vmcnt(0)")
                        e.vm = []
                        e.raw("    ds_read_b32 v91, v15 offset:0")
                        e.raw("    ds_read_b32 v92, v15 offset:256")
                        e.raw("    s_waitcnt lgkmcnt(0)")
            else:
                do_issue(tk)
        if tk == 0: stamp(e, cfg, 3)
        if tk < S['nticks'] - 1: lstamp2(e, cfg, 0, 0, tk, S)
        for t in needA.get(tk + 1, []):
            e.wait_tile(t)
        if tk < S['nticks'] - 1: lstamp2(e, cfg, 0, 1, tk, S)
        if tk == 0: stamp(e, cfg, 4)
    if cfg.prof:
        e.raw("    s_memtime s[80:81]")
        e.raw("    s_waitcnt vmcnt(0)")
        e.raw("    s_memtime s[86:87]")
        e.raw("    s_memrealtime s[10:11]")
        e.raw("    s_getreg_b32 s12, hwreg(HW_REG_XCC_ID)")
        e.raw("    s_waitcnt lgkmcnt(0)")
        e.raw(f"    s_lshl_b32 s84, s{S_WG}, 3")
        e.raw(f"    s_add_u32 s84, s84, s{S_WAVE}")
        e.raw(f"    s_lshl_b32 s84, s84, 10")
        e.raw(f"    s_add_u32 s84, s84, {64<<20}")
        e.raw(f"    s_add_u32 s88, s{S_PTR+14}, s84")
        e.raw(f"    s_addc_u32 s89, s{S_PTR+15}, 0")
        e.raw(f"    s_and_b32 s89, s89, 0xffff")
        e.raw(f"    s_mov_b32 s90, 1024")
        e.raw(f"    s_mov_b32 s91, 0x20000")
        e.raw(f"    v_writelane_b32 v91, s82, 0")
        e.raw(f"    v_writelane_b32 v91, s80, 1")
        e.raw(f"    v_writelane_b32 v91, s86, 2")
        e.raw(f"    v_writelane_b32 v91, s8, 8")
        e.raw(f"    v_writelane_b32 v91, s10, 9")
        e.raw(f"    v_writelane_b32 v91, s12, 10")
        for n in range(5):
            e.raw(f"    v_writelane_b32 v91, s{STAMPS[n]}, {3+n}")
        e.raw(f"    v_lshlrev_b32 v28, 2, v0")
        e.raw(f"    buffer_store_dword v91, v28, s[88:91], 0 offen offset:256")
        e.raw(f"    buffer_store_dword v92, v28, s[88:91], 0 offen offset:512")
    e.raw("    s_endpgm")
    return e

def generate(cfg, fn):
    S = build_schedule(cfg)
    P = prologue(cfg); A = gen_A(cfg, S); B = gen_B(cfg, S)
    assert A.nbar == B.nbar, (A.nbar, B.nbar)
    L = []
    L.append(f"; @launch kernel={KN} grid=(256,1,1) block=(512,1,1) lds=163840")
    L.append(f"; @launch kernel={KN2} grid=(320,1,1) block=(256,1,1) lds=0")
    L.append('.amdgcn_target "amdgcn-amd-amdhsa--gfx950"')
    L.append(".text")
    L.append(f".globl {KN}")
    L.append(".p2align 8")
    L.append(f".type {KN},@function")
    L.append(f"{KN}:")
    L += P.lines + A.lines + B.lines
    L.append("L_exit:")
    L.append("    s_endpgm")
    L += gen_reduce()
    L.append('.section .rodata,"a"')
    L.append(".p2align 6")
    L += kd(KN, 256)
    L.append(".p2align 6")
    L += kd(KN2, 88)
    open(fn, "w").write("\n".join(L) + "\n")
    print("ticks", S['nticks'], "A instr", A.ninstr, A.stats, "B instr", B.ninstr, B.stats, file=sys.stderr)
    return S

if __name__ == "__main__":
    cfg = Cfg()
    cfg.prof_lds = 72 * 1024 if False else 79 * 1024
    cfg.prof_from = 12
    cfg.prof_t = {0: (14, 15), 1: (28, 29)}
    cfg.final_addr = [136 * 1024, 0, 20 * 1024, 40 * 1024]
    if "--prof" in sys.argv: cfg.prof = True
    for a in sys.argv[2:]:
        if "=" in a:
            k, v = a.split("=", 1)
            setattr(cfg, k, eval(v))
    S = generate(cfg, sys.argv[1] if len(sys.argv) > 1 else "k4.s")
    if "-v" in sys.argv:
        for t in S['allt']:
            print(t.name, hex(t.addr), "issue", t.issue, "by", t.by, "consume", t.consume)
```

```python
class Em:
    def __init__(self, name=""):
        self.name = name
        self.lines = []
        self.hist = []
        self.lgkm = []
        self.vm = []
        self.nbar = 0
        self.stats = {}
        self.ninstr = 0

    def raw(self, text):
        self.lines.append(text)

    def comment(self, text):
        self.lines.append("    ; " + text)

    def label(self, name):
        self.lines.append(name + ":")

    def _push(self, kind, w, r, states=1):
        self.hist.append((kind, frozenset(w), frozenset(r), states))
        if len(self.hist) > 40:
            self.hist.pop(0)

    def nop(self, n):
        while n > 0:
            k = min(n, 16)
            self.lines.append(f"    s_nop {k-1}")
            self._push('nop', (), (), k)
            self.ninstr += 1
            n -= k

    def _need(self, kind, w, r, srcc=()):
        need = 0
        dist = 0
        W = set(w); R = set(r)
        for (k, hw, hr, st) in reversed(self.hist):
            req = 0
            hsrcc = set()
            if k.startswith('mfma'):
                hsrcc = set(x[1] for x in hr if isinstance(x, tuple) and x[0] == 'C')
            if k in ('valu', 'trans', 'permlane', 'readlane_v'):
                if kind.startswith('mfma') and (hw & (R | set(srcc))):
                    req = max(req, 2)
                if kind == 'permlane' and (hw & (R | W)):
                    req = max(req, 2)
                if kind == 'dpp' and (hw & R):
                    req = max(req, 2)
                if kind == 'readlane' and (hw & R):
                    req = max(req, 1)
                sw = set(x for x in hw if isinstance(x, str))
                if sw:
                    if kind in ('vload', 'vstore', 'dma') and (sw & R):
                        req = max(req, 5)
                    if kind in ('valu', 'trans', 'permlane', 'dpp') and (sw & R):
                        req = max(req, 2)
                    if kind in ('readlane',) and (sw & R):
                        req = max(req, 4)
                    if kind in ('salu',) and (sw & R):
                        req = max(req, 4)
            if k == 'readlane':
                sw = set(x for x in hw if isinstance(x, str))
                if kind in ('vload', 'vstore', 'dma') and (sw & R):
                    req = max(req, 5)
                if kind in ('valu', 'trans', 'permlane', 'dpp') and (sw & R):
                    req = max(req, 2)
                if kind in ('salu',) and (sw & R):
                    req = max(req, 4)
            if k == 'trans':
                if kind in ('valu', 'permlane', 'dpp', 'ds_write', 'vstore', 'readlane') and (hw & R):
                    req = max(req, 1)
                if kind.startswith('mfma') and (hw & (R | set(srcc))):
                    req = max(req, 2)
            if k.startswith('mfma'):
                p = 4 if k == 'mfma4' else 8
                nraw = 8 if p == 4 else 12
                novl = 6 if p == 4 else 10
                nwar = 3 if p == 4 else 7
                if kind.startswith('mfma'):
                    if hw & R:
                        req = max(req, nraw)
                    sc = set(srcc)
                    if hw & sc:
                        if not (hw == sc and k == kind):
                            req = max(req, novl)
                    if (hw & W) and not (hw == W and k == kind and hw == sc):
                        req = max(req, novl)
                else:
                    if hw & (R | W):
                        req = max(req, nraw)
                    if kind in ('valu', 'trans', 'permlane', 'dpp', 'ds_read', 'vload') and (hsrcc & W):
                        req = max(req, nwar)
            if k == 'salu' and 'm0' in hw and kind == 'dma':
                req = max(req, 1)
            if k == 'vstore' and kind in ('valu', 'trans', 'permlane', 'dpp') and (set(hr) & W):
                req = max(req, 2)
            if k == 'vstore' and kind in ('ds_read', 'vload') and (set(hr) & W):
                req = max(req, 1)
            if req > dist:
                need = max(need, req - dist)
            dist += st
            if dist >= 24:
                break
        return need

    def _memdeps(self, regs):
        regs = set(regs)
        idx = -1
        for i, d in enumerate(self.lgkm):
            if d & regs:
                idx = i
        if idx >= 0:
            n = len(self.lgkm) - 1 - idx
            n = min(n, 15)
            self.wait(lgkm=n)
        idx = -1
        for i, d in enumerate(self.vm):
            if isinstance(d, tuple) and d[0] == 'v' and (d[1] & regs):
                idx = i
        if idx >= 0:
            n = len(self.vm) - 1 - idx
            self.wait(vm=min(n, 63))

    def wait(self, vm=None, lgkm=None):
        parts = []
        if vm is not None:
            if len(self.vm) > vm:
                parts.append(f"vmcnt({vm})")
                self.vm = self.vm[len(self.vm) - vm:] if vm > 0 else []
        if lgkm is not None:
            if len(self.lgkm) > lgkm:
                parts.append(f"lgkmcnt({lgkm})")
                self.lgkm = self.lgkm[len(self.lgkm) - lgkm:] if lgkm > 0 else []
        if parts:
            self.lines.append("    s_waitcnt " + " ".join(parts))
            self._push('wait', (), ())
            self.ninstr += 1

    def I(self, text, kind, w=(), r=(), srcc=(), tag=None):
        if kind in getattr(self, 'skip', ()):
            return
        if kind == 'dma' and getattr(self, 'skiptile', None) and getattr(tag, 'kind', None) in self.skiptile:
            return
        w = list(w); r = list(r); srcc = list(srcc)
        vregs = [x for x in (w + r + srcc) if isinstance(x, int)]
        self._memdeps(vregs)
        if kind in ('ds_read', 'ds_write') and len(self.lgkm) >= 15:
            self.wait(lgkm=14)
        n = self._need(kind, w, r, srcc)
        if n:
            self.nop(n)
            self.stats['nop'] = self.stats.get('nop', 0) + n
        self.lines.append("    " + text)
        self.ninstr += 1
        self.stats[kind] = self.stats.get(kind, 0) + 1
        if kind.startswith('mfma'):
            self._push(kind, w, [x for x in r] + [('C', c) for c in srcc])
        else:
            self._push(kind, w, r)
        if kind == 'ds_read':
            self.lgkm.append(set(x for x in w if isinstance(x, int)))
        elif kind == 'ds_write':
            self.lgkm.append(set())
        elif kind == 'dma':
            self.vm.append(tag)
        elif kind == 'vload':
            self.vm.append(('v', set(x for x in w if isinstance(x, int))))
        elif kind == 'vstore':
            self.vm.append(('st', tag))
        assert len(self.vm) <= 63, "vmcnt overflow"

    def salu(self, text, w=(), r=()):
        self.I(text, 'salu', w, r)

    def valu(self, text, w=(), r=()):
        self.I(text, 'valu', w, r)

    def wait_tile(self, tile):
        idx = -1
        for i, d in enumerate(self.vm):
            if d == tile:
                idx = i
        if idx >= 0:
            self.wait(vm=len(self.vm) - 1 - idx)

    def barrier(self):
        self.wait(lgkm=0)
        self.lines.append("    s_barrier")
        self._push('barrier', (), ())
        self.nbar += 1
        self.ninstr += 1

def vr(a, n=1):
    return f"v{a}" if n == 1 else f"v[{a}:{a+n-1}]"
def sr(a, n=1):
    return f"s{a}" if n == 1 else f"s[{a}:{a+n-1}]"
def R(a, n):
    return list(range(a, a + n))
```

```python
import sys, struct
from emit import Em, vr, sr, R
import gen as G
from gen import (Tile, V, calc_dK, calc_dWQ, calc_dX, calc_dV, calc_dWO, mfma16, mfma32, dsr128, dsrtr, dsw64, cvtpk, f32, kd,
                 gen_reduce, KN, KN2, QO, stamp, lstamp, STAMPS, PROF_LDS, dma_tile,
                 S_WG, S_WAVE, S_W, S_B, S_HP, S_ROT, S_PTR, SRD_K, SRD_V, SRD_WQ, SRD_X, SRD_WO, SRD_P,
                 S_W3072, S_W1024, S_W2048, S_W5120, S_WQCOL, S_C, S_T0, S_T1, S_T2, S_T3, S_KT, S_W6144, S_DH12, S_W64)

class Cfg:
    nt_kv = True
    prof = False
    rot = True
    touch = True
    w0_slots = 6
    xbase = 80 * 1024
    x_issue = [0, 0, 0, 1, 1, 1, 1, 2, 2, 2]
    w0_issue = None
    kpre = 6
    W1 = 0
    WSZ = 81920
    OB = 80 * 1024
    Q0B = 0
    Q1B = 56 * 1024
    HB = 88 * 1024
    HSZ = 72 * 1024
    touch_wq1 = 3
    touch_wo_lead = 5
    early_lead = 1
    skipA = ()
    skipB = ()
    skiptile = ()
    k_lead = [[9, 9], [9, 9]]
    v_lead = [9, 9]
    inred = False
    st_flags = ''
    spin_max = 200000
    b_pos = 0
    fineB = 21
    fineA = 15
    final_addr = None

def build_schedule(cfg):
    T0 = 1
    HB, HSZ, W1 = cfg.HB, cfg.HSZ, cfg.W1
    X = []
    for j in range(10):
        t = Tile('x', f"x_{j}", cfg.xbase + j * 8192, 8192, j=j)
        t.consume = [T0 + j]; t.by = 'A'; t.earliest = cfg.x_issue[j]
        X.append(t)
    W0 = []
    for i in range(20):
        t = Tile('w0', f"w0_{i}", (i % cfg.w0_slots) * 12288, 12288, hd=0, i=i)
        t.consume = [T0 + i // 2]; t.by = 'B'
        t.earliest = 0 if i < 2 else 1
        W0.append(t)
    tQ0 = T0 + 10
    tK0 = tQ0 + 1
    H = []
    pos = 0
    tk = tK0
    info = {}
    for hd in range(2):
        info[('k', hd)] = tk
        for j in range(16):
            assert pos + 12288 <= HSZ
            t = Tile('k', f"k{hd}_{j}", HB + pos, 12288, hd=hd, j=j)
            pos = (pos + 12288) % HSZ
            t.consume = [tk + j // 2]; t.by = 'B'; t.earliest = max(0, t.consume[0] - cfg.k_lead[hd][j % 2])
            H.append(t)
        tk += 8
        info[('v', hd)] = tk
        for sl in range(3):
            for j in range(8):
                assert pos + 8192 <= HSZ
                t = Tile('v', f"v{hd}_{sl}_{j}", HB + pos, 8192, hd=hd, sl=sl, j=j)
                pos = (pos + 8192) % HSZ
                t.consume = [tk + j // 2]; t.by = 'B'; t.earliest = max(0, t.consume[0] - cfg.v_lead[j % 2])
                H.append(t)
            tk += 4
    for n, t in enumerate(H[:cfg.kpre]):
        t.by = 'A'; t.earliest = 0
    tEnd = tk
    W1t = []
    tq1 = tK0
    nq1 = cfg.WSZ // 12288
    for i in range(20):
        t = Tile('wq1', f"wq1_{i}", W1 + ((i + 2) % nq1) * 12288, 12288, hd=1, i=i)
        t.consume = [tq1 + i // 2]; t.by = 'A'; t.earliest = 0
        W1t.append(t)
    tQ1 = tq1 + 10
    v0 = info[('v', 0)]
    assert tQ1 < v0 + 3, (tQ1, v0)
    WO = []
    slot = 0
    nwo = cfg.WSZ // 20480
    for hd in range(2):
        vstart = info[('v', hd)]
        for sl in range(3):
            tO = vstart + 4 * sl + 3
            for a in range(4):
                final = (hd == 1 and sl == 2)
                t = Tile('wo', f"wo{hd}_{sl}_{a}", None, 20480, hd=hd, sl=sl, a=a)
                if final:
                    t.addr = cfg.final_addr[a]
                    t.consume = [tO + 1]
                else:
                    t.addr = W1 + (slot % nwo) * 20480
                    slot += 1
                    t.consume = [tO + 1 + a]
                t.by = 'A'
                t.earliest = tQ0 + 1
                WO.append(t)
    nticks = tEnd + 1
    free_at = [0] * 160
    PQ = []
    q0 = Tile('q', 'Q0', cfg.Q0B, 24576); q0.fixed = tQ0; q0.consume = [tQ0 + 1]; q0.by = None; PQ.append(q0)
    q1 = Tile('q', 'Q1', cfg.Q1B, 24576); q1.fixed = tQ1; q1.consume = [v0 + 3]; q1.by = None; PQ.append(q1)
    ob = Tile('q', 'OB', cfg.OB, 8192); ob.fixed = v0 + 3; ob.consume = [tEnd]; ob.by = None; PQ.append(ob)
    streams = [X, W0, H, W1t, WO, PQ]
    def okey(t):
        first = t.fixed if t.kind == 'q' else t.consume[0]
        return (first, t.kind, getattr(t, 'i', 0), getattr(t, 'sl', 0), getattr(t, 'j', 0), getattr(t, 'a', 0))
    allt = sorted([t for s_ in streams for t in s_], key=okey)
    last_issue = {}
    for t in allt:
        lo = t.addr // 1024; hi = (t.addr + t.size) // 1024
        e = max(free_at[lo:hi])
        if t.kind == 'q':
            assert e <= t.fixed, (t, e, t.fixed)
            t.issue = t.fixed
        else:
            key = t.kind if t.kind in ('x', 'w0', 'wq1', 'wo') else 'h'
            e = max(e, last_issue.get(key, 0), t.earliest)
            t.issue = e
            last_issue[key] = e
            assert t.issue < t.consume[0], (t, t.issue, t.consume)
        for k in range(lo, hi):
            free_at[k] = t.consume[-1] + 1
    for a in allt:
        for b in allt:
            if a is b: continue
            if a.addr < b.addr + b.size and b.addr < a.addr + a.size:
                assert a.consume[-1] < b.issue or b.consume[-1] < a.issue, ("overlap", a, a.issue, a.consume, b, b.issue, b.consume)
    allt = [t for t in allt if t.kind != 'q']
    return dict(nticks=nticks, X=X, W0=W0, H=H, W1t=W1t, WO=WO, tQ0=tQ0, tQ1=tQ1, info=info, tEnd=tEnd, allt=allt)

def srd(e, d, p, offs, size):
    if offs is None:
        e.salu(f"s_mov_b32 s{d}, s{p}")
        e.salu(f"s_and_b32 s{d+1}, s{p+1}, 0xffff")
    else:
        e.salu(f"s_add_u32 s{d}, s{p}, s{offs}")
        e.salu(f"s_addc_u32 s{d+1}, s{p+1}, 0")
        e.salu(f"s_and_b32 s{d+1}, s{d+1}, 0xffff")
    e.salu(f"s_mov_b32 s{d+2}, {size}")
    e.salu(f"s_mov_b32 s{d+3}, 0x20000")

S_OKV = 56; S_OP = 57; S_OX = 58; S_OWO = 59
def build_srds(e, cfg, first):
    e.raw("    s_waitcnt lgkmcnt(0)")
    stamp(e, cfg, 0)
    lst = {
        'WQ': lambda: srd(e, SRD_WQ, S_PTR + 6, None, 640 * 12288),
        'X': lambda: srd(e, SRD_X, S_PTR + 0, S_OX, 81920),
        'K': lambda: srd(e, SRD_K, S_PTR + 2, S_OKV, 393216),
        'V': lambda: srd(e, SRD_V, S_PTR + 4, S_OKV, 393216),
        'WO': lambda: srd(e, SRD_WO, S_PTR + 8, S_OWO, 2 * 192 * 1280),
        'P': lambda: srd(e, SRD_P, S_PTR + 14, S_OP, 81920),
    }
    lst[first]()
    return [k for k in lst if k != first], lst

def prologue(cfg):
    e = Em('P')
    e.salu(f"s_cmp_ge_u32 s{S_WG}, 256")
    e.raw("    s_cbranch_scc1 L_exit")
    e.raw(f"    s_load_dwordx16 s[{S_PTR}:{S_PTR+15}], s[0:1], 0")
    if cfg.prof:
        e.raw("    s_memtime s[82:83]")
        e.raw("    s_memrealtime s[8:9]")
    e.valu("v_lshrrev_b32 v1, 6, v0", w=[1], r=[0])
    e.I(f"v_readfirstlane_b32 s{S_WAVE}, v1", 'readlane', w=[f's{S_WAVE}'], r=[1])
    e.valu("v_and_b32 v0, 63, v0", w=[0], r=[0])
    e.salu(f"s_and_b32 s{S_T0}, s{S_WG}, 7")
    e.salu(f"s_lshr_b32 s{S_T1}, s{S_WG}, 3")
    e.salu(f"s_lshr_b32 s{S_T2}, s{S_T1}, 4")
    e.salu(f"s_lshl_b32 s{S_HP}, s{S_T0}, 1")
    e.salu(f"s_add_u32 s{S_HP}, s{S_HP}, s{S_T2}")
    e.salu(f"s_and_b32 s{S_B}, s{S_T1}, 15")
    e.I(f"s_and_b32 s{S_W}, s{S_WAVE}, 3", 'salu', r=[f's{S_WAVE}'])
    e.salu(f"s_mul_i32 s{S_ROT}, s{S_B}, 5")
    e.salu(f"s_lshr_b32 s{S_ROT}, s{S_ROT}, 3")
    e.salu(f"s_lshl_b32 s{S_ROT}, s{S_ROT}, 1")
    e.salu(f"s_mul_i32 s{S_W3072}, s{S_W}, 3072")
    e.salu(f"s_lshl_b32 s{S_W1024}, s{S_W}, 10")
    e.salu(f"s_lshl_b32 s{S_W2048}, s{S_W}, 11")
    e.salu(f"s_mul_i32 s{S_W5120}, s{S_W}, 5120")
    e.salu(f"s_mul_i32 s{S_W6144}, s{S_W}, 6144")
    e.salu(f"s_lshl_b32 s{S_W64}, s{S_W}, 6")
    e.salu(f"s_mul_i32 s{S_WQCOL}, s{S_HP}, 768")
    e.salu(f"s_lshr_b32 s{S_DH12}, s{S_W}, 1")
    e.salu(f"s_mul_i32 s{S_DH12}, s{S_DH12}, 12")
    e.salu(f"s_mov_b32 s{S_C}, {f32((192 ** -0.5) * 1.4426950408889634):#x}")
    e.salu(f"s_lshl_b32 s{S_T0}, s{S_B}, 4")
    e.salu(f"s_add_u32 s{S_T0}, s{S_T0}, s{S_HP}")
    e.salu(f"s_mul_i32 s{S_OKV}, s{S_T0}, 393216")
    e.salu(f"s_mul_i32 s{S_OP}, s{S_T0}, 81920")
    e.salu(f"s_mul_i32 s{S_OX}, s{S_B}, 81920")
    e.salu(f"s_mul_i32 s{S_OWO}, s{S_HP}, {2*192*1280}")
    e.salu(f"s_cmp_ge_u32 s{S_WAVE}, 4")
    e.raw("    s_cbranch_scc1 L_B")
    return e

def plan(S, who):
    issue = {}; need = {}
    for t in S['allt']:
        if t.by == who:
            issue.setdefault(t.issue, []).append(t)
            need.setdefault(t.consume[0], []).append(t)
    return issue, need

class Fine:
    def __init__(s, e, cfg, reg, tick):
        s.e, s.cfg, s.reg, s.tick, s.n, s.cur = e, cfg, reg, tick, 0, -1
    def __call__(s, label=""):
        if s.cfg.prof and s.cur == s.tick and s.n < 12:
            s.e.raw("    s_memtime s[96:97]")
            s.e.raw("    s_waitcnt lgkmcnt(0)")
            s.e.lgkm = []
            s.e.raw(f"    v_writelane_b32 v{s.reg}, s96, {s.n}")
            print("fine", s.reg, s.n, label, file=sys.stderr)
            s.n += 1

def gen_B(cfg, S):
    e = Em('B')
    e.skip = cfg.skipB; e.skiptile = cfg.skiptile
    dreg = dict(K=[1, 2, 3], WQ=[4, 5, 6], V=[8, 9])
    kA = [10, 11]; vA = [12, 13, 14, 15]; oA = [16, 17, 18, 19]; TT = [20, 21, 22, 23]; TU = [7, 26 + 0, 30, 31]
    vm, vmc, vinvl, t0, t1, t2 = 24, 25, 26, 27, 28, 29
    ONES = 32; LACC = 36; OACC = 40; QF = 56; FR = 80; SB = 128
    qt = [27, 28]
    fine = Fine(e, cfg, 29, cfg.fineB)
    e.label("L_B")
    calc_dWQ(e, dreg['WQ'], t0, t1, t2)
    rest, lst = build_srds(e, cfg, 'WQ')
    issue, needB = plan(S, 'B')
    cons = {}
    for t in S['H']:
        cons.setdefault(t.consume[0], []).append(t)
    def do_issue(tk):
        for t in issue.get(tk, []):
            dma_tile(e, t, cfg, dreg)
    stamp(e, cfg, 1)
    do_issue(0)
    stamp(e, cfg, 2)
    for k in rest: lst[k]()
    calc_dK(e, dreg['K'], t0, t1)
    calc_dV(e, dreg['V'], t0, t1)
    V(e, f"v_and_b32 v{t0}, 15, v0", [t0], [0])
    V(e, f"v_lshrrev_b32 v{t1}, 1, v{t0}", [t1], [t0])
    V(e, f"v_lshrrev_b32 v{t2}, 4, v0", [t2], [0])
    V(e, f"v_xor_b32 v{t2}, v{t2}, v{t1}", [t2], [t1, t2])
    V(e, f"v_lshlrev_b32 v{t2}, 4, v{t2}", [t2], [t2])
    V(e, f"v_mul_u32_u24 v{kA[0]}, 384, v{t0}", [kA[0]], [t0])
    V(e, f"v_add_u32 v{kA[0]}, v{kA[0]}, v{t2}", [kA[0]], [kA[0], t2])
    V(e, f"v_xor_b32 v{t2}, 64, v{t2}", [t2], [t2])
    V(e, f"v_mul_u32_u24 v{kA[1]}, 384, v{t0}", [kA[1]], [t0])
    V(e, f"v_add_u32 v{kA[1]}, v{kA[1]}, v{t2}", [kA[1]], [kA[1], t2])
    V(e, f"v_lshlrev_b32 v{t2}, 7, v{t0}", [t2], [t0])
    V(e, f"v_add_u32 v{t2}, s{S_W2048}, v{t2}", [t2], [t2])
    V(e, f"v_add_u32 v{t2}, {cfg.OB}, v{t2}", [t2], [t2])
    V(e, f"v_lshrrev_b32 v{vm}, 4, v0", [vm], [0])
    V(e, f"v_and_b32 v{vmc}, 1, v{vm}", [vmc], [vm])
    V(e, f"v_lshlrev_b32 v{vmc}, 3, v{vmc}", [vmc], [vmc])
    V(e, f"v_add_u32 v{t2}, v{t2}, v{vmc}", [t2], [t2, vmc])
    V(e, f"v_lshrrev_b32 v{vm}, 1, v{vm}", [vm], [vm])
    for dt in range(4):
        V(e, f"v_add_u32 v{vmc}, {2*dt}, v{vm}", [vmc], [vm])
        V(e, f"v_xor_b32 v{vmc}, v{vmc}, v{t1}", [vmc], [vmc, t1])
        V(e, f"v_lshlrev_b32 v{vmc}, 4, v{vmc}", [vmc], [vmc])
        V(e, f"v_add_u32 v{oA[dt]}, v{t2}, v{vmc}", [oA[dt]], [t2, vmc])
    V(e, f"v_lshrrev_b32 v{t0}, 2, v0", [t0], [0])
    V(e, f"v_and_b32 v{t1}, 6, v{t0}", [t1], [t0])
    V(e, f"v_lshlrev_b32 v{t0}, 7, v{t0}", [t0], [t0])
    V(e, f"v_and_b32 v{t2}, 3, v0", [t2], [0])
    V(e, f"v_lshlrev_b32 v{t2}, 3, v{t2}", [t2], [t2])
    V(e, f"v_add_u32 v{t0}, v{t0}, v{t2}", [t0], [t0, t2])
    for dt in range(4):
        V(e, f"v_xor_b32 v{t2}, {2*dt}, v{t1}", [t2], [t1])
        V(e, f"v_lshlrev_b32 v{t2}, 4, v{t2}", [t2], [t2])
        V(e, f"v_add_u32 v{vA[dt]}, v{t0}, v{t2}", [vA[dt]], [t0, t2])
    for i in range(4):
        V(e, f"v_mov_b32 v{ONES+i}, 0x3f803f80", [ONES + i])

    def load_qfrags(qb):
        V(e, f"v_add_u32 v{qt[0]}, s{S_W6144}, v{kA[0]}", [qt[0]], [kA[0]])
        V(e, f"v_add_u32 v{qt[1]}, s{S_W6144}, v{kA[1]}", [qt[1]], [kA[1]])
        if qb:
            V(e, f"v_add_u32 v{qt[0]}, {qb}, v{qt[0]}", [qt[0]], [qt[0]])
            V(e, f"v_add_u32 v{qt[1]}, {qb}, v{qt[1]}", [qt[1]], [qt[1]])
        for s in range(6):
            dsr128(e, QF + 4 * s, qt[s % 2], (s // 2) * 128)

    def maxtile(jt):
        b = SB + 8 * jt
        if jt == 0:
            e.valu(f"v_max3_f32 v{vm}, v{b}, v{b+1}, v{b+2}", w=[vm], r=[b, b + 1, b + 2])
            e.valu(f"v_max3_f32 v{vm}, v{vm}, v{b+3}, v{b+4}", w=[vm], r=[vm, b + 3, b + 4])
            e.valu(f"v_max3_f32 v{vm}, v{vm}, v{b+5}, v{b+6}", w=[vm], r=[vm, b + 5, b + 6])
            e.valu(f"v_max_f32 v{vm}, v{vm}, v{b+7}", w=[vm], r=[vm, b + 7])
        else:
            for i in range(4):
                e.valu(f"v_max3_f32 v{vm}, v{vm}, v{b+2*i}, v{b+2*i+1}", w=[vm], r=[vm, b + 2 * i, b + 2 * i + 1])

    def qk2(ta, tb, tk):
        if ta.j == 0 and ta.hd == 0:
            load_qfrags(cfg.Q0B)
        for n, t in enumerate((ta, tb)):
            V(e, f"v_add_u32 v{TT[2*n]}, {t.addr}, v{kA[0]}", [TT[2*n]], [kA[0]])
            V(e, f"v_add_u32 v{TT[2*n+1]}, {t.addr}, v{kA[1]}", [TT[2*n+1]], [kA[1]])
        def reads(n, tp):
            for s in range(6):
                dsr128(e, FR + 4 * (6 * tp + s), TT[2 * n + s % 2], tp * 6144 + (s // 2) * 128)
        def mm(t, tp):
            d = SB + 4 * (2 * t.j + tp)
            for s in range(6):
                mfma16(e, d, FR + 4 * (6 * tp + s), QF + 4 * s, None if s == 0 else d)
        fine("start")
        reads(0, 0); reads(0, 1)
        if cfg.b_pos == 0: do_issue(tk)
        if ta.j > 0:
            maxtile(ta.j - 2); maxtile(ta.j - 1)
        mm(ta, 0); reads(1, 0)
        if cfg.b_pos == 1: do_issue(tk)
        mm(ta, 1); reads(1, 1)
        if cfg.b_pos == 2: do_issue(tk)
        mm(tb, 0); mm(tb, 1)
        if cfg.b_pos == 3: do_issue(tk)
        fine("mm b")

    def softmax_fin():
        maxtile(14); maxtile(15)
        V(e, f"v_mov_b32 v{t0}, v{vm}", [t0], [vm])
        e.I(f"v_permlane32_swap_b32 v{t0}, v{vm}", 'permlane', w=[t0, vm], r=[t0, vm])
        V(e, f"v_max_f32 v{vm}, v{vm}, v{t0}", [vm], [vm, t0])
        V(e, f"v_mov_b32 v{t0}, v{vm}", [t0], [vm])
        e.I(f"v_permlane16_swap_b32 v{t0}, v{vm}", 'permlane', w=[t0, vm], r=[t0, vm])
        V(e, f"v_max_f32 v{vm}, v{vm}, v{t0}", [vm], [vm, t0])
        V(e, f"v_mul_f32 v{vmc}, s{S_C}, v{vm}", [vmc], [vm])

    def expstep(sp):
        b = SB + 8 * sp
        for i in range(8):
            e.valu(f"v_fma_f32 v{b+i}, v{b+i}, s{S_C}, -v{vmc}", w=[b + i], r=[b + i, vmc])
        for i in range(8):
            e.I(f"v_exp_f32 v{b+i}, v{b+i}", 'trans', w=[b + i], r=[b + i])
        for i in range(4):
            cvtpk(e, b + i, b + 2 * i, b + 2 * i + 1)

    def pv2(ta, tb, tk):
        sl = ta.sl
        last = (tb.j == 7)
        if sl == 0 and last and ta.hd == 0:
            load_qfrags(cfg.Q1B)
        AR = [TT, [4, 5, 6, 7]]
        for n, t in enumerate((ta, tb)):
            for dt in range(4):
                V(e, f"v_add_u32 v{AR[n][dt]}, {t.addr}, v{vA[dt]}", [AR[n][dt]], [vA[dt]])
        def reads(q):
            n, ks = q // 2, q % 2
            for dt in range(4):
                for h in range(2):
                    dsrtr(e, FR + 16 * (q % 3) + 4 * dt + 2 * h, AR[n][dt], ks * 4096 + h * 2048)
        def mm(q):
            sp = 2 * ta.j + q
            P = SB + 8 * sp
            first = (ta.j == 0 and q == 0)
            for dt in range(4):
                mfma16(e, OACC + 4 * dt, FR + 16 * (q % 3) + 4 * dt, P, None if first else OACC + 4 * dt)
            if sl == 0:
                mfma16(e, LACC, ONES, P, None if first else LACC)
        fine("start")
        reads(0); reads(1); reads(2)
        if cfg.b_pos == 0: do_issue(tk)
        if sl == 0 and ta.j == 0:
            softmax_fin_deferred()
        for q in range(4):
            if sl == 0:
                expstep(2 * ta.j + q)
            mm(q)
            if q == 0:
                reads(3)
            if cfg.b_pos == q + 1 or (cfg.b_pos == 3 and q == 3 and False): do_issue(tk)
        if last:
            if sl == 0:
                e.I(f"v_rcp_f32 v{vinvl}, v{LACC}", 'trans', w=[vinvl], r=[LACC])
            for dt in range(4):
                o = OACC + 4 * dt
                for i in range(4):
                    V(e, f"v_mul_f32 v{o+i}, v{o+i}, v{vinvl}", [o + i], [o + i, vinvl])
                cvtpk(e, o, o, o + 1)
                cvtpk(e, o + 1, o + 2, o + 3)
                dsw64(e, oA[dt], o, 0)

    def softmax_fin_deferred():
        maxtile(14); maxtile(15)
        u = 27
        V(e, f"v_mov_b32 v{u}, v{vm}", [u], [vm])
        e.I(f"v_permlane32_swap_b32 v{u}, v{vm}", 'permlane', w=[u, vm], r=[u, vm])
        V(e, f"v_max_f32 v{vm}, v{vm}, v{u}", [vm], [vm, u])
        V(e, f"v_mov_b32 v{u}, v{vm}", [u], [vm])
        e.I(f"v_permlane16_swap_b32 v{u}, v{vm}", 'permlane', w=[u, vm], r=[u, vm])
        V(e, f"v_max_f32 v{vm}, v{vm}, v{u}", [vm], [vm, u])
        V(e, f"v_mul_f32 v{vmc}, s{S_C}, v{vm}", [vmc], [vm])

    for tk in range(0, S['nticks']):
        if tk > 0:
            e.comment(f"---- B tick {tk}")
            if cfg.prof:
                e.raw("    s_memtime s[80:81]")
                e.raw("    s_waitcnt lgkmcnt(0)")
                e.lgkm = []
            e.barrier()
            if cfg.prof:
                e.raw(f"    v_writelane_b32 v31, s80, {tk}")
            ts = cons.get(tk)
            fine.cur = tk
            if ts is None:
                do_issue(tk)
            elif ts[0].kind == 'k':
                qk2(ts[0], ts[1], tk)
            else:
                pv2(ts[0], ts[1], tk)
        if tk == 0: stamp(e, cfg, 3)
        lstamp2(e, cfg, 1, 0, tk, S)
        for t in needB.get(tk + 1, []):
            e.wait_tile(t)
        lstamp2(e, cfg, 1, 1, tk, S)
        if tk == 0: stamp(e, cfg, 4)
    if cfg.prof:
        e.raw("    s_memtime s[80:81]")
        e.raw("    s_waitcnt lgkmcnt(0)")
        e.raw(f"    v_writelane_b32 v31, s80, 63")
        e.raw(f"    v_writelane_b32 v31, s82, 0")
        for n in range(5):
            e.raw(f"    v_writelane_b32 v31, s{STAMPS[n]}, {56+n}")
        e.raw(f"    s_lshl_b32 s84, s{S_WG}, 3")
        e.raw(f"    s_add_u32 s84, s84, s{S_WAVE}")
        e.raw(f"    s_lshl_b32 s84, s84, 10")
        e.raw(f"    s_add_u32 s84, s84, {64<<20}")
        e.raw(f"    s_add_u32 s88, s{S_PTR+14}, s84")
        e.raw(f"    s_addc_u32 s89, s{S_PTR+15}, 0")
        e.raw(f"    s_and_b32 s89, s89, 0xffff")
        e.raw(f"    s_mov_b32 s90, 1024")
        e.raw(f"    s_mov_b32 s91, 0x20000")
        e.raw(f"    v_lshlrev_b32 v28, 2, v0")
        e.raw(f"    buffer_store_dword v31, v28, s[88:91], 0 offen")
        e.raw(f"    buffer_store_dword v29, v28, s[88:91], 0 offen offset:256")
        e.raw(f"    buffer_store_dword v30, v28, s[88:91], 0 offen offset:512")
    if cfg.inred:
        e.raw("    s_barrier")
        e.raw(f"    s_cmp_eq_u32 s{S_W}, 0")
        e.raw("    s_cbranch_scc0 L_Bwait")
        e.raw(f"    s_lshl_b32 s56, s{S_B}, 4")
        e.raw(f"    s_add_u32 s58, s{S_PTR+12}, s56")
        e.raw(f"    s_addc_u32 s59, s{S_PTR+13}, 0")
        e.raw("    v_mov_b32 v2, 0")
        e.raw("    v_mov_b32 v3, 1")
        e.raw("    s_mov_b64 s[60:61], exec")
        e.raw("    s_mov_b64 exec, 1")
        e.raw("    global_atomic_add v2, v3, s[58:59]")
        e.raw("    s_mov_b32 s62, 0")
        e.raw("L_poll:")
        e.raw("    global_load_dword v4, v2, s[58:59] sc1")
        e.raw("    s_waitcnt vmcnt(0)")
        e.raw("    v_readfirstlane_b32 s63, v4")
        e.raw("    s_add_u32 s62, s62, 1")
        e.raw("    s_nop 2")
        e.raw("    s_cmp_ge_u32 s63, 16")
        e.raw("    s_cbranch_scc1 L_polldone")
        e.raw(f"    s_cmp_ge_u32 s62, {cfg.spin_max}")
        e.raw("    s_cbranch_scc1 L_polldone")
        e.raw("    s_sleep 1")
        e.raw("    s_branch L_poll")
        e.raw("L_polldone:")
        e.raw("    s_mov_b64 exec, s[60:61]")
        e.raw("L_Bwait:")
        e.raw("    s_barrier")
        e.raw(f"    s_mov_b32 s56, s{S_W}")
        e.raw("    s_branch L_RED")
        e.nbar += 2
    else:
        e.raw("    s_endpgm")
    return e

def lstamp2(e, cfg, grp, kind, tk, S):
    if not cfg.prof or tk > 62 or tk < cfg.prof_from: return
    e.raw("    s_memtime s[96:97]")
    e.raw("    s_waitcnt lgkmcnt(0)")
    e.lgkm = []
    reg = {(0, 0): 91, (0, 1): 92, (1, 0): 29, (1, 1): 30}[(grp, kind)]
    e.raw(f"    v_writelane_b32 v{reg}, s96, {tk}")

def gen_A(cfg, S):
    e = Em('A')
    e.skip = cfg.skipA; e.skiptile = cfg.skiptile
    e.label("L_A")
    dreg = dict(K=[1, 2, 3], WQ=[4, 5, 6], X=[88, 89])
    wA = [7, 8, 9]; xA = [10, 11, 90, 91]; t0, t1, t2, t3 = 12, 13, 14, 15
    QACC = 32; XR = 96
    FS = [16, 20, 24, 28, 80, 84]
    calc_dX(e, dreg['X'], t0, t1)
    rest, lst = build_srds(e, cfg, 'X')
    issue, needA = plan(S, 'A')
    touches = {}
    if cfg.touch:
        touches.setdefault(cfg.touch_wq1, []).append(('wq1',))
        for t in S['WO']:
            if t.a == 0:
                touches.setdefault(max(cfg.touch_wq1 + 1, t.issue - cfg.touch_wo_lead), []).append(('wo', t.hd, t.sl))
    def do_issue(tk, part='all'):
        for t in issue.get(tk, []):
            early = (t.consume[0] - t.issue) <= cfg.early_lead
            if part == 'all' or (part == 'start') == early:
                dma_tile(e, t, cfg, dreg)
        if part == 'start': return
        for tc in touches.get(tk, []):
            if tc[0] == 'wq1':
                e.salu(f"s_mul_i32 s{S_T0}, s{S_B}, {40*12288}")
                e.salu(f"s_add_u32 s{S_T0}, s{S_T0}, s{S_WQCOL}")
                e.salu(f"s_add_u32 s{S_T0}, s{S_T0}, 384")
                e.I(f"buffer_load_dword v93, v94, s[{SRD_WQ}:{SRD_WQ+3}], s{S_T0} offen", 'vload', w=[93], r=[94])
            else:
                e.salu(f"s_mul_i32 s{S_T0}, s{S_B}, {40*128}")
                e.salu(f"s_add_u32 s{S_T0}, s{S_T0}, {(tc[1]*192 + 64*tc[2])*1280}")
                e.I(f"buffer_load_dword v93, v95, s[{SRD_WO}:{SRD_WO+3}], s{S_T0} offen", 'vload', w=[93], r=[95])
    stamp(e, cfg, 1)
    do_issue(0)
    stamp(e, cfg, 2)
    for k in rest: lst[k]()
    if cfg.touch:
        V(e, f"v_add_u32 v{t0}, s{S_W64}, v0", [t0], [0])
        V(e, f"v_mul_u32_u24 v{t1}, 171, v{t0}", [t1], [t0])
        V(e, f"v_lshrrev_b32 v{t1}, 9, v{t1}", [t1], [t1])
        V(e, f"v_mul_u32_u24 v{t2}, 3, v{t1}", [t2], [t1])
        V(e, f"v_sub_u32 v{t2}, v{t0}, v{t2}", [t2], [t0, t2])
        V(e, f"v_lshlrev_b32 v{t2}, 7, v{t2}", [t2], [t2])
        e.salu(f"s_mov_b32 s{S_T1}, 12288")
        V(e, f"v_mul_lo_u32 v{t1}, v{t1}, s{S_T1}", [t1], [t1])
        V(e, f"v_add_u32 v{t1}, v{t1}, v{t2}", [t1], [t1, t2])
        V(e, f"v_cmp_gt_u32 vcc, 120, v{t0}", ['vcc'], [t0])
        V(e, f"v_mov_b32 v{t2}, 0x7fffffff", [t2])
        e.valu(f"v_cndmask_b32 v94, v{t2}, v{t1}, vcc", w=[94], r=[t1, t2, 'vcc'])
        V(e, f"v_lshlrev_b32 v{t1}, 7, v{t0}", [t1], [t0])
        V(e, f"v_cmp_gt_u32 vcc, 40, v{t0}", ['vcc'], [t0])
        e.valu(f"v_cndmask_b32 v95, v{t2}, v{t1}, vcc", w=[95], r=[t1, t2, 'vcc'])
    calc_dK(e, dreg['K'], t0, t1)
    calc_dWQ(e, dreg['WQ'], t0, t1, t2)
    V(e, f"v_lshrrev_b32 v{t0}, 5, v0", [t0], [0])
    V(e, f"v_lshlrev_b32 v{t0}, 3, v{t0}", [t0], [t0])
    V(e, f"v_bfe_u32 v{t1}, v0, 2, 2", [t1], [0])
    V(e, f"v_add_u32 v{t0}, v{t0}, v{t1}", [t0], [t0, t1])
    V(e, f"v_mul_u32_u24 v{t0}, 384, v{t0}", [t0], [t0])
    V(e, f"v_and_b32 v{t2}, 1, v0", [t2], [0])
    V(e, f"v_lshlrev_b32 v{t2}, 3, v{t2}", [t2], [t2])
    V(e, f"v_add_u32 v{t0}, v{t0}, v{t2}", [t0], [t0, t2])
    V(e, f"v_and_b32 v{t1}, 2, v{t1}", [t1], [t1])
    V(e, f"v_lshlrev_b32 v{t1}, 1, v{t1}", [t1], [t1])
    V(e, f"v_bfe_u32 v{t2}, v0, 4, 1", [t2], [0])
    V(e, f"v_lshlrev_b32 v{t2}, 1, v{t2}", [t2], [t2])
    V(e, f"v_bfe_u32 v{t3}, v0, 1, 1", [t3], [0])
    V(e, f"v_add_u32 v{t2}, v{t2}, v{t3}", [t2], [t2, t3])
    V(e, f"v_add_u32 v{t2}, s{S_DH12}, v{t2}", [t2], [t2])
    for j in range(3):
        V(e, f"v_add_u32 v{t3}, {4*j}, v{t2}", [t3], [t2])
        V(e, f"v_xor_b32 v{t3}, v{t3}, v{t1}", [t3], [t3, t1])
        V(e, f"v_lshlrev_b32 v{t3}, 4, v{t3}", [t3], [t3])
        V(e, f"v_add_u32 v{wA[j]}, v{t0}, v{t3}", [wA[j]], [t0, t3])
    e.salu(f"s_and_b32 s{S_T0}, s{S_W}, 1")
    e.salu(f"s_lshl_b32 s{S_T1}, s{S_T0}, 5")
    V(e, f"v_and_b32 v{t0}, 31, v0", [t0], [0])
    V(e, f"v_add_u32 v{t0}, s{S_T1}, v{t0}", [t0], [t0])
    V(e, f"v_bfe_u32 v{t1}, v{t0}, 1, 3", [t1], [t0])
    V(e, f"v_lshrrev_b32 v{t2}, 5, v0", [t2], [0])
    V(e, f"v_lshlrev_b32 v{t0}, 7, v{t0}", [t0], [t0])
    V(e, f"v_add_u32 v{t0}, {cfg.xbase}, v{t0}", [t0], [t0])
    for m in range(4):
        V(e, f"v_add_u32 v{t3}, {2*m}, v{t2}", [t3], [t2])
        V(e, f"v_xor_b32 v{t3}, v{t3}, v{t1}", [t3], [t3, t1])
        V(e, f"v_lshlrev_b32 v{t3}, 4, v{t3}", [t3], [t3])
        V(e, f"v_add_u32 v{xA[m]}, v{t0}, v{t3}", [xA[m]], [t0, t3])

    consA = {}
    for t in S['W0'] + S['W1t']:
        consA.setdefault(t.consume[0], []).append(t)
    woc = {}
    for t in S['WO']:
        woc.setdefault(t.consume[0], []).append(t)

    st = {'wB': False}
    wBr = [t0, t1, t2]
    def qproj2(ts, tk):
        regs = []
        for n, t in enumerate(ts):
            if t.addr + 12288 > 65536:
                if not st['wB']:
                    for j in range(3):
                        V(e, f"v_add_u32 v{wBr[j]}, 32768, v{wA[j]}", [wBr[j]], [wA[j]])
                    st['wB'] = True
                regs.append((wBr, t.addr - 32768))
            else:
                regs.append((wA, t.addr))
        def reads(q):
            n, s = q // 2, q % 2
            t = ts[n]
            if t.hd == 0:
                m = q
                xo = (t.i // 2) * 8192
                if xo >= 65536:
                    V(e, f"v_add_u32 v{t3}, 65536, v{xA[m]}", [t3], [xA[m]])
                    dsr128(e, XR + 4 * (2 * t.i + s), t3, xo - 65536)
                else:
                    dsr128(e, XR + 4 * (2 * t.i + s), xA[m], xo)
            wr, wb = regs[n]
            for j in range(3):
                for h in range(2):
                    dsrtr(e, FS[3 * (q % 2) + j] + 2 * h, wr[j], wb + s * 16 * 384 + h * 4 * 384)
        def mm(q):
            n, s = q // 2, q % 2
            t = ts[n]
            for j in range(3):
                d = QACC + 16 * j
                mfma32(e, d, FS[3 * (q % 2) + j], XR + 4 * (2 * t.i + s), None if (t.i == 0 and s == 0) else d)
        reads(0); reads(1)
        do_issue(tk, 'start')
        mm(0); reads(2); mm(1); reads(3); mm(2); mm(3)
        do_issue(tk, 'end')

    def qfin(qb):
        st['wB'] = False
        e.salu(f"s_and_b32 s{S_T0}, s{S_W}, 1")
        e.salu(f"s_lshl_b32 s{S_T1}, s{S_T0}, 5")
        V(e, f"v_and_b32 v{t0}, 31, v0", [t0], [0])
        V(e, f"v_add_u32 v{t0}, s{S_T1}, v{t0}", [t0], [t0])
        V(e, f"v_bfe_u32 v{t1}, v{t0}, 1, 3", [t1], [t0])
        V(e, f"v_mul_u32_u24 v{t0}, 384, v{t0}", [t0], [t0])
        V(e, f"v_lshrrev_b32 v{t2}, 5, v0", [t2], [0])
        V(e, f"v_lshlrev_b32 v{t2}, 3, v{t2}", [t2], [t2])
        V(e, f"v_add_u32 v{t0}, v{t0}, v{t2}", [t0], [t0, t2])
        if qb:
            V(e, f"v_add_u32 v{t0}, {qb}, v{t0}", [t0], [t0])
        for j in range(3):
            for g in range(4):
                a = QACC + 16 * j + 4 * g
                cvtpk(e, a, a, a + 1)
                cvtpk(e, a + 1, a + 2, a + 3)
                e.salu(f"s_add_u32 s{S_T0}, s{S_DH12}, {4*j+g}")
                tt = t2 if g % 2 == 0 else t3
                V(e, f"v_xor_b32 v{tt}, s{S_T0}, v{t1}", [tt], [t1])
                V(e, f"v_lshl_add_u32 v{tt}, v{tt}, 4, v{t0}", [tt], [tt, t0])
                dsw64(e, tt, a, 0)

    dWO = [1, 2, 3, 88, 89]; woA = [6, 7, 8, 9]; ofA = [10, 11, 12, 13]
    OF = 32
    AS = [48, 52, 56, 60, 64, 68, 72, 76, 80, 84, 88, 92]
    OUT = XR
    def setup_out1():
        calc_dWO(e, dWO, 15, 90)
        dreg['WO'] = dWO
    def setup_out2():
        a0, a1, a2, a3 = 20, 21, 22, 23
        V(e, f"v_lshrrev_b32 v{a0}, 5, v0", [a0], [0])
        V(e, f"v_lshlrev_b32 v{a0}, 3, v{a0}", [a0], [a0])
        V(e, f"v_bfe_u32 v{a1}, v0, 2, 2", [a1], [0])
        V(e, f"v_add_u32 v{a0}, v{a0}, v{a1}", [a0], [a0, a1])
        V(e, f"v_mul_u32_u24 v{a0}, 1280, v{a0}", [a0], [a0])
        V(e, f"v_bfe_u32 v{a2}, v0, 1, 1", [a2], [0])
        V(e, f"v_lshlrev_b32 v{a2}, 3, v{a2}", [a2], [a2])
        V(e, f"v_add_u32 v{a0}, v{a0}, v{a2}", [a0], [a0, a2])
        V(e, f"v_bfe_u32 v{a2}, v0, 4, 1", [a2], [0])
        V(e, f"v_lshlrev_b32 v{a2}, 1, v{a2}", [a2], [a2])
        V(e, f"v_and_b32 v{a3}, 1, v0", [a3], [0])
        V(e, f"v_add_u32 v{a2}, v{a2}, v{a3}", [a2], [a2, a3])
        V(e, f"v_lshl_add_u32 v{a0}, v{a2}, 4, v{a0}", [a0], [a2, a0])
        e.salu(f"s_lshr_b32 s{S_T0}, s{S_W}, 1")
        e.salu(f"s_mul_i32 s{S_T0}, s{S_T0}, 10")
        for j in range(4):
            e.salu(f"s_add_u32 s{S_T1}, s{S_T0}, {j}")
            V(e, f"v_xor_b32 v{a2}, s{S_T1}, v{a1}", [a2], [a1])
            V(e, f"v_lshl_add_u32 v{woA[j]}, v{a2}, 6, v{a0}", [woA[j]], [a2, a0])
        e.salu(f"s_and_b32 s{S_T0}, s{S_W}, 1")
        e.salu(f"s_lshl_b32 s{S_T1}, s{S_T0}, 5")
        V(e, f"v_and_b32 v{a0}, 31, v0", [a0], [0])
        V(e, f"v_add_u32 v{a0}, s{S_T1}, v{a0}", [a0], [a0])
        V(e, f"v_bfe_u32 v{a1}, v{a0}, 1, 3", [a1], [a0])
        V(e, f"v_lshlrev_b32 v{a0}, 7, v{a0}", [a0], [a0])
        V(e, f"v_add_u32 v{a0}, {cfg.OB}, v{a0}", [a0], [a0])
        V(e, f"v_lshrrev_b32 v{a2}, 5, v0", [a2], [0])
        for ss in range(4):
            V(e, f"v_add_u32 v{a3}, {2*ss}, v{a2}", [a3], [a2])
            V(e, f"v_xor_b32 v{a3}, v{a3}, v{a1}", [a3], [a3, a1])
            V(e, f"v_lshl_add_u32 v{ofA[ss]}, v{a3}, 4, v{a0}", [ofA[ss]], [a3, a0])

    wost = {}
    def wo_reads(t, js, slots):
        if t.addr + 20480 <= 65536:
            regs, base = woA, t.addr
        else:
            key = t.addr
            if key not in wost:
                sets_ = [[16, 17, 18, 19], [20, 21, 22, 23], [24, 25, 26, 27], [28, 29, 30, 31]]
                idx = wost.get('n', 0)
                regs = sets_[idx % 4]
                for k2 in [k for k, v in wost.items() if k != 'n' and v is regs]:
                    del wost[k2]
                wost['n'] = idx + 1
                for j in range(4):
                    V(e, f"v_add_u32 v{regs[j]}, {t.addr}, v{woA[j]}", [regs[j]], [woA[j]])
                wost[key] = regs
            regs, base = wost[key], 0
        for j, sl in zip(js, slots):
            areg = regs[j % 4]
            for h in range(2):
                dsrtr(e, sl + 2 * h, areg, base + h * 4 * 1280 + (j // 4) * 256)

    def outproj(t, tk):
        first_ever = (t.hd == 0 and t.sl == 0 and t.a == 0)
        if t.a == 0:
            for ss in range(4):
                dsr128(e, OF + 4 * ss, ofA[ss], 0)
        wo_reads(t, list(range(10)), AS[:10])
        do_issue(tk, 'start')
        for j in range(10):
            d = OUT + 16 * j
            mfma32(e, d, AS[j], OF + 4 * t.a, None if first_ever else d)
        do_issue(tk, 'end')

    def outproj_final(ts, tk):
        sl_ = ts[0].sl
        for ss in range(4):
            dsr128(e, OF + 4 * ss, ofA[ss], 0)
        tl = sorted(ts, key=lambda t: t.a)
        sv = 14
        V(e, f"v_lshlrev_b32 v{sv}, 4, v0", [sv], [0])
        e.salu(f"s_mul_i32 s{S_T2}, s{S_W}, {20*1024}")
        sets = [AS[0:4], AS[4:8], AS[8:12]]
        def reads(j):
            for a in range(4):
                wo_reads(tl[a], [j], [sets[j % 3][a]])
        def store(j):
            d = OUT + 16 * j
            for o in range(2):
                b = d + 8 * o
                for i in range(4):
                    cvtpk(e, b + i, b + 2 * i, b + 2 * i + 1)
                e.salu(f"s_add_u32 s{S_T3}, s{S_T2}, {(2*j+o)*1024}")
                e.I(f"buffer_store_dwordx4 {vr(b,4)}, v{sv}, s[{SRD_P}:{SRD_P+3}], s{S_T3} offen{cfg.st_flags}", 'vstore', r=R(b, 4) + [sv])
        reads(0); reads(1)
        for j in range(10):
            if j + 2 < 10:
                reads(j + 2)
            d = OUT + 16 * j
            for a in range(4):
                mfma32(e, d, sets[j % 3][a], OF + 4 * a, d)
            if j >= 2:
                store(j - 2)
        store(8); store(9)

    for tk in range(0, S['nticks']):
        if tk > 0:
            e.comment(f"---- A tick {tk}")
            e.barrier()
            if tk in consA:
                qproj2(consA[tk], tk)
            elif tk == S['tQ0']:
                qfin(cfg.Q0B); do_issue(tk); setup_out1()
            elif tk == S['tQ1']:
                qfin(cfg.Q1B)
                do_issue(tk)
            elif tk == S['tQ1'] + 1:
                setup_out2()
                do_issue(tk)
                assert tk not in woc
            elif tk in woc:
                lst_ = woc[tk]
                if len(lst_) == 1:
                    outproj(lst_[0], tk)
                else:
                    do_issue(tk)
                    if cfg.prof:
                        e.raw("    v_lshlrev_b32 v14, 2, v0")
                        e.raw("    v_add_u32 v14, 65536, v14")
                        e.raw(f"    s_lshr_b32 s84, s{S_W1024}, 1")
                        e.raw("    v_add_u32 v14, s84, v14")
                        e.raw("    ds_write_b32 v14, v91 offset:0")
                        e.raw("    ds_write_b32 v14, v92 offset:256")
                        e.raw("    s_waitcnt lgkmcnt(0)")
                    outproj_final(lst_, tk)
                    if cfg.prof:
                        e.raw("    s_waitcnt lgkmcnt(0)")
                        e.lgkm = []
                        e.raw("    v_lshlrev_b32 v15, 2, v0")
                        e.raw("    v_add_u32 v15, 65536, v15")
                        e.raw(f"    s_lshr_b32 s84, s{S_W1024}, 1")
                        e.raw("    v_add_u32 v15, s84, v15")
                        e.raw("    s_waitcnt vmcnt(0)")
                        e.vm = []
                        e.raw("    ds_read_b32 v91, v15 offset:0")
                        e.raw("    ds_read_b32 v92, v15 offset:256")
                        e.raw("    s_waitcnt lgkmcnt(0)")
            else:
                do_issue(tk)
        if tk == 0: stamp(e, cfg, 3)
        if tk < S['nticks'] - 1: lstamp2(e, cfg, 0, 0, tk, S)
        for t in needA.get(tk + 1, []):
            e.wait_tile(t)
        if tk < S['nticks'] - 1: lstamp2(e, cfg, 0, 1, tk, S)
        if tk == 0: stamp(e, cfg, 4)
    if cfg.prof:
        e.raw("    s_memtime s[80:81]")
        e.raw("    s_waitcnt vmcnt(0)")
        e.raw("    s_memtime s[86:87]")
        e.raw("    s_memrealtime s[10:11]")
        e.raw("    s_getreg_b32 s12, hwreg(HW_REG_XCC_ID)")
        e.raw("    s_waitcnt lgkmcnt(0)")
        e.raw(f"    s_lshl_b32 s84, s{S_WG}, 3")
        e.raw(f"    s_add_u32 s84, s84, s{S_WAVE}")
        e.raw(f"    s_lshl_b32 s84, s84, 10")
        e.raw(f"    s_add_u32 s84, s84, {64<<20}")
        e.raw(f"    s_add_u32 s88, s{S_PTR+14}, s84")
        e.raw(f"    s_addc_u32 s89, s{S_PTR+15}, 0")
        e.raw(f"    s_and_b32 s89, s89, 0xffff")
        e.raw(f"    s_mov_b32 s90, 1024")
        e.raw(f"    s_mov_b32 s91, 0x20000")
        e.raw(f"    v_writelane_b32 v91, s82, 0")
        e.raw(f"    v_writelane_b32 v91, s80, 1")
        e.raw(f"    v_writelane_b32 v91, s86, 2")
        e.raw(f"    v_writelane_b32 v91, s8, 8")
        e.raw(f"    v_writelane_b32 v91, s10, 9")
        e.raw(f"    v_writelane_b32 v91, s12, 10")
        for n in range(5):
            e.raw(f"    v_writelane_b32 v91, s{STAMPS[n]}, {3+n}")
        e.raw(f"    v_lshlrev_b32 v28, 2, v0")
        e.raw(f"    buffer_store_dword v91, v28, s[88:91], 0 offen offset:256")
        e.raw(f"    buffer_store_dword v92, v28, s[88:91], 0 offen offset:512")
    if cfg.inred:
        e.raw("    s_waitcnt vmcnt(0)")
        e.raw("    s_barrier")
        e.raw("    s_barrier")
        e.raw(f"    s_cmp_eq_u32 s{S_W}, 0")
        e.raw("    s_cbranch_scc0 L_exit")
        e.raw("    s_mov_b32 s56, 4")
        e.raw("    s_branch L_RED")
        e.nbar += 2
    else:
        e.raw("    s_endpgm")
    return e

def gen_red(cfg):
    L = []
    A = lambda t: L.append("    " + t)
    L.append("L_RED:")
    A(f"s_mul_i32 s57, s{S_HP}, 5")
    A("s_add_u32 s57, s57, s56")
    A(f"s_mul_i32 s58, s{S_B}, {16*81920}")
    A(f"s_add_u32 s32, s{S_PTR+14}, s58")
    A(f"s_addc_u32 s33, s{S_PTR+15}, 0")
    A("s_and_b32 s33, s33, 0xffff")
    A(f"s_mov_b32 s34, {16*81920}")
    A("s_mov_b32 s35, 0x20000")
    A("s_lshl_b32 s59, s57, 10")
    A("v_lshlrev_b32 v2, 4, v0")
    A("v_add_u32 v2, s59, v2")
    for h in range(16):
        A(f"s_mov_b32 s{60+h}, {h*81920}")
    for h in range(16):
        A(f"buffer_load_dwordx4 v[{8+4*h}:{11+4*h}], v2, s[32:35], s{60+h} offen sc1")
    A("s_mul_hi_u32 s40, s57, 214748365")
    A("s_mul_i32 s41, s40, 20")
    A("s_sub_u32 s41, s57, s41")
    A("s_and_b32 s42, s40, 1")
    A("s_lshr_b32 s43, s40, 1")
    A("s_mul_i32 s43, s43, 320")
    A("s_lshl_b32 s41, s41, 4")
    A("s_add_u32 s43, s43, s41")
    A("s_lshl_b32 s42, s42, 5")
    A(f"s_lshl_b32 s44, s{S_B}, 6")
    A("s_add_u32 s42, s42, s44")
    A("s_mul_i32 s42, s42, 1280")
    A("s_lshl_b32 s43, s43, 1")
    A("s_add_u32 s42, s42, s43")
    A("v_and_b32 v3, 31, v0")
    A("v_mul_u32_u24 v3, 1280, v3")
    A("v_lshrrev_b32 v4, 5, v0")
    A("v_lshlrev_b32 v4, 4, v4")
    A("v_add_u32 v3, v3, v4")
    A(f"s_mov_b32 s44, s{S_PTR+10}")
    A(f"s_and_b32 s45, s{S_PTR+11}, 0xffff")
    A(f"s_mov_b32 s46, {16*64*640*2}")
    A("s_mov_b32 s47, 0x20000")
    for h in range(16):
        A(f"s_waitcnt vmcnt({15-h})")
        for i in range(4):
            src = 8 + 4 * h + i
            if h == 0:
                A(f"v_lshlrev_b32 v{72+2*i}, 16, v{src}")
                A(f"v_and_b32 v{73+2*i}, 0xffff0000, v{src}")
            else:
                A(f"v_lshlrev_b32 v5, 16, v{src}")
                A(f"v_and_b32 v6, 0xffff0000, v{src}")
                A(f"v_add_f32 v{72+2*i}, v{72+2*i}, v5")
                A(f"v_add_f32 v{73+2*i}, v{73+2*i}, v6")
    for i in range(4):
        A(f"v_cvt_pk_bf16_f32 v{80+i}, v{72+2*i}, v{73+2*i}")
    A("buffer_store_dwordx4 v[80:83], v3, s[44:47], s42 offen")
    A("s_endpgm")
    return L

def generate(cfg, fn):
    S = build_schedule(cfg)
    P = prologue(cfg); A = gen_A(cfg, S); B = gen_B(cfg, S)
    assert A.nbar == B.nbar, (A.nbar, B.nbar)
    L = []
    if cfg.inred:
        L.append(f"; @launch grid=(256,1,1) block=(512,1,1) lds=163840")
    else:
        L.append(f"; @launch kernel={KN} grid=(256,1,1) block=(512,1,1) lds=163840")
        L.append(f"; @launch kernel={KN2} grid=(320,1,1) block=(256,1,1) lds=0")
    L.append('.amdgcn_target "amdgcn-amd-amdhsa--gfx950"')
    L.append(".text")
    L.append(f".globl {KN}")
    L.append(".p2align 8")
    L.append(f".type {KN},@function")
    L.append(f"{KN}:")
    L += P.lines + A.lines + B.lines
    if cfg.inred:
        L += gen_red(cfg)
    L.append("L_exit:")
    L.append("    s_endpgm")
    if not cfg.inred:
        L += gen_reduce()
    L.append('.section .rodata,"a"')
    L.append(".p2align 6")
    L += kd(KN, 256)
    if not cfg.inred:
        L.append(".p2align 6")
        L += kd(KN2, 88)
    open(fn, "w").write("\n".join(L) + "\n")
    print("ticks", S['nticks'], "A instr", A.ninstr, A.stats, "B instr", B.ninstr, B.stats, file=sys.stderr)
    return S

if __name__ == "__main__":
    cfg = Cfg()
    cfg.prof_lds = 72 * 1024 if False else 79 * 1024
    cfg.prof_from = 12
    cfg.prof_t = {0: (14, 15), 1: (28, 29)}
    cfg.final_addr = [136 * 1024, 0, 20 * 1024, 40 * 1024]
    if "--prof" in sys.argv: cfg.prof = True
    for a in sys.argv[2:]:
        if "=" in a:
            k, v = a.split("=", 1)
            setattr(cfg, k, eval(v))
    S = generate(cfg, sys.argv[1] if len(sys.argv) > 1 else "k4.s")
    if "-v" in sys.argv:
        for t in S['allt']:
            print(t.name, hex(t.addr), "issue", t.issue, "by", t.by, "consume", t.consume)
```

```python
import sys, struct
from emit import Em, vr, sr, R
import gen as G
from gen import (Tile, V, calc_dK, calc_dWQ, calc_dX, calc_dV, calc_dWO, mfma16, mfma32, dsr128, dsrtr, dsw64, cvtpk, f32, kd,
                 gen_reduce, KN, KN2, QO, stamp, lstamp, STAMPS, PROF_LDS, dma_tile,
                 S_WG, S_WAVE, S_W, S_B, S_HP, S_ROT, S_PTR, SRD_K, SRD_V, SRD_WQ, SRD_X, SRD_WO, SRD_P,
                 S_W3072, S_W1024, S_W2048, S_W5120, S_WQCOL, S_C, S_T0, S_T1, S_T2, S_T3, S_KT, S_W6144, S_DH12, S_W64)

class Cfg:
    nt_kv = True
    prof = False
    rot = True
    touch = False
    w0_slots = 6
    xbase = 80 * 1024
    x_issue = [0, 0, 0, 1, 1, 1, 1, 2, 2, 2]
    w0_issue = None
    kpre = 6
    W1 = 0
    WSZ = 81920
    OB = 80 * 1024
    Q0B = 0
    Q1B = 56 * 1024
    HB = 88 * 1024
    HSZ = 72 * 1024
    touch_wq1 = 3
    touch_wo_lead = 5
    early_lead = 1
    pf_wq = True
    pf_ticks = [0] * 14
    exp_ahead = True
    skipA = ()
    skipB = ()
    skiptile = ()
    k_lead = [[9, 9], [9, 9]]
    v_lead = [9, 9]
    inred = False
    st_flags = ''
    spin_max = 200000
    b_pos = 0
    fineB = 21
    fineA = 15
    final_addr = None

def build_schedule(cfg):
    T0 = 1
    HB, HSZ, W1 = cfg.HB, cfg.HSZ, cfg.W1
    X = []
    for j in range(10):
        t = Tile('x', f"x_{j}", cfg.xbase + j * 8192, 8192, j=j)
        t.consume = [T0 + j]; t.by = 'A'; t.earliest = cfg.x_issue[j]
        X.append(t)
    W0 = []
    for i in range(20):
        t = Tile('w0', f"w0_{i}", (i % cfg.w0_slots) * 12288, 12288, hd=0, i=i)
        t.consume = [T0 + i // 2]; t.by = 'B'
        t.earliest = 0 if i < 2 else 1
        W0.append(t)
    tQ0 = T0 + 10
    tK0 = tQ0 + 1
    H = []
    pos = 0
    tk = tK0
    info = {}
    for hd in range(2):
        info[('k', hd)] = tk
        for j in range(16):
            assert pos + 12288 <= HSZ
            t = Tile('k', f"k{hd}_{j}", HB + pos, 12288, hd=hd, j=j)
            pos = (pos + 12288) % HSZ
            t.consume = [tk + j // 2]; t.by = 'B'; t.earliest = max(0, t.consume[0] - cfg.k_lead[hd][j % 2])
            H.append(t)
        tk += 8
        info[('v', hd)] = tk
        for sl in range(3):
            for j in range(8):
                assert pos + 8192 <= HSZ
                t = Tile('v', f"v{hd}_{sl}_{j}", HB + pos, 8192, hd=hd, sl=sl, j=j)
                pos = (pos + 8192) % HSZ
                t.consume = [tk + j // 2]; t.by = 'B'; t.earliest = max(0, t.consume[0] - cfg.v_lead[j % 2])
                H.append(t)
            tk += 4
    for n, t in enumerate(H[:cfg.kpre]):
        t.by = 'A'; t.earliest = 0
    tEnd = tk
    W1t = []
    tq1 = tK0
    nq1 = cfg.WSZ // 12288
    for i in range(20):
        t = Tile('wq1', f"wq1_{i}", W1 + ((i + 2) % nq1) * 12288, 12288, hd=1, i=i)
        t.consume = [tq1 + i // 2]; t.by = 'A'; t.earliest = 0
        W1t.append(t)
    tQ1 = tq1 + 10
    v0 = info[('v', 0)]
    assert tQ1 < v0 + 3, (tQ1, v0)
    WO = []
    slot = 0
    nwo = cfg.WSZ // 20480
    for hd in range(2):
        vstart = info[('v', hd)]
        for sl in range(3):
            tO = vstart + 4 * sl + 3
            for a in range(4):
                final = (hd == 1 and sl == 2)
                t = Tile('wo', f"wo{hd}_{sl}_{a}", None, 20480, hd=hd, sl=sl, a=a)
                if final:
                    t.addr = cfg.final_addr[a]
                    t.consume = [tO + 1]
                else:
                    t.addr = W1 + (slot % nwo) * 20480
                    slot += 1
                    t.consume = [tO + 1 + a]
                t.by = 'A'
                t.earliest = tQ0 + 1
                WO.append(t)
    nticks = tEnd + 1
    free_at = [0] * 160
    PQ = []
    q0 = Tile('q', 'Q0', cfg.Q0B, 24576); q0.fixed = tQ0; q0.consume = [tQ0 + 1]; q0.by = None; PQ.append(q0)
    q1 = Tile('q', 'Q1', cfg.Q1B, 24576); q1.fixed = tQ1; q1.consume = [v0 + 3]; q1.by = None; PQ.append(q1)
    ob = Tile('q', 'OB', cfg.OB, 8192); ob.fixed = v0 + 3; ob.consume = [tEnd]; ob.by = None; PQ.append(ob)
    streams = [X, W0, H, W1t, WO, PQ]
    def okey(t):
        first = t.fixed if t.kind == 'q' else t.consume[0]
        return (first, t.kind, getattr(t, 'i', 0), getattr(t, 'sl', 0), getattr(t, 'j', 0), getattr(t, 'a', 0))
    allt = sorted([t for s_ in streams for t in s_], key=okey)
    last_issue = {}
    for t in allt:
        lo = t.addr // 1024; hi = (t.addr + t.size) // 1024
        e = max(free_at[lo:hi])
        if t.kind == 'q':
            assert e <= t.fixed, (t, e, t.fixed)
            t.issue = t.fixed
        else:
            key = t.kind if t.kind in ('x', 'w0', 'wq1', 'wo') else 'h'
            e = max(e, last_issue.get(key, 0), t.earliest)
            t.issue = e
            last_issue[key] = e
            assert t.issue < t.consume[0], (t, t.issue, t.consume)
        for k in range(lo, hi):
            free_at[k] = t.consume[-1] + 1
    for a in allt:
        for b in allt:
            if a is b: continue
            if a.addr < b.addr + b.size and b.addr < a.addr + a.size:
                assert a.consume[-1] < b.issue or b.consume[-1] < a.issue, ("overlap", a, a.issue, a.consume, b, b.issue, b.consume)
    allt = [t for t in allt if t.kind != 'q']
    return dict(nticks=nticks, X=X, W0=W0, H=H, W1t=W1t, WO=WO, tQ0=tQ0, tQ1=tQ1, info=info, tEnd=tEnd, allt=allt)

def srd(e, d, p, offs, size):
    if offs is None:
        e.salu(f"s_mov_b32 s{d}, s{p}")
        e.salu(f"s_and_b32 s{d+1}, s{p+1}, 0xffff")
    else:
        e.salu(f"s_add_u32 s{d}, s{p}, s{offs}")
        e.salu(f"s_addc_u32 s{d+1}, s{p+1}, 0")
        e.salu(f"s_and_b32 s{d+1}, s{d+1}, 0xffff")
    e.salu(f"s_mov_b32 s{d+2}, {size}")
    e.salu(f"s_mov_b32 s{d+3}, 0x20000")

S_OKV = 56; S_OP = 57; S_OX = 58; S_OWO = 59
def build_srds(e, cfg, first):
    e.raw("    s_waitcnt lgkmcnt(0)")
    stamp(e, cfg, 0)
    lst = {
        'WQ': lambda: srd(e, SRD_WQ, S_PTR + 6, None, 640 * 12288),
        'X': lambda: srd(e, SRD_X, S_PTR + 0, S_OX, 81920),
        'K': lambda: srd(e, SRD_K, S_PTR + 2, S_OKV, 393216),
        'V': lambda: srd(e, SRD_V, S_PTR + 4, S_OKV, 393216),
        'WO': lambda: srd(e, SRD_WO, S_PTR + 8, S_OWO, 2 * 192 * 1280),
        'P': lambda: srd(e, SRD_P, S_PTR + 14, S_OP, 81920),
    }
    lst[first]()
    return [k for k in lst if k != first], lst

def prologue(cfg):
    e = Em('P')
    e.salu(f"s_cmp_ge_u32 s{S_WG}, 256")
    e.raw("    s_cbranch_scc1 L_exit")
    e.raw(f"    s_load_dwordx16 s[{S_PTR}:{S_PTR+15}], s[0:1], 0")
    if cfg.prof:
        e.raw("    s_memtime s[82:83]")
        e.raw("    s_memrealtime s[8:9]")
    e.valu("v_lshrrev_b32 v1, 6, v0", w=[1], r=[0])
    e.I(f"v_readfirstlane_b32 s{S_WAVE}, v1", 'readlane', w=[f's{S_WAVE}'], r=[1])
    e.valu("v_and_b32 v0, 63, v0", w=[0], r=[0])
    e.salu(f"s_and_b32 s{S_T0}, s{S_WG}, 7")
    e.salu(f"s_lshr_b32 s{S_T1}, s{S_WG}, 3")
    e.salu(f"s_lshr_b32 s{S_T2}, s{S_T1}, 4")
    e.salu(f"s_lshl_b32 s{S_HP}, s{S_T0}, 1")
    e.salu(f"s_add_u32 s{S_HP}, s{S_HP}, s{S_T2}")
    e.salu(f"s_and_b32 s{S_B}, s{S_T1}, 15")
    e.I(f"s_and_b32 s{S_W}, s{S_WAVE}, 3", 'salu', r=[f's{S_WAVE}'])
    e.salu(f"s_mul_i32 s{S_ROT}, s{S_B}, 5")
    e.salu(f"s_lshr_b32 s{S_ROT}, s{S_ROT}, 3")
    e.salu(f"s_lshl_b32 s{S_ROT}, s{S_ROT}, 1")
    e.salu(f"s_mul_i32 s{S_W3072}, s{S_W}, 3072")
    e.salu(f"s_lshl_b32 s{S_W1024}, s{S_W}, 10")
    e.salu(f"s_lshl_b32 s{S_W2048}, s{S_W}, 11")
    e.salu(f"s_mul_i32 s{S_W5120}, s{S_W}, 5120")
    e.salu(f"s_mul_i32 s{S_W6144}, s{S_W}, 6144")
    e.salu(f"s_lshl_b32 s{S_W64}, s{S_W}, 6")
    e.salu(f"s_mul_i32 s{S_WQCOL}, s{S_HP}, 768")
    e.salu(f"s_lshr_b32 s{S_DH12}, s{S_W}, 1")
    e.salu(f"s_mul_i32 s{S_DH12}, s{S_DH12}, 12")
    e.salu(f"s_mov_b32 s{S_C}, {f32((192 ** -0.5) * 1.4426950408889634):#x}")
    e.salu(f"s_lshl_b32 s{S_T0}, s{S_B}, 4")
    e.salu(f"s_add_u32 s{S_T0}, s{S_T0}, s{S_HP}")
    e.salu(f"s_mul_i32 s{S_OKV}, s{S_T0}, 393216")
    e.salu(f"s_mul_i32 s{S_OP}, s{S_T0}, 81920")
    e.salu(f"s_mul_i32 s{S_OX}, s{S_B}, 81920")
    e.salu(f"s_mul_i32 s{S_OWO}, s{S_HP}, {2*192*1280}")
    e.salu(f"s_cmp_ge_u32 s{S_WAVE}, 4")
    e.raw("    s_cbranch_scc1 L_B")
    return e

def plan(S, who):
    issue = {}; need = {}
    for t in S['allt']:
        if t.by == who:
            issue.setdefault(t.issue, []).append(t)
            need.setdefault(t.consume[0], []).append(t)
    return issue, need

class Fine:
    def __init__(s, e, cfg, reg, tick):
        s.e, s.cfg, s.reg, s.tick, s.n, s.cur = e, cfg, reg, tick, 0, -1
    def __call__(s, label=""):
        if s.cfg.prof and s.cur == s.tick and s.n < 12:
            s.e.raw("    s_memtime s[96:97]")
            s.e.raw("    s_waitcnt lgkmcnt(0)")
            s.e.lgkm = []
            s.e.raw(f"    v_writelane_b32 v{s.reg}, s96, {s.n}")
            print("fine", s.reg, s.n, label, file=sys.stderr)
            s.n += 1

def gen_B(cfg, S):
    e = Em('B')
    e.skip = cfg.skipB; e.skiptile = cfg.skiptile
    dreg = dict(K=[1, 2, 3], WQ=[4, 5, 6], V=[8, 9])
    kA = [10, 11]; vA = [12, 13, 14, 15]; oA = [16, 17, 18, 19]; TT = [20, 21, 22, 23]; TU = [7, 26 + 0, 30, 31]
    vm, vmc, vinvl, t0, t1, t2 = 24, 25, 26, 27, 28, 29
    ONES = 32; LACC = 36; OACC = 40; QF = 56; FR = 80; SB = 128
    qt = [27, 28]
    fine = Fine(e, cfg, 29, cfg.fineB)
    e.label("L_B")
    calc_dWQ(e, dreg['WQ'], t0, t1, t2)
    rest, lst = build_srds(e, cfg, 'WQ')
    issue, needB = plan(S, 'B')
    cons = {}
    for t in S['H']:
        cons.setdefault(t.consume[0], []).append(t)
    pfitems = []
    PFA = 7
    def mk_wo(hd, i, reg):
        def f():
            e.salu(f"s_mul_i32 s{S_T0}, s{S_B}, 15360")
            e.salu(f"s_add_u32 s{S_T0}, s{S_T0}, s{S_W1024}")
            e.salu(f"s_add_u32 s{S_T1}, s{S_T0}, {hd*245760 + i*4096}")
            e.I(f"buffer_load_dwordx4 {vr(reg, 4)}, v{PFA}, s[{SRD_WO}:{SRD_WO+3}], s{S_T1} offen", 'vload', w=R(reg, 4), r=[PFA])
        return f
    def mk_wq(rb, p, reg):
        def f():
            e.salu(f"s_mul_i32 s{S_T0}, s{S_B}, {40*12288}")
            e.salu(f"s_add_u32 s{S_T0}, s{S_T0}, s{S_WQCOL}")
            e.salu(f"s_add_u32 s{S_T0}, s{S_T0}, {384 + rb*12288}")
            off = f" offset:{1024*p}" if p else ""
            e.I(f"buffer_load_dwordx4 {vr(reg, 4)}, v{dreg['WQ'][p]}, s[{SRD_WQ}:{SRD_WQ+3}], s{S_T0} offen{off}", 'vload', w=R(reg, 4), r=[dreg['WQ'][p]])
        return f
    wq_items = [mk_wq(rb, p, SB + 12 * (rb // 8) + 4 * p) for rb in (0, 8) for p in range(3)]
    wo_items = [mk_wo(hd, i, SB + 32 + 16 * hd + 4 * i) for hd in range(2) for i in range(4)]
    allitems = (wq_items if cfg.pf_wq else []) + wo_items
    pfplan = {}
    for n, it in enumerate(allitems):
        pfplan.setdefault(cfg.pf_ticks[min(n, len(cfg.pf_ticks) - 1)], []).append(it)
    def do_issue(tk):
        for t in issue.get(tk, []):
            dma_tile(e, t, cfg, dreg)
        if tk > 0:
            for it in pfplan.get(tk, []): it()
    stamp(e, cfg, 1)
    do_issue(0)
    stamp(e, cfg, 2)
    for k in rest: lst[k]()
    V(e, f"v_lshlrev_b32 v{PFA}, 4, v0", [PFA], [0])
    for it in pfplan.get(0, []): it()
    calc_dK(e, dreg['K'], t0, t1)
    calc_dV(e, dreg['V'], t0, t1)
    V(e, f"v_and_b32 v{t0}, 15, v0", [t0], [0])
    V(e, f"v_lshrrev_b32 v{t1}, 1, v{t0}", [t1], [t0])
    V(e, f"v_lshrrev_b32 v{t2}, 4, v0", [t2], [0])
    V(e, f"v_xor_b32 v{t2}, v{t2}, v{t1}", [t2], [t1, t2])
    V(e, f"v_lshlrev_b32 v{t2}, 4, v{t2}", [t2], [t2])
    V(e, f"v_mul_u32_u24 v{kA[0]}, 384, v{t0}", [kA[0]], [t0])
    V(e, f"v_add_u32 v{kA[0]}, v{kA[0]}, v{t2}", [kA[0]], [kA[0], t2])
    V(e, f"v_xor_b32 v{t2}, 64, v{t2}", [t2], [t2])
    V(e, f"v_mul_u32_u24 v{kA[1]}, 384, v{t0}", [kA[1]], [t0])
    V(e, f"v_add_u32 v{kA[1]}, v{kA[1]}, v{t2}", [kA[1]], [kA[1], t2])
    V(e, f"v_lshlrev_b32 v{t2}, 7, v{t0}", [t2], [t0])
    V(e, f"v_add_u32 v{t2}, s{S_W2048}, v{t2}", [t2], [t2])
    V(e, f"v_add_u32 v{t2}, {cfg.OB}, v{t2}", [t2], [t2])
    V(e, f"v_lshrrev_b32 v{vm}, 4, v0", [vm], [0])
    V(e, f"v_and_b32 v{vmc}, 1, v{vm}", [vmc], [vm])
    V(e, f"v_lshlrev_b32 v{vmc}, 3, v{vmc}", [vmc], [vmc])
    V(e, f"v_add_u32 v{t2}, v{t2}, v{vmc}", [t2], [t2, vmc])
    V(e, f"v_lshrrev_b32 v{vm}, 1, v{vm}", [vm], [vm])
    for dt in range(4):
        V(e, f"v_add_u32 v{vmc}, {2*dt}, v{vm}", [vmc], [vm])
        V(e, f"v_xor_b32 v{vmc}, v{vmc}, v{t1}", [vmc], [vmc, t1])
        V(e, f"v_lshlrev_b32 v{vmc}, 4, v{vmc}", [vmc], [vmc])
        V(e, f"v_add_u32 v{oA[dt]}, v{t2}, v{vmc}", [oA[dt]], [t2, vmc])
    V(e, f"v_lshrrev_b32 v{t0}, 2, v0", [t0], [0])
    V(e, f"v_and_b32 v{t1}, 6, v{t0}", [t1], [t0])
    V(e, f"v_lshlrev_b32 v{t0}, 7, v{t0}", [t0], [t0])
    V(e, f"v_and_b32 v{t2}, 3, v0", [t2], [0])
    V(e, f"v_lshlrev_b32 v{t2}, 3, v{t2}", [t2], [t2])
    V(e, f"v_add_u32 v{t0}, v{t0}, v{t2}", [t0], [t0, t2])
    for dt in range(4):
        V(e, f"v_xor_b32 v{t2}, {2*dt}, v{t1}", [t2], [t1])
        V(e, f"v_lshlrev_b32 v{t2}, 4, v{t2}", [t2], [t2])
        V(e, f"v_add_u32 v{vA[dt]}, v{t0}, v{t2}", [vA[dt]], [t0, t2])
    for i in range(4):
        V(e, f"v_mov_b32 v{ONES+i}, 0x3f803f80", [ONES + i])

    def load_qfrags(qb):
        V(e, f"v_add_u32 v{qt[0]}, s{S_W6144}, v{kA[0]}", [qt[0]], [kA[0]])
        V(e, f"v_add_u32 v{qt[1]}, s{S_W6144}, v{kA[1]}", [qt[1]], [kA[1]])
        if qb:
            V(e, f"v_add_u32 v{qt[0]}, {qb}, v{qt[0]}", [qt[0]], [qt[0]])
            V(e, f"v_add_u32 v{qt[1]}, {qb}, v{qt[1]}", [qt[1]], [qt[1]])
        for s in range(6):
            dsr128(e, QF + 4 * s, qt[s % 2], (s // 2) * 128)

    def maxtile(jt):
        b = SB + 8 * jt
        if jt == 0:
            e.valu(f"v_max3_f32 v{vm}, v{b}, v{b+1}, v{b+2}", w=[vm], r=[b, b + 1, b + 2])
            e.valu(f"v_max3_f32 v{vm}, v{vm}, v{b+3}, v{b+4}", w=[vm], r=[vm, b + 3, b + 4])
            e.valu(f"v_max3_f32 v{vm}, v{vm}, v{b+5}, v{b+6}", w=[vm], r=[vm, b + 5, b + 6])
            e.valu(f"v_max_f32 v{vm}, v{vm}, v{b+7}", w=[vm], r=[vm, b + 7])
        else:
            for i in range(4):
                e.valu(f"v_max3_f32 v{vm}, v{vm}, v{b+2*i}, v{b+2*i+1}", w=[vm], r=[vm, b + 2 * i, b + 2 * i + 1])

    def maxlist(jt):
        b = SB + 8 * jt
        out = []
        if jt == 0:
            out.append(lambda: e.valu(f"v_max3_f32 v{vm}, v{b}, v{b+1}, v{b+2}", w=[vm], r=[b, b + 1, b + 2]))
            out.append(lambda: e.valu(f"v_max3_f32 v{vm}, v{vm}, v{b+3}, v{b+4}", w=[vm], r=[vm, b + 3, b + 4]))
            out.append(lambda: e.valu(f"v_max3_f32 v{vm}, v{vm}, v{b+5}, v{b+6}", w=[vm], r=[vm, b + 5, b + 6]))
            out.append(lambda: e.valu(f"v_max_f32 v{vm}, v{vm}, v{b+7}", w=[vm], r=[vm, b + 7]))
        else:
            for i in range(4):
                out.append(lambda i=i: e.valu(f"v_max3_f32 v{vm}, v{vm}, v{b+2*i}, v{b+2*i+1}", w=[vm], r=[vm, b + 2 * i, b + 2 * i + 1]))
        return out

    def qk2(ta, tb, tk):
        if ta.j == 0 and ta.hd == 0:
            load_qfrags(cfg.Q0B)
        for n, t in enumerate((ta, tb)):
            V(e, f"v_add_u32 v{TT[2*n]}, {t.addr}, v{kA[0]}", [TT[2*n]], [kA[0]])
            V(e, f"v_add_u32 v{TT[2*n+1]}, {t.addr}, v{kA[1]}", [TT[2*n+1]], [kA[1]])
        pairs = [(n, tp, s_) for n in range(2) for s_ in range(6) for tp in range(2)]
        def rd(i):
            n, tp, s_ = pairs[i]
            dsr128(e, FR + 4 * (i % 12), TT[2 * n + s_ % 2], tp * 6144 + (s_ // 2) * 128)
        def mm(i):
            n, tp, s_ = pairs[i]
            t = (ta, tb)[n]
            d = SB + 4 * (2 * t.j + tp)
            mfma16(e, d, FR + 4 * (i % 12), QF + 4 * s_, None if s_ == 0 else d)
        for i in range(12): rd(i)
        if cfg.b_pos == 0: do_issue(tk)
        mx = []
        if ta.j > 0:
            mx = maxlist(ta.j - 2) + maxlist(ta.j - 1)
        for i in range(24):
            mm(i)
            if i + 12 < 24: rd(i + 12)
            if i < len(mx): mx[i]()
            if cfg.b_pos == 1 and i == 5: do_issue(tk)
            if cfg.b_pos == 2 and i == 11: do_issue(tk)
        if cfg.b_pos == 3: do_issue(tk)

    def softmax_fin():
        maxtile(14); maxtile(15)
        V(e, f"v_mov_b32 v{t0}, v{vm}", [t0], [vm])
        e.I(f"v_permlane32_swap_b32 v{t0}, v{vm}", 'permlane', w=[t0, vm], r=[t0, vm])
        V(e, f"v_max_f32 v{vm}, v{vm}, v{t0}", [vm], [vm, t0])
        V(e, f"v_mov_b32 v{t0}, v{vm}", [t0], [vm])
        e.I(f"v_permlane16_swap_b32 v{t0}, v{vm}", 'permlane', w=[t0, vm], r=[t0, vm])
        V(e, f"v_max_f32 v{vm}, v{vm}, v{t0}", [vm], [vm, t0])
        V(e, f"v_mul_f32 v{vmc}, s{S_C}, v{vm}", [vmc], [vm])

    def expstep(sp):
        b = SB + 8 * sp
        for i in range(8):
            e.valu(f"v_fma_f32 v{b+i}, v{b+i}, s{S_C}, -v{vmc}", w=[b + i], r=[b + i, vmc])
        for i in range(8):
            e.I(f"v_exp_f32 v{b+i}, v{b+i}", 'trans', w=[b + i], r=[b + i])
        for i in range(4):
            cvtpk(e, b + i, b + 2 * i, b + 2 * i + 1)

    def explist(sp):
        b = SB + 8 * sp
        out = []
        for i in range(8):
            out.append(lambda i=i: e.valu(f"v_fma_f32 v{b+i}, v{b+i}, s{S_C}, -v{vmc}", w=[b + i], r=[b + i, vmc]))
        for i in range(8):
            out.append(lambda i=i: e.I(f"v_exp_f32 v{b+i}, v{b+i}", 'trans', w=[b + i], r=[b + i]))
        for i in range(4):
            out.append(lambda i=i: cvtpk(e, b + i, b + 2 * i, b + 2 * i + 1))
        return out

    def pv2(ta, tb, tk):
        sl = ta.sl
        last = (tb.j == 7)
        if sl == 0 and last and ta.hd == 0:
            load_qfrags(cfg.Q1B)
        AR = [TT, [4, 5, 6, 7]]
        for n, t in enumerate((ta, tb)):
            for dt in range(4):
                V(e, f"v_add_u32 v{AR[n][dt]}, {t.addr}, v{vA[dt]}", [AR[n][dt]], [vA[dt]])
        pairs = [(q, dt) for q in range(4) for dt in range(4)]
        def rd(i):
            q, dt = pairs[i]
            n, ks = q // 2, q % 2
            for h in range(2):
                dsrtr(e, FR + 4 * (i % 12) + 2 * h, AR[n][dt], ks * 4096 + h * 2048)
        def mm(i):
            q, dt = pairs[i]
            P = SB + 8 * (2 * ta.j + q)
            first = (ta.j == 0 and q == 0)
            mfma16(e, OACC + 4 * dt, FR + 4 * (i % 12), P, None if first else OACC + 4 * dt)
            if sl == 0 and dt == 3:
                mfma16(e, LACC, ONES, P, None if first else LACC)
        for i in range(12): rd(i)
        if cfg.b_pos == 0: do_issue(tk)
        if sl == 0:
            if ta.j == 0:
                softmax_fin_deferred()
                for f in explist(0): f()
            elif not cfg.exp_ahead:
                for f in explist(2 * ta.j): f()
        for q in range(4):
            nxt = []
            if sl == 0:
                sp_next = 2 * ta.j + q + 1
                if q < 3 or (cfg.exp_ahead and sp_next < 16):
                    nxt = explist(sp_next)
            for dt in range(4):
                i = 4 * q + dt
                mm(i)
                if i + 12 < 16: rd(i + 12)
                for f in nxt[5 * dt:5 * dt + 5]: f()
            if cfg.b_pos == q + 1: do_issue(tk)
        if last:
            if sl == 0:
                e.I(f"v_rcp_f32 v{vinvl}, v{LACC}", 'trans', w=[vinvl], r=[LACC])
            for dt in range(4):
                o = OACC + 4 * dt
                for i in range(4):
                    V(e, f"v_mul_f32 v{o+i}, v{o+i}, v{vinvl}", [o + i], [o + i, vinvl])
                cvtpk(e, o, o, o + 1)
                cvtpk(e, o + 1, o + 2, o + 3)
                dsw64(e, oA[dt], o, 0)

    def softmax_fin_deferred():
        maxtile(14); maxtile(15)
        u = 27
        V(e, f"v_mov_b32 v{u}, v{vm}", [u], [vm])
        e.I(f"v_permlane32_swap_b32 v{u}, v{vm}", 'permlane', w=[u, vm], r=[u, vm])
        V(e, f"v_max_f32 v{vm}, v{vm}, v{u}", [vm], [vm, u])
        V(e, f"v_mov_b32 v{u}, v{vm}", [u], [vm])
        e.I(f"v_permlane16_swap_b32 v{u}, v{vm}", 'permlane', w=[u, vm], r=[u, vm])
        V(e, f"v_max_f32 v{vm}, v{vm}, v{u}", [vm], [vm, u])
        V(e, f"v_mul_f32 v{vmc}, s{S_C}, v{vm}", [vmc], [vm])

    for tk in range(0, S['nticks']):
        if tk > 0:
            e.comment(f"---- B tick {tk}")
            if cfg.prof:
                e.raw("    s_memtime s[80:81]")
                e.raw("    s_waitcnt lgkmcnt(0)")
                e.lgkm = []
            e.barrier()
            if cfg.prof:
                e.raw(f"    v_writelane_b32 v31, s80, {tk}")
            ts = cons.get(tk)
            fine.cur = tk
            if ts is None:
                do_issue(tk)
            elif ts[0].kind == 'k':
                qk2(ts[0], ts[1], tk)
            else:
                pv2(ts[0], ts[1], tk)
        if tk == 0: stamp(e, cfg, 3)
        lstamp2(e, cfg, 1, 0, tk, S)
        for t in needB.get(tk + 1, []):
            e.wait_tile(t)
        lstamp2(e, cfg, 1, 1, tk, S)
        if tk == 0: stamp(e, cfg, 4)
    if cfg.prof:
        e.raw("    s_memtime s[80:81]")
        e.raw("    s_waitcnt lgkmcnt(0)")
        e.raw(f"    v_writelane_b32 v31, s80, 63")
        e.raw(f"    v_writelane_b32 v31, s82, 0")
        for n in range(5):
            e.raw(f"    v_writelane_b32 v31, s{STAMPS[n]}, {56+n}")
        e.raw(f"    s_lshl_b32 s84, s{S_WG}, 3")
        e.raw(f"    s_add_u32 s84, s84, s{S_WAVE}")
        e.raw(f"    s_lshl_b32 s84, s84, 10")
        e.raw(f"    s_add_u32 s84, s84, {64<<20}")
        e.raw(f"    s_add_u32 s88, s{S_PTR+14}, s84")
        e.raw(f"    s_addc_u32 s89, s{S_PTR+15}, 0")
        e.raw(f"    s_and_b32 s89, s89, 0xffff")
        e.raw(f"    s_mov_b32 s90, 1024")
        e.raw(f"    s_mov_b32 s91, 0x20000")
        e.raw(f"    v_lshlrev_b32 v28, 2, v0")
        e.raw(f"    buffer_store_dword v31, v28, s[88:91], 0 offen")
        e.raw(f"    buffer_store_dword v29, v28, s[88:91], 0 offen offset:256")
        e.raw(f"    buffer_store_dword v30, v28, s[88:91], 0 offen offset:512")
    if cfg.inred:
        e.raw("    s_barrier")
        e.raw(f"    s_cmp_eq_u32 s{S_W}, 0")
        e.raw("    s_cbranch_scc0 L_Bwait")
        e.raw(f"    s_lshl_b32 s56, s{S_B}, 4")
        e.raw(f"    s_add_u32 s58, s{S_PTR+12}, s56")
        e.raw(f"    s_addc_u32 s59, s{S_PTR+13}, 0")
        e.raw("    v_mov_b32 v2, 0")
        e.raw("    v_mov_b32 v3, 1")
        e.raw("    s_mov_b64 s[60:61], exec")
        e.raw("    s_mov_b64 exec, 1")
        e.raw("    global_atomic_add v2, v3, s[58:59]")
        e.raw("    s_mov_b32 s62, 0")
        e.raw("L_poll:")
        e.raw("    global_load_dword v4, v2, s[58:59] sc1")
        e.raw("    s_waitcnt vmcnt(0)")
        e.raw("    v_readfirstlane_b32 s63, v4")
        e.raw("    s_add_u32 s62, s62, 1")
        e.raw("    s_nop 2")
        e.raw("    s_cmp_ge_u32 s63, 16")
        e.raw("    s_cbranch_scc1 L_polldone")
        e.raw(f"    s_cmp_ge_u32 s62, {cfg.spin_max}")
        e.raw("    s_cbranch_scc1 L_polldone")
        e.raw("    s_sleep 1")
        e.raw("    s_branch L_poll")
        e.raw("L_polldone:")
        e.raw("    s_mov_b64 exec, s[60:61]")
        e.raw("L_Bwait:")
        e.raw("    s_barrier")
        e.raw(f"    s_mov_b32 s56, s{S_W}")
        e.raw("    s_branch L_RED")
        e.nbar += 2
    else:
        e.raw("    s_endpgm")
    return e

def lstamp2(e, cfg, grp, kind, tk, S):
    if not cfg.prof or tk > 62 or tk < cfg.prof_from: return
    e.raw("    s_memtime s[96:97]")
    e.raw("    s_waitcnt lgkmcnt(0)")
    e.lgkm = []
    reg = {(0, 0): 91, (0, 1): 92, (1, 0): 29, (1, 1): 30}[(grp, kind)]
    e.raw(f"    v_writelane_b32 v{reg}, s96, {tk}")

def gen_A(cfg, S):
    e = Em('A')
    e.skip = cfg.skipA; e.skiptile = cfg.skiptile
    e.label("L_A")
    dreg = dict(K=[1, 2, 3], WQ=[4, 5, 6], X=[88, 89])
    wA = [7, 8, 9]; xA = [10, 11, 90, 91]; t0, t1, t2, t3 = 12, 13, 14, 15
    QACC = 32; XR = 96
    FS = [16, 20, 24, 28, 80, 84]
    calc_dX(e, dreg['X'], t0, t1)
    rest, lst = build_srds(e, cfg, 'X')
    issue, needA = plan(S, 'A')
    touches = {}
    if cfg.touch:
        touches.setdefault(cfg.touch_wq1, []).append(('wq1',))
        for t in S['WO']:
            if t.a == 0:
                touches.setdefault(max(cfg.touch_wq1 + 1, t.issue - cfg.touch_wo_lead), []).append(('wo', t.hd, t.sl))
    def do_issue(tk, part='all'):
        for t in issue.get(tk, []):
            early = (t.consume[0] - t.issue) <= cfg.early_lead
            if part == 'all' or (part == 'start') == early:
                dma_tile(e, t, cfg, dreg)
        if part == 'start': return
        for tc in touches.get(tk, []):
            if tc[0] == 'wq1':
                e.salu(f"s_mul_i32 s{S_T0}, s{S_B}, {40*12288}")
                e.salu(f"s_add_u32 s{S_T0}, s{S_T0}, s{S_WQCOL}")
                e.salu(f"s_add_u32 s{S_T0}, s{S_T0}, 384")
                e.I(f"buffer_load_dword v93, v94, s[{SRD_WQ}:{SRD_WQ+3}], s{S_T0} offen", 'vload', w=[93], r=[94])
            else:
                e.salu(f"s_mul_i32 s{S_T0}, s{S_B}, {40*128}")
                e.salu(f"s_add_u32 s{S_T0}, s{S_T0}, {(tc[1]*192 + 64*tc[2])*1280}")
                e.I(f"buffer_load_dword v93, v95, s[{SRD_WO}:{SRD_WO+3}], s{S_T0} offen", 'vload', w=[93], r=[95])
    stamp(e, cfg, 1)
    do_issue(0)
    stamp(e, cfg, 2)
    for k in rest: lst[k]()
    if cfg.touch:
        V(e, f"v_add_u32 v{t0}, s{S_W64}, v0", [t0], [0])
        V(e, f"v_mul_u32_u24 v{t1}, 171, v{t0}", [t1], [t0])
        V(e, f"v_lshrrev_b32 v{t1}, 9, v{t1}", [t1], [t1])
        V(e, f"v_mul_u32_u24 v{t2}, 3, v{t1}", [t2], [t1])
        V(e, f"v_sub_u32 v{t2}, v{t0}, v{t2}", [t2], [t0, t2])
        V(e, f"v_lshlrev_b32 v{t2}, 7, v{t2}", [t2], [t2])
        e.salu(f"s_mov_b32 s{S_T1}, 12288")
        V(e, f"v_mul_lo_u32 v{t1}, v{t1}, s{S_T1}", [t1], [t1])
        V(e, f"v_add_u32 v{t1}, v{t1}, v{t2}", [t1], [t1, t2])
        V(e, f"v_cmp_gt_u32 vcc, 120, v{t0}", ['vcc'], [t0])
        V(e, f"v_mov_b32 v{t2}, 0x7fffffff", [t2])
        e.valu(f"v_cndmask_b32 v94, v{t2}, v{t1}, vcc", w=[94], r=[t1, t2, 'vcc'])
        V(e, f"v_lshlrev_b32 v{t1}, 7, v{t0}", [t1], [t0])
        V(e, f"v_cmp_gt_u32 vcc, 40, v{t0}", ['vcc'], [t0])
        e.valu(f"v_cndmask_b32 v95, v{t2}, v{t1}, vcc", w=[95], r=[t1, t2, 'vcc'])
    calc_dK(e, dreg['K'], t0, t1)
    calc_dWQ(e, dreg['WQ'], t0, t1, t2)
    V(e, f"v_lshrrev_b32 v{t0}, 5, v0", [t0], [0])
    V(e, f"v_lshlrev_b32 v{t0}, 3, v{t0}", [t0], [t0])
    V(e, f"v_bfe_u32 v{t1}, v0, 2, 2", [t1], [0])
    V(e, f"v_add_u32 v{t0}, v{t0}, v{t1}", [t0], [t0, t1])
    V(e, f"v_mul_u32_u24 v{t0}, 384, v{t0}", [t0], [t0])
    V(e, f"v_and_b32 v{t2}, 1, v0", [t2], [0])
    V(e, f"v_lshlrev_b32 v{t2}, 3, v{t2}", [t2], [t2])
    V(e, f"v_add_u32 v{t0}, v{t0}, v{t2}", [t0], [t0, t2])
    V(e, f"v_and_b32 v{t1}, 2, v{t1}", [t1], [t1])
    V(e, f"v_lshlrev_b32 v{t1}, 1, v{t1}", [t1], [t1])
    V(e, f"v_bfe_u32 v{t2}, v0, 4, 1", [t2], [0])
    V(e, f"v_lshlrev_b32 v{t2}, 1, v{t2}", [t2], [t2])
    V(e, f"v_bfe_u32 v{t3}, v0, 1, 1", [t3], [0])
    V(e, f"v_add_u32 v{t2}, v{t2}, v{t3}", [t2], [t2, t3])
    V(e, f"v_add_u32 v{t2}, s{S_DH12}, v{t2}", [t2], [t2])
    for j in range(3):
        V(e, f"v_add_u32 v{t3}, {4*j}, v{t2}", [t3], [t2])
        V(e, f"v_xor_b32 v{t3}, v{t3}, v{t1}", [t3], [t3, t1])
        V(e, f"v_lshlrev_b32 v{t3}, 4, v{t3}", [t3], [t3])
        V(e, f"v_add_u32 v{wA[j]}, v{t0}, v{t3}", [wA[j]], [t0, t3])
    e.salu(f"s_and_b32 s{S_T0}, s{S_W}, 1")
    e.salu(f"s_lshl_b32 s{S_T1}, s{S_T0}, 5")
    V(e, f"v_and_b32 v{t0}, 31, v0", [t0], [0])
    V(e, f"v_add_u32 v{t0}, s{S_T1}, v{t0}", [t0], [t0])
    V(e, f"v_bfe_u32 v{t1}, v{t0}, 1, 3", [t1], [t0])
    V(e, f"v_lshrrev_b32 v{t2}, 5, v0", [t2], [0])
    V(e, f"v_lshlrev_b32 v{t0}, 7, v{t0}", [t0], [t0])
    V(e, f"v_add_u32 v{t0}, {cfg.xbase}, v{t0}", [t0], [t0])
    for m in range(4):
        V(e, f"v_add_u32 v{t3}, {2*m}, v{t2}", [t3], [t2])
        V(e, f"v_xor_b32 v{t3}, v{t3}, v{t1}", [t3], [t3, t1])
        V(e, f"v_lshlrev_b32 v{t3}, 4, v{t3}", [t3], [t3])
        V(e, f"v_add_u32 v{xA[m]}, v{t0}, v{t3}", [xA[m]], [t0, t3])

    consA = {}
    for t in S['W0'] + S['W1t']:
        consA.setdefault(t.consume[0], []).append(t)
    woc = {}
    for t in S['WO']:
        woc.setdefault(t.consume[0], []).append(t)

    st = {'wB': False}
    wBr = [t0, t1, t2]
    def qproj2(ts, tk):
        regs = []
        for n, t in enumerate(ts):
            if t.addr + 12288 > 65536:
                if not st['wB']:
                    for j in range(3):
                        V(e, f"v_add_u32 v{wBr[j]}, 32768, v{wA[j]}", [wBr[j]], [wA[j]])
                    st['wB'] = True
                regs.append((wBr, t.addr - 32768))
            else:
                regs.append((wA, t.addr))
        def reads(q):
            n, s = q // 2, q % 2
            t = ts[n]
            if t.hd == 0:
                m = q
                xo = (t.i // 2) * 8192
                if xo >= 65536:
                    V(e, f"v_add_u32 v{t3}, 65536, v{xA[m]}", [t3], [xA[m]])
                    dsr128(e, XR + 4 * (2 * t.i + s), t3, xo - 65536)
                else:
                    dsr128(e, XR + 4 * (2 * t.i + s), xA[m], xo)
            wr, wb = regs[n]
            for j in range(3):
                for h in range(2):
                    dsrtr(e, FS[3 * (q % 2) + j] + 2 * h, wr[j], wb + s * 16 * 384 + h * 4 * 384)
        def mm(q):
            n, s = q // 2, q % 2
            t = ts[n]
            for j in range(3):
                d = QACC + 16 * j
                mfma32(e, d, FS[3 * (q % 2) + j], XR + 4 * (2 * t.i + s), None if (t.i == 0 and s == 0) else d)
        def rdx(q):
            n, s_ = q // 2, q % 2
            t = ts[n]
            if t.hd == 0:
                xo = (t.i // 2) * 8192
                if xo >= 65536:
                    V(e, f"v_add_u32 v{t3}, 65536, v{xA[q]}", [t3], [xA[q]])
                    dsr128(e, XR + 4 * (2 * t.i + s_), t3, xo - 65536)
                else:
                    dsr128(e, XR + 4 * (2 * t.i + s_), xA[q], xo)
        def rdw(q, j):
            n, s_ = q // 2, q % 2
            wr, wb = regs[n]
            for h in range(2):
                dsrtr(e, FS[3 * (q % 2) + j] + 2 * h, wr[j], wb + s_ * 16 * 384 + h * 4 * 384)
        def mm1(q, j):
            n, s_ = q // 2, q % 2
            t = ts[n]
            d = QACC + 16 * j
            mfma32(e, d, FS[3 * (q % 2) + j], XR + 4 * (2 * t.i + s_), None if (t.i == 0 and s_ == 0) else d)
        rdx(0)
        for j in range(3): rdw(0, j)
        rdx(1)
        for j in range(3): rdw(1, j)
        rdx(2); rdx(3)
        do_issue(tk, 'start')
        for q in range(4):
            for j in range(3):
                mm1(q, j)
                if q + 2 < 4: rdw(q + 2, j)
        do_issue(tk, 'end')

    def qfin(qb):
        st['wB'] = False
        e.salu(f"s_and_b32 s{S_T0}, s{S_W}, 1")
        e.salu(f"s_lshl_b32 s{S_T1}, s{S_T0}, 5")
        V(e, f"v_and_b32 v{t0}, 31, v0", [t0], [0])
        V(e, f"v_add_u32 v{t0}, s{S_T1}, v{t0}", [t0], [t0])
        V(e, f"v_bfe_u32 v{t1}, v{t0}, 1, 3", [t1], [t0])
        V(e, f"v_mul_u32_u24 v{t0}, 384, v{t0}", [t0], [t0])
        V(e, f"v_lshrrev_b32 v{t2}, 5, v0", [t2], [0])
        V(e, f"v_lshlrev_b32 v{t2}, 3, v{t2}", [t2], [t2])
        V(e, f"v_add_u32 v{t0}, v{t0}, v{t2}", [t0], [t0, t2])
        if qb:
            V(e, f"v_add_u32 v{t0}, {qb}, v{t0}", [t0], [t0])
        for j in range(3):
            for g in range(4):
                a = QACC + 16 * j + 4 * g
                cvtpk(e, a, a, a + 1)
                cvtpk(e, a + 1, a + 2, a + 3)
                e.salu(f"s_add_u32 s{S_T0}, s{S_DH12}, {4*j+g}")
                tt = t2 if g % 2 == 0 else t3
                V(e, f"v_xor_b32 v{tt}, s{S_T0}, v{t1}", [tt], [t1])
                V(e, f"v_lshl_add_u32 v{tt}, v{tt}, 4, v{t0}", [tt], [tt, t0])
                dsw64(e, tt, a, 0)

    dWO = [1, 2, 3, 88, 89]; woA = [6, 7, 8, 9]; ofA = [10, 11, 12, 13]
    OF = 32
    AS = [48, 52, 56, 60, 64, 68, 72, 76, 80, 84, 88, 92]
    OUT = XR
    def setup_out1():
        calc_dWO(e, dWO, 15, 90)
        dreg['WO'] = dWO
    def setup_out2():
        a0, a1, a2, a3 = 20, 21, 22, 23
        V(e, f"v_lshrrev_b32 v{a0}, 5, v0", [a0], [0])
        V(e, f"v_lshlrev_b32 v{a0}, 3, v{a0}", [a0], [a0])
        V(e, f"v_bfe_u32 v{a1}, v0, 2, 2", [a1], [0])
        V(e, f"v_add_u32 v{a0}, v{a0}, v{a1}", [a0], [a0, a1])
        V(e, f"v_mul_u32_u24 v{a0}, 1280, v{a0}", [a0], [a0])
        V(e, f"v_bfe_u32 v{a2}, v0, 1, 1", [a2], [0])
        V(e, f"v_lshlrev_b32 v{a2}, 3, v{a2}", [a2], [a2])
        V(e, f"v_add_u32 v{a0}, v{a0}, v{a2}", [a0], [a0, a2])
        V(e, f"v_bfe_u32 v{a2}, v0, 4, 1", [a2], [0])
        V(e, f"v_lshlrev_b32 v{a2}, 1, v{a2}", [a2], [a2])
        V(e, f"v_and_b32 v{a3}, 1, v0", [a3], [0])
        V(e, f"v_add_u32 v{a2}, v{a2}, v{a3}", [a2], [a2, a3])
        V(e, f"v_lshl_add_u32 v{a0}, v{a2}, 4, v{a0}", [a0], [a2, a0])
        e.salu(f"s_lshr_b32 s{S_T0}, s{S_W}, 1")
        e.salu(f"s_mul_i32 s{S_T0}, s{S_T0}, 10")
        for j in range(4):
            e.salu(f"s_add_u32 s{S_T1}, s{S_T0}, {j}")
            V(e, f"v_xor_b32 v{a2}, s{S_T1}, v{a1}", [a2], [a1])
            V(e, f"v_lshl_add_u32 v{woA[j]}, v{a2}, 6, v{a0}", [woA[j]], [a2, a0])
        e.salu(f"s_and_b32 s{S_T0}, s{S_W}, 1")
        e.salu(f"s_lshl_b32 s{S_T1}, s{S_T0}, 5")
        V(e, f"v_and_b32 v{a0}, 31, v0", [a0], [0])
        V(e, f"v_add_u32 v{a0}, s{S_T1}, v{a0}", [a0], [a0])
        V(e, f"v_bfe_u32 v{a1}, v{a0}, 1, 3", [a1], [a0])
        V(e, f"v_lshlrev_b32 v{a0}, 7, v{a0}", [a0], [a0])
        V(e, f"v_add_u32 v{a0}, {cfg.OB}, v{a0}", [a0], [a0])
        V(e, f"v_lshrrev_b32 v{a2}, 5, v0", [a2], [0])
        for ss in range(4):
            V(e, f"v_add_u32 v{a3}, {2*ss}, v{a2}", [a3], [a2])
            V(e, f"v_xor_b32 v{a3}, v{a3}, v{a1}", [a3], [a3, a1])
            V(e, f"v_lshl_add_u32 v{ofA[ss]}, v{a3}, 4, v{a0}", [ofA[ss]], [a3, a0])

    wost = {}
    def wo_reads(t, js, slots):
        if t.addr + 20480 <= 65536:
            regs, base = woA, t.addr
        else:
            key = t.addr
            if key not in wost:
                sets_ = [[16, 17, 18, 19], [20, 21, 22, 23], [24, 25, 26, 27], [28, 29, 30, 31]]
                idx = wost.get('n', 0)
                regs = sets_[idx % 4]
                for k2 in [k for k, v in wost.items() if k != 'n' and v is regs]:
                    del wost[k2]
                wost['n'] = idx + 1
                for j in range(4):
                    V(e, f"v_add_u32 v{regs[j]}, {t.addr}, v{woA[j]}", [regs[j]], [woA[j]])
                wost[key] = regs
            regs, base = wost[key], 0
        for j, sl in zip(js, slots):
            areg = regs[j % 4]
            for h in range(2):
                dsrtr(e, sl + 2 * h, areg, base + h * 4 * 1280 + (j // 4) * 256)

    def outproj(t, tk):
        first_ever = (t.hd == 0 and t.sl == 0 and t.a == 0)
        if t.a == 0:
            for ss in range(4):
                dsr128(e, OF + 4 * ss, ofA[ss], 0)
        wo_reads(t, list(range(10)), AS[:10])
        do_issue(tk, 'start')
        for j in range(10):
            d = OUT + 16 * j
            mfma32(e, d, AS[j], OF + 4 * t.a, None if first_ever else d)
        do_issue(tk, 'end')

    def outproj_final(ts, tk):
        sl_ = ts[0].sl
        for ss in range(4):
            dsr128(e, OF + 4 * ss, ofA[ss], 0)
        tl = sorted(ts, key=lambda t: t.a)
        sv = 14
        V(e, f"v_lshlrev_b32 v{sv}, 4, v0", [sv], [0])
        e.salu(f"s_mul_i32 s{S_T2}, s{S_W}, {20*1024}")
        sets = [AS[0:4], AS[4:8], AS[8:12]]
        def reads(j):
            for a in range(4):
                wo_reads(tl[a], [j], [sets[j % 3][a]])
        def store(j):
            d = OUT + 16 * j
            for o in range(2):
                b = d + 8 * o
                for i in range(4):
                    cvtpk(e, b + i, b + 2 * i, b + 2 * i + 1)
                e.salu(f"s_add_u32 s{S_T3}, s{S_T2}, {(2*j+o)*1024}")
                e.I(f"buffer_store_dwordx4 {vr(b,4)}, v{sv}, s[{SRD_P}:{SRD_P+3}], s{S_T3} offen{cfg.st_flags}", 'vstore', r=R(b, 4) + [sv])
        reads(0); reads(1)
        for j in range(10):
            if j + 2 < 10:
                reads(j + 2)
            d = OUT + 16 * j
            for a in range(4):
                mfma32(e, d, sets[j % 3][a], OF + 4 * a, d)
            if j >= 2:
                store(j - 2)
        store(8); store(9)

    for tk in range(0, S['nticks']):
        if tk > 0:
            e.comment(f"---- A tick {tk}")
            e.barrier()
            if tk in consA:
                qproj2(consA[tk], tk)
            elif tk == S['tQ0']:
                qfin(cfg.Q0B); do_issue(tk); setup_out1()
            elif tk == S['tQ1']:
                qfin(cfg.Q1B)
                do_issue(tk)
            elif tk == S['tQ1'] + 1:
                setup_out2()
                do_issue(tk)
                assert tk not in woc
            elif tk in woc:
                lst_ = woc[tk]
                if len(lst_) == 1:
                    outproj(lst_[0], tk)
                else:
                    do_issue(tk)
                    if cfg.prof:
                        e.raw("    v_lshlrev_b32 v14, 2, v0")
                        e.raw("    v_add_u32 v14, 65536, v14")
                        e.raw(f"    s_lshr_b32 s84, s{S_W1024}, 1")
                        e.raw("    v_add_u32 v14, s84, v14")
                        e.raw("    ds_write_b32 v14, v91 offset:0")
                        e.raw("    ds_write_b32 v14, v92 offset:256")
                        e.raw("    s_waitcnt lgkmcnt(0)")
                    outproj_final(lst_, tk)
                    if cfg.prof:
                        e.raw("    s_waitcnt lgkmcnt(0)")
                        e.lgkm = []
                        e.raw("    v_lshlrev_b32 v15, 2, v0")
                        e.raw("    v_add_u32 v15, 65536, v15")
                        e.raw(f"    s_lshr_b32 s84, s{S_W1024}, 1")
                        e.raw("    v_add_u32 v15, s84, v15")
                        e.raw("    s_waitcnt vmcnt(0)")
                        e.vm = []
                        e.raw("    ds_read_b32 v91, v15 offset:0")
                        e.raw("    ds_read_b32 v92, v15 offset:256")
                        e.raw("    s_waitcnt lgkmcnt(0)")
            else:
                do_issue(tk)
        if tk == 0: stamp(e, cfg, 3)
        if tk < S['nticks'] - 1: lstamp2(e, cfg, 0, 0, tk, S)
        for t in needA.get(tk + 1, []):
            e.wait_tile(t)
        if tk < S['nticks'] - 1: lstamp2(e, cfg, 0, 1, tk, S)
        if tk == 0: stamp(e, cfg, 4)
    if cfg.prof:
        e.raw("    s_memtime s[80:81]")
        e.raw("    s_waitcnt vmcnt(0)")
        e.raw("    s_memtime s[86:87]")
        e.raw("    s_memrealtime s[10:11]")
        e.raw("    s_getreg_b32 s12, hwreg(HW_REG_XCC_ID)")
        e.raw("    s_waitcnt lgkmcnt(0)")
        e.raw(f"    s_lshl_b32 s84, s{S_WG}, 3")
        e.raw(f"    s_add_u32 s84, s84, s{S_WAVE}")
        e.raw(f"    s_lshl_b32 s84, s84, 10")
        e.raw(f"    s_add_u32 s84, s84, {64<<20}")
        e.raw(f"    s_add_u32 s88, s{S_PTR+14}, s84")
        e.raw(f"    s_addc_u32 s89, s{S_PTR+15}, 0")
        e.raw(f"    s_and_b32 s89, s89, 0xffff")
        e.raw(f"    s_mov_b32 s90, 1024")
        e.raw(f"    s_mov_b32 s91, 0x20000")
        e.raw(f"    v_writelane_b32 v91, s82, 0")
        e.raw(f"    v_writelane_b32 v91, s80, 1")
        e.raw(f"    v_writelane_b32 v91, s86, 2")
        e.raw(f"    v_writelane_b32 v91, s8, 8")
        e.raw(f"    v_writelane_b32 v91, s10, 9")
        e.raw(f"    v_writelane_b32 v91, s12, 10")
        for n in range(5):
            e.raw(f"    v_writelane_b32 v91, s{STAMPS[n]}, {3+n}")
        e.raw(f"    v_lshlrev_b32 v28, 2, v0")
        e.raw(f"    buffer_store_dword v91, v28, s[88:91], 0 offen offset:256")
        e.raw(f"    buffer_store_dword v92, v28, s[88:91], 0 offen offset:512")
    if cfg.inred:
        e.raw("    s_waitcnt vmcnt(0)")
        e.raw("    s_barrier")
        e.raw("    s_barrier")
        e.raw(f"    s_cmp_eq_u32 s{S_W}, 0")
        e.raw("    s_cbranch_scc0 L_exit")
        e.raw("    s_mov_b32 s56, 4")
        e.raw("    s_branch L_RED")
        e.nbar += 2
    else:
        e.raw("    s_endpgm")
    return e

def gen_red(cfg):
    L = []
    A = lambda t: L.append("    " + t)
    L.append("L_RED:")
    A(f"s_mul_i32 s57, s{S_HP}, 5")
    A("s_add_u32 s57, s57, s56")
    A(f"s_mul_i32 s58, s{S_B}, {16*81920}")
    A(f"s_add_u32 s32, s{S_PTR+14}, s58")
    A(f"s_addc_u32 s33, s{S_PTR+15}, 0")
    A("s_and_b32 s33, s33, 0xffff")
    A(f"s_mov_b32 s34, {16*81920}")
    A("s_mov_b32 s35, 0x20000")
    A("s_lshl_b32 s59, s57, 10")
    A("v_lshlrev_b32 v2, 4, v0")
    A("v_add_u32 v2, s59, v2")
    for h in range(16):
        A(f"s_mov_b32 s{60+h}, {h*81920}")
    for h in range(16):
        A(f"buffer_load_dwordx4 v[{8+4*h}:{11+4*h}], v2, s[32:35], s{60+h} offen sc1")
    A("s_mul_hi_u32 s40, s57, 214748365")
    A("s_mul_i32 s41, s40, 20")
    A("s_sub_u32 s41, s57, s41")
    A("s_and_b32 s42, s40, 1")
    A("s_lshr_b32 s43, s40, 1")
    A("s_mul_i32 s43, s43, 320")
    A("s_lshl_b32 s41, s41, 4")
    A("s_add_u32 s43, s43, s41")
    A("s_lshl_b32 s42, s42, 5")
    A(f"s_lshl_b32 s44, s{S_B}, 6")
    A("s_add_u32 s42, s42, s44")
    A("s_mul_i32 s42, s42, 1280")
    A("s_lshl_b32 s43, s43, 1")
    A("s_add_u32 s42, s42, s43")
    A("v_and_b32 v3, 31, v0")
    A("v_mul_u32_u24 v3, 1280, v3")
    A("v_lshrrev_b32 v4, 5, v0")
    A("v_lshlrev_b32 v4, 4, v4")
    A("v_add_u32 v3, v3, v4")
    A(f"s_mov_b32 s44, s{S_PTR+10}")
    A(f"s_and_b32 s45, s{S_PTR+11}, 0xffff")
    A(f"s_mov_b32 s46, {16*64*640*2}")
    A("s_mov_b32 s47, 0x20000")
    for h in range(16):
        A(f"s_waitcnt vmcnt({15-h})")
        for i in range(4):
            src = 8 + 4 * h + i
            if h == 0:
                A(f"v_lshlrev_b32 v{72+2*i}, 16, v{src}")
                A(f"v_and_b32 v{73+2*i}, 0xffff0000, v{src}")
            else:
                A(f"v_lshlrev_b32 v5, 16, v{src}")
                A(f"v_and_b32 v6, 0xffff0000, v{src}")
                A(f"v_add_f32 v{72+2*i}, v{72+2*i}, v5")
                A(f"v_add_f32 v{73+2*i}, v{73+2*i}, v6")
    for i in range(4):
        A(f"v_cvt_pk_bf16_f32 v{80+i}, v{72+2*i}, v{73+2*i}")
    A("buffer_store_dwordx4 v[80:83], v3, s[44:47], s42 offen")
    A("s_endpgm")
    return L

def generate(cfg, fn):
    S = build_schedule(cfg)
    P = prologue(cfg); A = gen_A(cfg, S); B = gen_B(cfg, S)
    assert A.nbar == B.nbar, (A.nbar, B.nbar)
    L = []
    if cfg.inred:
        L.append(f"; @launch grid=(256,1,1) block=(512,1,1) lds=163840")
    else:
        L.append(f"; @launch kernel={KN} grid=(256,1,1) block=(512,1,1) lds=163840")
        L.append(f"; @launch kernel={KN2} grid=(320,1,1) block=(256,1,1) lds=0")
    L.append('.amdgcn_target "amdgcn-amd-amdhsa--gfx950"')
    L.append(".text")
    L.append(f".globl {KN}")
    L.append(".p2align 8")
    L.append(f".type {KN},@function")
    L.append(f"{KN}:")
    L += P.lines + A.lines + B.lines
    if cfg.inred:
        L += gen_red(cfg)
    L.append("L_exit:")
    L.append("    s_endpgm")
    if not cfg.inred:
        L += gen_reduce()
    L.append('.section .rodata,"a"')
    L.append(".p2align 6")
    L += kd(KN, 256)
    if not cfg.inred:
        L.append(".p2align 6")
        L += kd(KN2, 88)
    open(fn, "w").write("\n".join(L) + "\n")
    print("ticks", S['nticks'], "A instr", A.ninstr, A.stats, "B instr", B.ninstr, B.stats, file=sys.stderr)
    return S

if __name__ == "__main__":
    cfg = Cfg()
    cfg.prof_lds = 72 * 1024 if False else 79 * 1024
    cfg.prof_from = 12
    cfg.prof_t = {0: (14, 15), 1: (28, 29)}
    cfg.final_addr = [136 * 1024, 0, 20 * 1024, 40 * 1024]
    if "--prof" in sys.argv: cfg.prof = True
    for a in sys.argv[2:]:
        if "=" in a:
            k, v = a.split("=", 1)
            setattr(cfg, k, eval(v))
    S = generate(cfg, sys.argv[1] if len(sys.argv) > 1 else "k4.s")
    if "-v" in sys.argv:
        for t in S['allt']:
            print(t.name, hex(t.addr), "issue", t.issue, "by", t.by, "consume", t.consume)
```

```python
import sys, struct
from emit import Em, vr, sr, R

KN = "standalone__gqa_block_cached__near_ridge_kernel"
KN2 = "gqa_reduce_kernel"

def f32(x):
    return struct.unpack("<I", struct.pack("<f", x))[0]

class Cfg:
    dbg = None
    nt_kv = True
    w0_slots = 5
    w0_first = 2
    w0_lead = 4
    x_slots = 3
    xbase = 64 * 1024
    x_issue = [0, 0, 0, 3, 5, 7, 9, 11, 13, 15]
    kpre = 6
    kpre_ticks = [2, 4, 6, 8, 10, 12, 14, 16]
    W1 = 24576
    WSZ = 65536
    HB = 88 * 1024
    HSZ = 72 * 1024
    k_lead = 99
    v_lead = 99
    wo_lead = 99
    final_addr = [136 * 1024, 64 * 1024, 88 * 1024, 24 * 1024]
    rot = True
    touch_wq1 = 8
    touch_wo_lead = 10
    touch = True
    prof = False

QO = 0

S_WG = 2; S_WAVE = 3; S_W = 4; S_B = 5; S_HP = 6; S_ROT = 7
S_PTR = 16
SRD_K = 32; SRD_V = 36; SRD_WQ = 40; SRD_X = 44; SRD_WO = 48; SRD_P = 52
S_W3072 = 60; S_W1024 = 61; S_W2048 = 62; S_W5120 = 63; S_WQCOL = 64; S_C = 65
S_T0 = 66; S_T1 = 67; S_T2 = 68; S_T3 = 69; S_KT = 70; S_W6144 = 71; S_DH12 = 72; S_W64 = 73

class Tile:
    def __init__(s, kind, name, addr, size, **kw):
        s.kind = kind; s.name = name; s.addr = addr; s.size = size
        s.consume = []
        s.issue = None; s.by = None
        s.__dict__.update(kw)
    def __repr__(s): return s.name

def build_schedule(cfg):
    T0 = 1
    HB, HSZ, W1 = cfg.HB, cfg.HSZ, cfg.W1
    X = []
    for j in range(10):
        t = Tile('x', f"x_{j}", cfg.xbase + (j % cfg.x_slots) * 8192, 8192, j=j)
        t.consume = [T0 + 2 * j, T0 + 2 * j + 1]; t.by = 'A'
        t.earliest = cfg.x_issue[j]
        X.append(t)
    W0 = []
    for i in range(20):
        t = Tile('w0', f"w0_{i}", (i % cfg.w0_slots) * 12288, 12288, hd=0, i=i)
        t.consume = [T0 + i]; t.by = 'B'
        t.earliest = max(1, T0 + i - cfg.w0_lead) if i >= cfg.w0_first else 0
        W0.append(t)
    tQ0 = T0 + 20
    tK0 = tQ0 + 1
    H = []
    pos = 0
    tk = tK0
    info = {}
    for hd in range(2):
        info[('k', hd)] = tk
        for j in range(16):
            assert pos + 12288 <= HSZ
            t = Tile('k', f"k{hd}_{j}", HB + pos, 12288, hd=hd, j=j)
            pos = (pos + 12288) % HSZ
            t.consume = [tk]; tk += 1; t.by = 'B'
            t.earliest = max(0, t.consume[0] - cfg.k_lead)
            H.append(t)
        info[('v', hd)] = tk
        for sl in range(3):
            for j in range(8):
                assert pos + 8192 <= HSZ
                t = Tile('v', f"v{hd}_{sl}_{j}", HB + pos, 8192, hd=hd, sl=sl, j=j)
                pos = (pos + 8192) % HSZ
                t.consume = [tk]; tk += 1; t.by = 'B'
                t.earliest = max(0, t.consume[0] - cfg.v_lead)
                H.append(t)
    for n, t in enumerate(H[:cfg.kpre]):
        t.by = 'A'
        t.earliest = cfg.kpre_ticks[n]
    tEnd = tk
    W1t = []
    tq1 = tK0 + 2
    nq1 = cfg.WSZ // 12288
    for i in range(20):
        t = Tile('wq1', f"wq1_{i}", W1 + (i % nq1) * 12288, 12288, hd=1, i=i)
        t.consume = [tq1 + i]; t.by = 'A'
        t.earliest = 0
        W1t.append(t)
    tQ1 = tq1 + 20
    v0 = info[('v', 0)]
    assert tQ1 < v0 + 7, (tQ1, v0)
    WO = []
    slot = 0
    nwo = cfg.WSZ // 20480
    for hd in range(2):
        vstart = info[('v', hd)]
        for sl in range(3):
            tO = vstart + 8 * sl + 7
            for a in range(4):
                final = (hd == 1 and sl == 2)
                if final:
                    addr = cfg.final_addr[a]
                    t = Tile('wo', f"wo{hd}_{sl}_{a}", addr, 20480, hd=hd, sl=sl, a=a)
                    t.consume = [tO + 1]
                else:
                    t = Tile('wo', f"wo{hd}_{sl}_{a}", W1 + (slot % nwo) * 20480, 20480, hd=hd, sl=sl, a=a)
                    slot += 1
                    t.consume = [tO + 1 + 2 * a, tO + 2 + 2 * a]
                t.by = 'A'
                t.earliest = max(tQ1, t.consume[0] - cfg.wo_lead)
                WO.append(t)
    nticks = tEnd + 1
    free_at = [0] * 160
    streams = [X, W0, H, W1t, WO]
    allt = sorted([t for s in streams for t in s], key=lambda t: (t.consume[0], t.name))
    last_issue = {}
    for t in allt:
        lo = t.addr // 1024; hi = (t.addr + t.size) // 1024
        e = max(free_at[lo:hi])
        key = t.kind if t.kind in ('x', 'w0', 'wq1', 'wo') else 'h'
        if not getattr(t, 'noorder', False):
            e = max(e, last_issue.get(key, 0))
        e = max(e, t.earliest)
        t.issue = e
        last_issue[key] = e
        assert t.issue < t.consume[0], (t, t.issue, t.consume)
        for k in range(lo, hi):
            free_at[k] = t.consume[-1] + 1
        if t.kind not in ('w0',) and lo < 24:
            raise Exception("overlaps QO " + t.name)
    for t in W0:
        if t.addr < 24576:
            assert t.consume[-1] < tQ0
    return dict(nticks=nticks, X=X, W0=W0, H=H, W1t=W1t, WO=WO, tQ0=tQ0, tQ1=tQ1, info=info, tEnd=tEnd, allt=allt)

def dma_tile(e, t, cfg, dreg):
    nt = getattr(cfg, "kv_flags", " nt") if cfg.nt_kv else ""
    if t.kind == 'k':
        e.salu(f"s_add_u32 m0, s{S_W3072}, {t.addr}", w=['m0'])
        e.salu(f"s_mov_b32 s{S_T0}, {t.hd*196608 + t.j*12288}", w=[f's{S_T0}'])
        for p in range(3):
            off = f" offset:{1024*p}" if p else ""
            e.I(f"buffer_load_dwordx4 v{dreg['K'][p]}, s[{SRD_K}:{SRD_K+3}], s{S_T0} offen{off}{nt} lds", 'dma', r=[dreg['K'][p], 'm0'], tag=t)
    elif t.kind == 'v':
        e.salu(f"s_add_u32 m0, s{S_W2048}, {t.addr}", w=['m0'])
        e.salu(f"s_mov_b32 s{S_T0}, {t.hd*196608 + t.j*64*384 + t.sl*128}", w=[f's{S_T0}'])
        for p in range(2):
            off = f" offset:{1024*p}" if p else ""
            e.I(f"buffer_load_dwordx4 v{dreg['V'][p]}, s[{SRD_V}:{SRD_V+3}], s{S_T0} offen{off}{nt} lds", 'dma', r=[dreg['V'][p], 'm0'], tag=t)
    elif t.kind in ('w0', 'wq1'):
        if cfg.rot:
            e.salu(f"s_add_u32 s{S_KT}, s{S_ROT}, {t.i}")
            e.salu(f"s_sub_u32 s{S_T1}, s{S_KT}, 20")
            e.salu(f"s_cmp_ge_u32 s{S_KT}, 20")
            e.salu(f"s_cselect_b32 s{S_KT}, s{S_T1}, s{S_KT}")
            e.salu(f"s_mul_i32 s{S_T0}, s{S_KT}, {32*12288}")
            e.salu(f"s_add_u32 s{S_T0}, s{S_T0}, s{S_WQCOL}")
            if t.hd:
                e.salu(f"s_add_u32 s{S_T0}, s{S_T0}, 384")
        else:
            e.salu(f"s_add_u32 s{S_T0}, s{S_WQCOL}, {t.i*32*12288 + t.hd*384}")
        e.salu(f"s_add_u32 m0, s{S_W3072}, {t.addr}", w=['m0'])
        for p in range(3):
            off = f" offset:{1024*p}" if p else ""
            e.I(f"buffer_load_dwordx4 v{dreg['WQ'][p]}, s[{SRD_WQ}:{SRD_WQ+3}], s{S_T0} offen{off}{getattr(cfg,'nt_wq','')} lds", 'dma', r=[dreg['WQ'][p], 'm0'], tag=t)
    elif t.kind == 'x':
        if cfg.rot:
            e.salu(f"s_add_u32 s{S_KT}, s{S_ROT}, {2*t.j}")
            e.salu(f"s_sub_u32 s{S_T1}, s{S_KT}, 20")
            e.salu(f"s_cmp_ge_u32 s{S_KT}, 20")
            e.salu(f"s_cselect_b32 s{S_KT}, s{S_T1}, s{S_KT}")
            e.salu(f"s_lshl_b32 s{S_T0}, s{S_KT}, 6")
        else:
            e.salu(f"s_mov_b32 s{S_T0}, {t.j*128}")
        e.salu(f"s_add_u32 m0, s{S_W2048}, {t.addr}", w=['m0'])
        for p in range(2):
            off = f" offset:{1024*p}" if p else ""
            e.I(f"buffer_load_dwordx4 v{dreg['X'][p]}, s[{SRD_X}:{SRD_X+3}], s{S_T0} offen{off}{getattr(cfg,'nt_x','')} lds", 'dma', r=[dreg['X'][p], 'm0'], tag=t)
    elif t.kind == 'wo':
        e.salu(f"s_add_u32 m0, s{S_W5120}, {t.addr}", w=['m0'])
        if getattr(cfg, 'wo_rot', False):
            e.salu(f"s_add_u32 s{S_T0}, s13, {t.a}")
            e.salu(f"s_and_b32 s{S_T0}, s{S_T0}, 3")
            e.salu(f"s_mul_i32 s{S_T0}, s{S_T0}, 20480")
            e.salu(f"s_add_u32 s{S_T0}, s{S_T0}, {(t.hd*192 + 64*t.sl)*1280}")
        else:
            e.salu(f"s_mov_b32 s{S_T0}, {(t.hd*192 + 64*t.sl + 16*t.a)*1280}")
        for p in range(4):
            off = f" offset:{1024*p}" if p else ""
            e.I(f"buffer_load_dwordx4 v{dreg['WO'][p]}, s[{SRD_WO}:{SRD_WO+3}], s{S_T0} offen{off}{getattr(cfg,'nt_wo','')} lds", 'dma', r=[dreg['WO'][p], 'm0'], tag=t)
        e.salu(f"s_add_u32 m0, s{S_W5120}, {t.addr + 4096}", w=['m0'])
        e.I(f"buffer_load_dwordx4 v{dreg['WO'][4]}, s[{SRD_WO}:{SRD_WO+3}], s{S_T0} offen{getattr(cfg,'nt_wo','')} lds", 'dma', r=[dreg['WO'][4], 'm0'], tag=t)

def V(e, text, w, r=()):
    e.valu(text, w=list(w), r=list(r))

def calc_dK(e, dst, t0, t1):
    e.salu(f"s_lshl_b32 s{S_T0}, s{S_W}, 2")
    for p in range(3):
        V(e, f"v_add_u32 v{t0}, {64*p}, v0", [t0], [0])
        V(e, f"v_mul_u32_u24 v{t0}, 171, v{t0}", [t0], [t0])
        V(e, f"v_lshrrev_b32 v{t0}, 13, v{t0}", [t0], [t0])
        V(e, f"v_add_u32 v{t0}, s{S_T0}, v{t0}", [t0], [t0])
        V(e, f"v_and_b32 v{t0}, 7, v{t0}", [t0], [t0])
        V(e, f"v_xor_b32 v{t0}, v{t0}, v0", [t0], [t0, 0])
        V(e, f"v_lshlrev_b32 v{t0}, 4, v{t0}", [t0], [t0])
        V(e, f"v_add_u32 v{dst[p]}, s{S_W3072}, v{t0}", [dst[p]], [t0])

def calc_dWQ(e, dst, t0, t1, t2):
    e.salu(f"s_mul_i32 s{S_T0}, s{S_W}, {8*12288}")
    e.salu(f"s_mov_b32 s{S_T1}, 12288")
    for p in range(3):
        V(e, f"v_add_u32 v{t0}, {64*p}, v0", [t0], [0])
        V(e, f"v_mul_u32_u24 v{t1}, 171, v{t0}", [t1], [t0])
        V(e, f"v_lshrrev_b32 v{t1}, 12, v{t1}", [t1], [t1])
        V(e, f"v_mul_u32_u24 v{t2}, 24, v{t1}", [t2], [t1])
        V(e, f"v_sub_u32 v{t0}, v{t0}, v{t2}", [t0], [t0, t2])
        V(e, f"v_and_b32 v{t2}, 2, v{t1}", [t2], [t1])
        V(e, f"v_lshlrev_b32 v{t2}, 1, v{t2}", [t2], [t2])
        V(e, f"v_xor_b32 v{t0}, v{t0}, v{t2}", [t0], [t0, t2])
        V(e, f"v_lshlrev_b32 v{t0}, 4, v{t0}", [t0], [t0])
        V(e, f"v_mul_lo_u32 v{t1}, v{t1}, s{S_T1}", [t1], [t1])
        V(e, f"v_add_u32 v{t0}, v{t0}, v{t1}", [t0], [t0, t1])
        V(e, f"v_add_u32 v{t0}, s{S_T0}, v{t0}", [t0], [t0])
        if p:
            V(e, f"v_subrev_u32 v{dst[p]}, {1024*p}, v{t0}", [dst[p]], [t0])
        else:
            V(e, f"v_mov_b32 v{dst[p]}, v{t0}", [dst[p]], [t0])

def calc_dX(e, dst, t0, t1):
    e.salu(f"s_mul_i32 s{S_T0}, s{S_W}, {16*1280}")
    for p in range(2):
        V(e, f"v_lshrrev_b32 v{t0}, 3, v0", [t0], [0])
        V(e, f"v_lshrrev_b32 v{t1}, 4, v0", [t1], [0])
        if p:
            V(e, f"v_add_u32 v{t1}, 4, v{t1}", [t1], [t1])
        V(e, f"v_xor_b32 v{t1}, v{t1}, v0", [t1], [t1, 0])
        V(e, f"v_and_b32 v{t1}, 7, v{t1}", [t1], [t1])
        V(e, f"v_lshlrev_b32 v{t1}, 4, v{t1}", [t1], [t1])
        V(e, f"v_mul_u32_u24 v{t0}, 1280, v{t0}", [t0], [t0])
        V(e, f"v_add_u32 v{t0}, v{t0}, v{t1}", [t0], [t0, t1])
        if p:
            V(e, f"v_add_u32 v{t0}, {8*1280 - 1024}, v{t0}", [t0], [t0])
        V(e, f"v_add_u32 v{dst[p]}, s{S_T0}, v{t0}", [dst[p]], [t0])

def calc_dV(e, dst, t0, t1):
    e.salu(f"s_mul_i32 s{S_T0}, s{S_W}, {16*384}")
    V(e, f"v_lshrrev_b32 v{t0}, 3, v0", [t0], [0])
    V(e, f"v_and_b32 v{t1}, 6, v{t0}", [t1], [t0])
    V(e, f"v_xor_b32 v{t1}, v{t1}, v0", [t1], [t1, 0])
    V(e, f"v_and_b32 v{t1}, 7, v{t1}", [t1], [t1])
    V(e, f"v_lshlrev_b32 v{t1}, 4, v{t1}", [t1], [t1])
    V(e, f"v_mul_u32_u24 v{t0}, 384, v{t0}", [t0], [t0])
    V(e, f"v_add_u32 v{t0}, v{t0}, v{t1}", [t0], [t0, t1])
    V(e, f"v_add_u32 v{dst[0]}, s{S_T0}, v{t0}", [dst[0]], [t0])
    V(e, f"v_add_u32 v{dst[1]}, {8*384 - 1024}, v{dst[0]}", [dst[1]], [dst[0]])

def calc_dWO(e, dst, t0, t1):
    e.salu(f"s_mul_i32 s{S_T0}, s{S_W}, 320")
    for p in range(5):
        V(e, f"v_add_u32 v{t0}, {64*p}, v0", [t0], [0])
        V(e, f"v_add_u32 v{t0}, s{S_T0}, v{t0}", [t0], [t0])
        V(e, f"v_mul_u32_u24 v{t0}, 3277, v{t0}", [t0], [t0])
        V(e, f"v_lshrrev_b32 v{t0}, 18, v{t0}", [t0], [t0])
        V(e, f"v_and_b32 v{t0}, 3, v{t0}", [t0], [t0])
        V(e, f"v_lshlrev_b32 v{t0}, 2, v{t0}", [t0], [t0])
        V(e, f"v_xor_b32 v{t0}, v{t0}, v0", [t0], [t0, 0])
        V(e, f"v_lshlrev_b32 v{t0}, 4, v{t0}", [t0], [t0])
        V(e, f"v_add_u32 v{dst[p]}, s{S_W5120}, v{t0}", [dst[p]], [t0])
        if p == 4:
            V(e, f"v_add_u32 v{dst[p]}, 4096, v{dst[p]}", [dst[p]], [dst[p]])

def mfma16(e, d, a, b, c):
    cs = "0" if c is None else vr(c, 4)
    e.I(f"v_mfma_f32_16x16x32_bf16 {vr(d,4)}, {vr(a,4)}, {vr(b,4)}, {cs}", 'mfma4', w=R(d, 4), r=R(a, 4) + R(b, 4), srcc=([] if c is None else R(c, 4)))
def mfma32(e, d, a, b, c):
    cs = "0" if c is None else vr(c, 16)
    e.I(f"v_mfma_f32_32x32x16_bf16 {vr(d,16)}, {vr(a,4)}, {vr(b,4)}, {cs}", 'mfma8', w=R(d, 16), r=R(a, 4) + R(b, 4), srcc=([] if c is None else R(c, 16)))
def dsr128(e, d, a, off):
    assert 0 <= off < 65536, off
    e.I(f"ds_read_b128 {vr(d,4)}, v{a} offset:{off}", 'ds_read', w=R(d, 4), r=[a])
def dsrtr(e, d, a, off):
    assert 0 <= off < 65536, off
    e.I(f"ds_read_b64_tr_b16 {vr(d,2)}, v{a} offset:{off}", 'ds_read', w=R(d, 2), r=[a])
def dsw64(e, a, d, off):
    assert 0 <= off < 65536, off
    e.I(f"ds_write_b64 v{a}, {vr(d,2)} offset:{off}", 'ds_write', r=[a, d, d + 1])
def cvtpk(e, d, a, b):
    e.valu(f"v_cvt_pk_bf16_f32 v{d}, v{a}, v{b}", w=[d], r=[a, b])

def gen_B(cfg, S):
    e = Em('B')
    dreg = dict(K=[1, 2, 3], WQ=[4, 5, 6], V=[8, 9])
    kA = [10, 11]; vA = [12, 13, 14, 15]; oA = [16, 17, 18, 19]; TT = [20, 21, 22, 23]
    vm, vmc, vinvl, t0, t1, t2 = 24, 25, 26, 27, 28, 29
    ONES = 32; LACC = 36; OACC = 40; QF = 56; FR = 80; SB = 128
    e.label("L_B")
    calc_dWQ(e, dreg['WQ'], t0, t1, t2)
    issue = {}
    for t in S['allt']:
        if t.by == 'B':
            issue.setdefault(t.issue, []).append(t)
    cons = {}
    for t in S['H']:
        cons[t.consume[0]] = t
    needB = {}
    for t in S['allt']:
        if t.by == 'B':
            needB.setdefault(t.consume[0], []).append(t)
    def do_issue(tk):
        for t in issue.get(tk, []):
            dma_tile(e, t, cfg, dreg)
    stamp(e, cfg, 1)
    do_issue(0)
    stamp(e, cfg, 2)
    calc_dK(e, dreg['K'], t0, t1)
    calc_dV(e, dreg['V'], t0, t1)
    V(e, f"v_and_b32 v{t0}, 15, v0", [t0], [0])
    V(e, f"v_lshrrev_b32 v{t1}, 1, v{t0}", [t1], [t0])
    V(e, f"v_lshrrev_b32 v{t2}, 4, v0", [t2], [0])
    V(e, f"v_xor_b32 v{t2}, v{t2}, v{t1}", [t2], [t1, t2])
    V(e, f"v_lshlrev_b32 v{t2}, 4, v{t2}", [t2], [t2])
    V(e, f"v_mul_u32_u24 v{kA[0]}, 384, v{t0}", [kA[0]], [t0])
    V(e, f"v_add_u32 v{kA[0]}, v{kA[0]}, v{t2}", [kA[0]], [kA[0], t2])
    V(e, f"v_xor_b32 v{t2}, 64, v{t2}", [t2], [t2])
    V(e, f"v_mul_u32_u24 v{kA[1]}, 384, v{t0}", [kA[1]], [t0])
    V(e, f"v_add_u32 v{kA[1]}, v{kA[1]}, v{t2}", [kA[1]], [kA[1], t2])
    V(e, f"v_mul_u32_u24 v{t2}, 384, v{t0}", [t2], [t0])
    V(e, f"v_add_u32 v{t2}, s{S_W6144}, v{t2}", [t2], [t2])
    V(e, f"v_lshrrev_b32 v{vm}, 4, v0", [vm], [0])
    V(e, f"v_and_b32 v{vmc}, 1, v{vm}", [vmc], [vm])
    V(e, f"v_lshlrev_b32 v{vmc}, 3, v{vmc}", [vmc], [vmc])
    V(e, f"v_add_u32 v{t2}, v{t2}, v{vmc}", [t2], [t2, vmc])
    V(e, f"v_lshrrev_b32 v{vm}, 1, v{vm}", [vm], [vm])
    for dt in range(4):
        V(e, f"v_add_u32 v{vmc}, {2*dt}, v{vm}", [vmc], [vm])
        V(e, f"v_xor_b32 v{vmc}, v{vmc}, v{t1}", [vmc], [vmc, t1])
        V(e, f"v_lshlrev_b32 v{vmc}, 4, v{vmc}", [vmc], [vmc])
        V(e, f"v_add_u32 v{oA[dt]}, v{t2}, v{vmc}", [oA[dt]], [t2, vmc])
    V(e, f"v_lshrrev_b32 v{t0}, 2, v0", [t0], [0])
    V(e, f"v_and_b32 v{t1}, 6, v{t0}", [t1], [t0])
    V(e, f"v_lshlrev_b32 v{t0}, 7, v{t0}", [t0], [t0])
    V(e, f"v_and_b32 v{t2}, 3, v0", [t2], [0])
    V(e, f"v_lshlrev_b32 v{t2}, 3, v{t2}", [t2], [t2])
    V(e, f"v_add_u32 v{t0}, v{t0}, v{t2}", [t0], [t0, t2])
    for dt in range(4):
        V(e, f"v_xor_b32 v{t2}, {2*dt}, v{t1}", [t2], [t1])
        V(e, f"v_lshlrev_b32 v{t2}, 4, v{t2}", [t2], [t2])
        V(e, f"v_add_u32 v{vA[dt]}, v{t0}, v{t2}", [vA[dt]], [t0, t2])
    for i in range(4):
        V(e, f"v_mov_b32 v{ONES+i}, 0x3f803f80", [ONES + i])

    def load_qfrags():
        V(e, f"v_add_u32 v{TT[0]}, s{S_W6144}, v{kA[0]}", [TT[0]], [kA[0]])
        V(e, f"v_add_u32 v{TT[1]}, s{S_W6144}, v{kA[1]}", [TT[1]], [kA[1]])
        for s in range(6):
            dsr128(e, QF + 4 * s, TT[s % 2], QO + (s // 2) * 128)

    def maxtile(jt):
        b = SB + 8 * jt
        if jt == 0:
            e.valu(f"v_max3_f32 v{vm}, v{b}, v{b+1}, v{b+2}", w=[vm], r=[b, b + 1, b + 2])
            e.valu(f"v_max3_f32 v{vm}, v{vm}, v{b+3}, v{b+4}", w=[vm], r=[vm, b + 3, b + 4])
            e.valu(f"v_max3_f32 v{vm}, v{vm}, v{b+5}, v{b+6}", w=[vm], r=[vm, b + 5, b + 6])
            e.valu(f"v_max_f32 v{vm}, v{vm}, v{b+7}", w=[vm], r=[vm, b + 7])
        else:
            for i in range(4):
                e.valu(f"v_max3_f32 v{vm}, v{vm}, v{b+2*i}, v{b+2*i+1}", w=[vm], r=[vm, b + 2 * i, b + 2 * i + 1])

    def qk(t, tk):
        win = t.addr
        rel = 0
        if t.j == 0:
            load_qfrags() if t.hd == 0 else None
        V(e, f"v_add_u32 v{TT[2]}, {win}, v{kA[0]}", [TT[2]], [kA[0]])
        V(e, f"v_add_u32 v{TT[3]}, {win}, v{kA[1]}", [TT[3]], [kA[1]])
        for tp in range(2):
            for s in range(6):
                dsr128(e, FR + 4 * (6 * tp + s), TT[2 + s % 2], rel + tp * 6144 + (s // 2) * 128)
        do_issue(tk)
        if t.j > 0:
            maxtile(t.j - 1)
        for tp in range(2):
            d = SB + 4 * (2 * t.j + tp)
            for s in range(6):
                mfma16(e, d, FR + 4 * (6 * tp + s), QF + 4 * s, None if s == 0 else d)

    def softmax_fin():
        maxtile(15)
        V(e, f"v_mov_b32 v{t0}, v{vm}", [t0], [vm])
        e.I(f"v_permlane32_swap_b32 v{t0}, v{vm}", 'permlane', w=[t0, vm], r=[t0, vm])
        V(e, f"v_max_f32 v{vm}, v{vm}, v{t0}", [vm], [vm, t0])
        V(e, f"v_mov_b32 v{t0}, v{vm}", [t0], [vm])
        e.I(f"v_permlane16_swap_b32 v{t0}, v{vm}", 'permlane', w=[t0, vm], r=[t0, vm])
        V(e, f"v_max_f32 v{vm}, v{vm}, v{t0}", [vm], [vm, t0])
        V(e, f"v_mul_f32 v{vmc}, s{S_C}, v{vm}", [vmc], [vm])

    def expstep(sp):
        b = SB + 8 * sp
        for i in range(8):
            e.valu(f"v_fma_f32 v{b+i}, v{b+i}, s{S_C}, -v{vmc}", w=[b + i], r=[b + i, vmc])
        for i in range(8):
            e.I(f"v_exp_f32 v{b+i}, v{b+i}", 'trans', w=[b + i], r=[b + i])
        for i in range(4):
            cvtpk(e, b + i, b + 2 * i, b + 2 * i + 1)

    def pv(t, tk):
        win = t.addr
        rel = 0
        if t.sl == 0 and t.j == 0:
            softmax_fin()
        if t.sl == 0 and t.j == 7 and t.hd == 0:
            load_qfrags()
        for dt in range(4):
            V(e, f"v_add_u32 v{TT[dt]}, {win}, v{vA[dt]}", [TT[dt]], [vA[dt]])
        for ks in range(2):
            for dt in range(4):
                for h in range(2):
                    dsrtr(e, FR + 16 * ks + 4 * dt + 2 * h, TT[dt], rel + ks * 4096 + h * 2048)
        do_issue(tk)
        if t.sl == 0:
            expstep(2 * t.j); expstep(2 * t.j + 1)
        for ks in range(2):
            sp = 2 * t.j + ks
            P = SB + 8 * sp
            first = (t.j == 0 and ks == 0)
            if t.sl == 0:
                mfma16(e, LACC, ONES, P, None if first else LACC)
            for dt in range(4):
                mfma16(e, OACC + 4 * dt, FR + 16 * ks + 4 * dt, P, None if first else OACC + 4 * dt)
        if t.j == 7:
            if t.sl == 0:
                e.I(f"v_rcp_f32 v{vinvl}, v{LACC}", 'trans', w=[vinvl], r=[LACC])
            for dt in range(4):
                o = OACC + 4 * dt
                for i in range(4):
                    V(e, f"v_mul_f32 v{o+i}, v{o+i}, v{vinvl}", [o + i], [o + i, vinvl])
                cvtpk(e, o, o, o + 1)
                cvtpk(e, o + 1, o + 2, o + 3)
                dsw64(e, oA[dt], o, QO + 128 * t.sl)

    for tk in range(0, S['nticks']):
        if tk > 0:
            e.comment(f"---- B tick {tk}")
            if cfg.prof:
                e.raw("    s_memtime s[80:81]")
                e.raw("    s_waitcnt lgkmcnt(0)")
                e.lgkm = []
            e.barrier()
            if cfg.prof:
                e.raw(f"    v_writelane_b32 v{30 + tk // 64}, s80, {tk % 64}")
            t = cons.get(tk)
            if t is None:
                do_issue(tk)
            elif t.kind == 'k':
                qk(t, tk)
            else:
                pv(t, tk)
        if tk == 0: stamp(e, cfg, 3)
        lstamp(e, cfg, 1, 0, tk, 28, 29)
        for t in needB.get(tk + 1, []):
            e.wait_tile(t)
        lstamp(e, cfg, 1, 1, tk, 28, 29)
        if tk == 0: stamp(e, cfg, 4)
    if cfg.prof:
        e.raw("    s_memtime s[80:81]")
        e.raw("    s_waitcnt lgkmcnt(0)")
        e.raw(f"    v_writelane_b32 v31, s80, 63")
        e.raw(f"    v_writelane_b32 v30, s82, 0")
        for n in range(5):
            e.raw(f"    v_writelane_b32 v31, s{STAMPS[n]}, {48+n}")
        e.raw(f"    s_cmp_eq_u32 s{S_W}, 0")
        e.raw("    s_cbranch_scc0 L_Bdone")
        e.raw(f"    s_lshl_b32 s84, s{S_WG}, 9")
        e.raw(f"    s_add_u32 s84, s84, {64<<20}")
        e.raw(f"    s_add_u32 s88, s{S_PTR+14}, s84")
        e.raw(f"    s_addc_u32 s89, s{S_PTR+15}, 0")
        e.raw(f"    s_and_b32 s89, s89, 0xffff")
        e.raw(f"    s_mov_b32 s90, 512")
        e.raw(f"    s_mov_b32 s91, 0x20000")
        e.raw(f"    v_lshlrev_b32 v29, 2, v0")
        e.raw(f"    buffer_store_dword v30, v29, s[88:91], 0 offen")
        e.raw(f"    buffer_store_dword v31, v29, s[88:91], 0 offen offset:256")
        e.raw(f"    s_lshl_b32 s84, s{S_WG}, 11")
        e.raw(f"    s_add_u32 s84, s84, {(64<<20) + (1<<18)}")
        e.raw(f"    s_add_u32 s88, s{S_PTR+14}, s84")
        e.raw(f"    s_addc_u32 s89, s{S_PTR+15}, 0")
        e.raw(f"    s_and_b32 s89, s89, 0xffff")
        e.raw(f"    s_mov_b32 s90, 2048")
        e.raw(f"    v_lshlrev_b32 v28, 4, v0")
        e.raw(f"    v_add_u32 v27, {PROF_LDS}, v28")
        e.raw(f"    ds_read_b128 v[80:83], v27")
        e.raw(f"    ds_read_b128 v[84:87], v27 offset:1024")
        e.raw(f"    s_waitcnt lgkmcnt(0)")
        e.raw(f"    buffer_store_dwordx4 v[80:83], v28, s[88:91], 0 offen")
        e.raw(f"    buffer_store_dwordx4 v[84:87], v28, s[88:91], 0 offen offset:1024")
        e.raw("L_Bdone:")
    e.raw("    s_endpgm")
    return e

def gen_A(cfg, S):
    e = Em('A')
    e.label("L_A")
    dreg = dict(K=[1, 2, 3], WQ=[4, 5, 6], X=[88, 89])
    wA = [7, 8, 9]; xA = [10, 11, 90, 91]; t0, t1, t2, t3 = 12, 13, 14, 15
    QACC = 32; XR = 96
    FS = [16, 20, 24, 28, 80, 84, 88, 92]
    calc_dX(e, dreg['X'], t0, t1)
    issue = {}
    for t in S['allt']:
        if t.by == 'A':
            issue.setdefault(t.issue, []).append(t)
    needA = {}
    for t in S['allt']:
        if t.by == 'A':
            needA.setdefault(t.consume[0], []).append(t)
    touches = {}
    if cfg.touch:
        touches.setdefault(cfg.touch_wq1, []).append(('wq1',))
        for t in S['WO']:
            if t.a == 0:
                touches.setdefault(max(cfg.touch_wq1 + 1, t.issue - cfg.touch_wo_lead), []).append(('wo', t.hd, t.sl))
    def do_issue(tk):
        for t in issue.get(tk, []):
            dma_tile(e, t, cfg, dreg)
        for tc in touches.get(tk, []):
            if tc[0] == 'wq1':
                e.salu(f"s_mul_i32 s{S_T0}, s{S_B}, {40*12288}")
                e.salu(f"s_add_u32 s{S_T0}, s{S_T0}, s{S_WQCOL}")
                e.salu(f"s_add_u32 s{S_T0}, s{S_T0}, 384")
                e.I(f"buffer_load_dword v92, v94, s[{SRD_WQ}:{SRD_WQ+3}], s{S_T0} offen", 'vload', w=[92], r=[94])
            else:
                e.salu(f"s_mul_i32 s{S_T0}, s{S_B}, {40*128}")
                e.salu(f"s_add_u32 s{S_T0}, s{S_T0}, {(tc[1]*192 + 64*tc[2])*1280}")
                e.I(f"buffer_load_dword v93, v95, s[{SRD_WO}:{SRD_WO+3}], s{S_T0} offen", 'vload', w=[93], r=[95])
    stamp(e, cfg, 1)
    do_issue(0)
    stamp(e, cfg, 2)
    if cfg.touch:
        V(e, f"v_add_u32 v{t0}, s{S_W64}, v0", [t0], [0])
        V(e, f"v_mul_u32_u24 v{t1}, 171, v{t0}", [t1], [t0])
        V(e, f"v_lshrrev_b32 v{t1}, 9, v{t1}", [t1], [t1])
        V(e, f"v_mul_u32_u24 v{t2}, 3, v{t1}", [t2], [t1])
        V(e, f"v_sub_u32 v{t2}, v{t0}, v{t2}", [t2], [t0, t2])
        V(e, f"v_lshlrev_b32 v{t2}, 7, v{t2}", [t2], [t2])
        e.salu(f"s_mov_b32 s{S_T1}, 12288")
        V(e, f"v_mul_lo_u32 v{t1}, v{t1}, s{S_T1}", [t1], [t1])
        V(e, f"v_add_u32 v{t1}, v{t1}, v{t2}", [t1], [t1, t2])
        V(e, f"v_cmp_gt_u32 vcc, 120, v{t0}", ['vcc'], [t0])
        V(e, f"v_mov_b32 v{t2}, 0x7fffffff", [t2])
        e.valu(f"v_cndmask_b32 v94, v{t2}, v{t1}, vcc", w=[94], r=[t1, t2, 'vcc'])
        V(e, f"v_lshlrev_b32 v{t1}, 7, v{t0}", [t1], [t0])
        V(e, f"v_cmp_gt_u32 vcc, 40, v{t0}", ['vcc'], [t0])
        e.valu(f"v_cndmask_b32 v95, v{t2}, v{t1}, vcc", w=[95], r=[t1, t2, 'vcc'])
    calc_dK(e, dreg['K'], t0, t1)
    calc_dWQ(e, dreg['WQ'], t0, t1, t2)
    V(e, f"v_lshrrev_b32 v{t0}, 5, v0", [t0], [0])
    V(e, f"v_lshlrev_b32 v{t0}, 3, v{t0}", [t0], [t0])
    V(e, f"v_bfe_u32 v{t1}, v0, 2, 2", [t1], [0])
    V(e, f"v_add_u32 v{t0}, v{t0}, v{t1}", [t0], [t0, t1])
    V(e, f"v_mul_u32_u24 v{t0}, 384, v{t0}", [t0], [t0])
    V(e, f"v_and_b32 v{t2}, 1, v0", [t2], [0])
    V(e, f"v_lshlrev_b32 v{t2}, 3, v{t2}", [t2], [t2])
    V(e, f"v_add_u32 v{t0}, v{t0}, v{t2}", [t0], [t0, t2])
    V(e, f"v_and_b32 v{t1}, 2, v{t1}", [t1], [t1])
    V(e, f"v_lshlrev_b32 v{t1}, 1, v{t1}", [t1], [t1])
    V(e, f"v_bfe_u32 v{t2}, v0, 4, 1", [t2], [0])
    V(e, f"v_lshlrev_b32 v{t2}, 1, v{t2}", [t2], [t2])
    V(e, f"v_bfe_u32 v{t3}, v0, 1, 1", [t3], [0])
    V(e, f"v_add_u32 v{t2}, v{t2}, v{t3}", [t2], [t2, t3])
    V(e, f"v_add_u32 v{t2}, s{S_DH12}, v{t2}", [t2], [t2])
    for j in range(3):
        V(e, f"v_add_u32 v{t3}, {4*j}, v{t2}", [t3], [t2])
        V(e, f"v_xor_b32 v{t3}, v{t3}, v{t1}", [t3], [t3, t1])
        V(e, f"v_lshlrev_b32 v{t3}, 4, v{t3}", [t3], [t3])
        V(e, f"v_add_u32 v{wA[j]}, v{t0}, v{t3}", [wA[j]], [t0, t3])
    e.salu(f"s_and_b32 s{S_T0}, s{S_W}, 1")
    e.salu(f"s_lshl_b32 s{S_T1}, s{S_T0}, 5")
    V(e, f"v_and_b32 v{t0}, 31, v0", [t0], [0])
    V(e, f"v_add_u32 v{t0}, s{S_T1}, v{t0}", [t0], [t0])
    V(e, f"v_bfe_u32 v{t1}, v{t0}, 1, 3", [t1], [t0])
    V(e, f"v_lshrrev_b32 v{t2}, 5, v0", [t2], [0])
    V(e, f"v_lshlrev_b32 v{t0}, 7, v{t0}", [t0], [t0])
    V(e, f"v_add_u32 v{t0}, {cfg.xbase}, v{t0}", [t0], [t0])
    for m in range(4):
        V(e, f"v_add_u32 v{t3}, {2*m}, v{t2}", [t3], [t2])
        V(e, f"v_xor_b32 v{t3}, v{t3}, v{t1}", [t3], [t3, t1])
        V(e, f"v_lshlrev_b32 v{t3}, 4, v{t3}", [t3], [t3])
        V(e, f"v_add_u32 v{xA[m]}, v{t0}, v{t3}", [xA[m]], [t0, t3])

    consA = {}
    for t in S['W0'] + S['W1t']:
        consA[t.consume[0]] = ('q', t)
    for t in S['WO']:
        for n, c in enumerate(t.consume):
            consA.setdefault(c, []) if False else None
    woc = {}
    for t in S['WO']:
        for n, c in enumerate(t.consume):
            woc.setdefault(c, []).append((t, n))

    def qproj(t, tk):
        i = t.i
        for s in range(2):
            if t.hd == 0:
                m = 2 * (i % 2) + s
                xo = ((i // 2) % cfg.x_slots) * 8192
                if xo >= 65536:
                    V(e, f"v_add_u32 v{t3}, 65536, v{xA[m]}", [t3], [xA[m]])
                    dsr128(e, XR + 4 * (2 * i + s), t3, xo - 65536)
                else:
                    dsr128(e, XR + 4 * (2 * i + s), xA[m], xo)
            if t.addr + 12288 > 65536:
                if s == 0:
                    for j in range(3):
                        V(e, f"v_add_u32 v{[t0,t1,t2][j]}, {t.addr}, v{wA[j]}", [[t0,t1,t2][j]], [wA[j]])
                wr, wb = [t0, t1, t2], 0
            else:
                wr, wb = wA, t.addr
            for j in range(3):
                for h in range(2):
                    dsrtr(e, FS[3 * s + j] + 2 * h, wr[j], wb + s * 16 * 384 + h * 4 * 384)
        do_issue(tk)
        for s in range(2):
            for j in range(3):
                d = QACC + 16 * j
                mfma32(e, d, FS[3 * s + j], XR + 4 * (2 * i + s), None if (i == 0 and s == 0) else d)

    def qfin():
        e.salu(f"s_and_b32 s{S_T0}, s{S_W}, 1")
        e.salu(f"s_lshl_b32 s{S_T1}, s{S_T0}, 5")
        V(e, f"v_and_b32 v{t0}, 31, v0", [t0], [0])
        V(e, f"v_add_u32 v{t0}, s{S_T1}, v{t0}", [t0], [t0])
        V(e, f"v_bfe_u32 v{t1}, v{t0}, 1, 3", [t1], [t0])
        V(e, f"v_mul_u32_u24 v{t0}, 384, v{t0}", [t0], [t0])
        V(e, f"v_lshrrev_b32 v{t2}, 5, v0", [t2], [0])
        V(e, f"v_lshlrev_b32 v{t2}, 3, v{t2}", [t2], [t2])
        V(e, f"v_add_u32 v{t0}, v{t0}, v{t2}", [t0], [t0, t2])
        for j in range(3):
            for g in range(4):
                a = QACC + 16 * j + 4 * g
                cvtpk(e, a, a, a + 1)
                cvtpk(e, a + 1, a + 2, a + 3)
                e.salu(f"s_add_u32 s{S_T0}, s{S_DH12}, {4*j+g}")
                tt = t2 if g % 2 == 0 else t3
                V(e, f"v_xor_b32 v{tt}, s{S_T0}, v{t1}", [tt], [t1])
                V(e, f"v_lshl_add_u32 v{tt}, v{tt}, 4, v{t0}", [tt], [tt, t0])
                dsw64(e, tt, a, QO)

    dWO = [1, 2, 3, 4, 5]; woA = [6, 7, 8, 9]; ofA = [10, 11, 12, 13]; woH = [16, 17, 18, 19]
    OF = 32
    AS = [48, 52, 56, 60, 64, 68, 72, 76, 80, 84, 88, 92]
    OUT = XR
    def setup_out():
        calc_dWO(e, dWO, t0 + 2, t3 + 0) if False else None
        u0, u1 = 14, 15
        calc_dWO(e, dWO, u0, u1)
        dreg['WO'] = dWO
        a0, a1, a2, a3 = 20, 21, 22, 23
        V(e, f"v_lshrrev_b32 v{a0}, 5, v0", [a0], [0])
        V(e, f"v_lshlrev_b32 v{a0}, 3, v{a0}", [a0], [a0])
        V(e, f"v_bfe_u32 v{a1}, v0, 2, 2", [a1], [0])
        V(e, f"v_add_u32 v{a0}, v{a0}, v{a1}", [a0], [a0, a1])
        V(e, f"v_mul_u32_u24 v{a0}, 1280, v{a0}", [a0], [a0])
        V(e, f"v_bfe_u32 v{a2}, v0, 1, 1", [a2], [0])
        V(e, f"v_lshlrev_b32 v{a2}, 3, v{a2}", [a2], [a2])
        V(e, f"v_add_u32 v{a0}, v{a0}, v{a2}", [a0], [a0, a2])
        V(e, f"v_bfe_u32 v{a2}, v0, 4, 1", [a2], [0])
        V(e, f"v_lshlrev_b32 v{a2}, 1, v{a2}", [a2], [a2])
        V(e, f"v_and_b32 v{a3}, 1, v0", [a3], [0])
        V(e, f"v_add_u32 v{a2}, v{a2}, v{a3}", [a2], [a2, a3])
        V(e, f"v_lshl_add_u32 v{a0}, v{a2}, 4, v{a0}", [a0], [a2, a0])
        e.salu(f"s_lshr_b32 s{S_T0}, s{S_W}, 1")
        e.salu(f"s_mul_i32 s{S_T0}, s{S_T0}, 10")
        for j in range(4):
            e.salu(f"s_add_u32 s{S_T1}, s{S_T0}, {j}")
            V(e, f"v_xor_b32 v{a2}, s{S_T1}, v{a1}", [a2], [a1])
            V(e, f"v_lshl_add_u32 v{woA[j]}, v{a2}, 6, v{a0}", [woA[j]], [a2, a0])
        e.salu(f"s_and_b32 s{S_T0}, s{S_W}, 1")
        e.salu(f"s_lshl_b32 s{S_T1}, s{S_T0}, 5")
        V(e, f"v_and_b32 v{a0}, 31, v0", [a0], [0])
        V(e, f"v_add_u32 v{a0}, s{S_T1}, v{a0}", [a0], [a0])
        V(e, f"v_bfe_u32 v{a1}, v{a0}, 1, 3", [a1], [a0])
        V(e, f"v_mul_u32_u24 v{a0}, 384, v{a0}", [a0], [a0])
        V(e, f"v_lshrrev_b32 v{a2}, 5, v0", [a2], [0])
        for ss in range(4):
            V(e, f"v_add_u32 v{a3}, {2*ss}, v{a2}", [a3], [a2])
            V(e, f"v_xor_b32 v{a3}, v{a3}, v{a1}", [a3], [a3, a1])
            V(e, f"v_lshl_add_u32 v{ofA[ss]}, v{a3}, 4, v{a0}", [ofA[ss]], [a3, a0])

    wost = {}
    def wo_reads(t, js, slots):
        if t.addr + 20480 <= 65536:
            regs, base = woA, t.addr
        else:
            key = t.addr
            if key not in wost:
                sets_ = [[16, 17, 18, 19], [20, 21, 22, 23], [24, 25, 26, 27], [28, 29, 30, 31]]
                idx = wost.get('n', 0)
                regs = sets_[idx % 4]
                for k2 in [k for k, v in wost.items() if k != 'n' and v is regs]:
                    del wost[k2]
                wost['n'] = idx + 1
                for j in range(4):
                    V(e, f"v_add_u32 v{regs[j]}, {t.addr}, v{woA[j]}", [regs[j]], [woA[j]])
                wost[key] = regs
            regs, base = wost[key], 0
        for j, sl in zip(js, slots):
            areg = regs[j % 4]
            for h in range(2):
                dsrtr(e, sl + 2 * h, areg, base + h * 4 * 1280 + (j // 4) * 256)

    def outproj_half(t, n, tk):
        first_ever = (t.hd == 0 and t.sl == 0 and t.a == 0)
        if t.a == 0 and n == 0:
            for ss in range(4):
                dsr128(e, OF + 4 * ss, ofA[ss], QO + 128 * t.sl)
        js = list(range(5 * n, 5 * n + 5))
        slots = AS[:5]
        wo_reads(t, js, slots)
        do_issue(tk)
        for j, sl in zip(js, slots):
            d = OUT + 16 * j
            mfma32(e, d, sl, OF + 4 * t.a, None if first_ever else d)

    def outproj_final(ts, tk):
        sl_ = ts[0][0].sl
        for ss in range(4):
            dsr128(e, OF + 4 * ss, ofA[ss], QO + 128 * sl_)
        tl = sorted([t for t, n in ts], key=lambda t: t.a)
        sv = 14
        V(e, f"v_lshlrev_b32 v{sv}, 4, v0", [sv], [0])
        e.salu(f"s_mul_i32 s{S_T2}, s{S_W}, {20*1024}")
        sets = [AS[0:4], AS[4:8], AS[8:12]]
        def reads(j):
            for a in range(4):
                wo_reads(tl[a], [j], [sets[j % 3][a]])
        def store(j):
            d = OUT + 16 * j
            for o in range(2):
                b = d + 8 * o
                for i in range(4):
                    cvtpk(e, b + i, b + 2 * i, b + 2 * i + 1)
                e.salu(f"s_add_u32 s{S_T3}, s{S_T2}, {(2*j+o)*1024}")
                e.I(f"buffer_store_dwordx4 {vr(b,4)}, v{sv}, s[{SRD_P}:{SRD_P+3}], s{S_T3} offen", 'vstore', r=R(b, 4) + [sv])
        reads(0); reads(1)
        for j in range(10):
            if j + 2 < 10:
                reads(j + 2)
            d = OUT + 16 * j
            for a in range(4):
                mfma32(e, d, sets[j % 3][a], OF + 4 * a, d)
            if j >= 2:
                store(j - 2)
        store(8); store(9)

    did_setup = False
    for tk in range(0, S['nticks']):
        if tk > 0:
            e.comment(f"---- A tick {tk}")
            e.barrier()
            if tk == S['tQ1'] + 1:
                pass
            if tk in consA:
                qproj(consA[tk][1], tk)
            elif tk == S['tQ0']:
                qfin(); do_issue(tk)
            elif tk == S['tQ1']:
                qfin()
                setup_out(); did_setup = True
                do_issue(tk)
            elif tk in woc:
                lst = woc[tk]
                if len(lst) == 1:
                    outproj_half(lst[0][0], lst[0][1], tk)
                else:
                    do_issue(tk)
                    outproj_final(lst, tk)
            else:
                do_issue(tk)
        if tk == 0: stamp(e, cfg, 3)
        if tk < S['nticks'] - 1: lstamp(e, cfg, 0, 0, tk, 14, 15)
        for t in needA.get(tk + 1, []):
            e.wait_tile(t)
        if tk < S['nticks'] - 1: lstamp(e, cfg, 0, 1, tk, 14, 15)
        if tk == 0: stamp(e, cfg, 4)
    if cfg.prof:
        e.raw("    s_memtime s[80:81]")
        e.raw("    s_waitcnt vmcnt(0)")
        e.raw("    s_memtime s[86:87]")
        e.raw("    s_waitcnt lgkmcnt(0)")
        e.raw(f"    s_cmp_eq_u32 s{S_W}, 0")
        e.raw("    s_cbranch_scc0 L_Adone")
        e.raw(f"    s_lshl_b32 s84, s{S_WG}, 9")
        e.raw(f"    s_add_u32 s84, s84, {(64<<20) + (1<<17)}")
        e.raw(f"    s_add_u32 s88, s{S_PTR+14}, s84")
        e.raw(f"    s_addc_u32 s89, s{S_PTR+15}, 0")
        e.raw(f"    s_and_b32 s89, s89, 0xffff")
        e.raw(f"    s_mov_b32 s90, 512")
        e.raw(f"    s_mov_b32 s91, 0x20000")
        e.raw(f"    v_mov_b32 v28, s82")
        e.raw(f"    v_mov_b32 v29, s80")
        e.raw(f"    v_mov_b32 v30, s86")
        e.raw(f"    v_mov_b32 v27, 0")
        e.raw(f"    buffer_store_dwordx3 v[28:30], v27, s[88:91], 0 offen")
        for n in range(5):
            e.raw(f"    v_mov_b32 v28, s{STAMPS[n]}")
            e.raw(f"    buffer_store_dword v28, v27, s[88:91], 0 offen offset:{16+4*n}")
        e.raw("L_Adone:")
    e.raw("    s_endpgm")
    return e

STAMPS = [74, 75, 76, 77, 78, 79, 92, 93, 94, 95]
def stamp(e, cfg, n):
    if cfg.prof:
        e.raw("    s_memtime s[96:97]")
        e.raw("    s_waitcnt lgkmcnt(0)")
        e.lgkm = []
        e.raw(f"    s_mov_b32 s{STAMPS[n]}, s96")

PROF_LDS = 84 * 1024
def lstamp(e, cfg, grp, kind, tk, ta, tb):
    if cfg.prof and tk >= 21:
        e.raw("    s_memtime s[96:97]")
        e.raw("    s_waitcnt lgkmcnt(0)")
        e.lgkm = []
        e.raw(f"    v_mov_b32 v{ta}, s96")
        e.raw(f"    v_mov_b32 v{tb}, {PROF_LDS}")
        e.I(f"ds_write_b32 v{tb}, v{ta} offset:{(grp*2+kind)*512 + tk*4}", 'ds_write', r=[ta, tb])

def prologue(cfg):
    e = Em('P')
    e.salu(f"s_cmp_ge_u32 s{S_WG}, 256")
    e.raw("    s_cbranch_scc1 L_exit")
    e.raw(f"    s_load_dwordx16 s[{S_PTR}:{S_PTR+15}], s[0:1], 0")
    if cfg.prof:
        e.raw("    s_memtime s[82:83]")
    e.valu("v_lshrrev_b32 v1, 6, v0", w=[1], r=[0])
    e.I(f"v_readfirstlane_b32 s{S_WAVE}, v1", 'readlane', w=[f's{S_WAVE}'], r=[1])
    e.valu("v_and_b32 v0, 63, v0", w=[0], r=[0])
    e.I(f"s_and_b32 s{S_W}, s{S_WAVE}, 3", 'salu', r=[f's{S_WAVE}'])
    e.salu(f"s_and_b32 s{S_T0}, s{S_WG}, 7")
    e.salu(f"s_lshr_b32 s{S_T1}, s{S_WG}, 3")
    e.salu(f"s_lshr_b32 s{S_T2}, s{S_T1}, 4")
    e.salu(f"s_lshl_b32 s{S_HP}, s{S_T0}, 1")
    e.salu(f"s_add_u32 s{S_HP}, s{S_HP}, s{S_T2}")
    e.salu(f"s_and_b32 s{S_B}, s{S_T1}, 15")
    e.salu(f"s_mul_i32 s{S_ROT}, s{S_B}, 5")
    e.salu(f"s_lshr_b32 s{S_ROT}, s{S_ROT}, 3")
    e.salu(f"s_lshl_b32 s{S_ROT}, s{S_ROT}, 1")
    e.salu(f"s_mul_i32 s{S_W3072}, s{S_W}, 3072")
    e.salu(f"s_lshl_b32 s{S_W1024}, s{S_W}, 10")
    e.salu(f"s_lshl_b32 s{S_W2048}, s{S_W}, 11")
    e.salu(f"s_mul_i32 s{S_W5120}, s{S_W}, 5120")
    e.salu(f"s_mul_i32 s{S_W6144}, s{S_W}, 6144")
    e.salu(f"s_lshl_b32 s{S_W64}, s{S_W}, 6")
    e.salu(f"s_mul_i32 s{S_WQCOL}, s{S_HP}, 768")
    e.salu(f"s_lshr_b32 s{S_DH12}, s{S_W}, 1")
    e.salu(f"s_mul_i32 s{S_DH12}, s{S_DH12}, 12")
    e.salu(f"s_mov_b32 s{S_C}, {f32((192 ** -0.5) * 1.4426950408889634):#x}")
    e.salu(f"s_lshl_b32 s{S_T0}, s{S_B}, 4")
    e.salu(f"s_add_u32 s{S_T0}, s{S_T0}, s{S_HP}")
    e.salu(f"s_mul_i32 s{S_T1}, s{S_T0}, 393216")
    e.salu(f"s_mul_i32 s{S_T2}, s{S_T0}, 81920")
    e.salu(f"s_mul_i32 s{S_T3}, s{S_B}, 81920")
    e.salu(f"s_mul_i32 s{S_KT}, s{S_HP}, {2*192*1280}")
    e.raw("    s_waitcnt lgkmcnt(0)")
    stamp(e, cfg, 0)
    def srd(d, p, offs, size):
        if offs is None:
            e.salu(f"s_mov_b32 s{d}, s{p}")
            e.salu(f"s_and_b32 s{d+1}, s{p+1}, 0xffff")
        else:
            e.salu(f"s_add_u32 s{d}, s{p}, s{offs}")
            e.salu(f"s_addc_u32 s{d+1}, s{p+1}, 0")
            e.salu(f"s_and_b32 s{d+1}, s{d+1}, 0xffff")
        e.salu(f"s_mov_b32 s{d+2}, {size}")
        e.salu(f"s_mov_b32 s{d+3}, 0x20000")
    srd(SRD_WQ, S_PTR + 6, None, 640 * 12288)
    srd(SRD_X, S_PTR + 0, S_T3, 81920)
    srd(SRD_K, S_PTR + 2, S_T1, 393216)
    srd(SRD_V, S_PTR + 4, S_T1, 393216)
    srd(SRD_WO, S_PTR + 8, S_KT, 2 * 192 * 1280)
    srd(SRD_P, S_PTR + 14, S_T2, 81920)
    e.salu(f"s_cmp_ge_u32 s{S_WAVE}, 4")
    e.raw("    s_cbranch_scc1 L_B")
    return e

def gen_reduce():
    L = []
    A = L.append
    A(f".globl {KN2}")
    A(".p2align 8")
    A(f".type {KN2},@function")
    A(f"{KN2}:")
    A("    s_cmp_ge_u32 s2, 320")
    A("    s_cbranch_scc1 L_rexit")
    A("    s_load_dwordx2 s[4:5], s[0:1], 40")
    A("    s_load_dwordx2 s[6:7], s[0:1], 56")
    A("    v_lshrrev_b32 v1, 6, v0")
    A("    v_and_b32 v0, 63, v0")
    A("    v_readfirstlane_b32 s8, v1")
    A("    s_lshl_b32 s9, s2, 2")
    A("    s_nop 2")
    A("    s_add_u32 s9, s9, s8")
    A("    s_mul_hi_u32 s10, s9, 53687092")
    A("    s_mul_i32 s11, s10, 80")
    A("    s_sub_u32 s11, s9, s11")
    A("    s_mul_i32 s12, s10, 1310720")
    A("    s_lshl_b32 s13, s11, 10")
    A("    s_add_u32 s12, s12, s13")
    A("    v_lshlrev_b32 v2, 4, v0")
    A("    s_waitcnt lgkmcnt(0)")
    A("    s_add_u32 s16, s6, s12")
    A("    s_addc_u32 s17, s7, 0")
    A("    s_and_b32 s17, s17, 0xffff")
    A("    s_mov_b32 s18, 0x7fffffff" if False else f"    s_mov_b32 s18, {15*81920+1024}")
    A("    s_mov_b32 s19, 0x20000")
    for h in range(16):
        A(f"    s_mov_b32 s{24+h}, {h*81920}")
    for h in range(16):
        A(f"    buffer_load_dwordx4 v[{8+4*h}:{11+4*h}], v2, s[16:19], s{24+h} offen")
    A("    s_mul_hi_u32 s20, s11, 214748365")
    A("    s_mul_i32 s21, s20, 20")
    A("    s_sub_u32 s21, s11, s21")
    A("    s_and_b32 s22, s20, 1")
    A("    s_lshr_b32 s23, s20, 1")
    A("    s_mul_i32 s23, s23, 320")
    A("    s_lshl_b32 s21, s21, 4")
    A("    s_add_u32 s23, s23, s21")
    A("    s_lshl_b32 s22, s22, 5")
    A("    s_lshl_b32 s40, s10, 6")
    A("    s_add_u32 s22, s22, s40")
    A("    s_mul_i32 s22, s22, 1280")
    A("    s_lshl_b32 s23, s23, 1")
    A("    s_add_u32 s22, s22, s23")
    A("    v_and_b32 v3, 31, v0")
    A("    v_mul_u32_u24 v3, 1280, v3")
    A("    v_lshrrev_b32 v4, 5, v0")
    A("    v_lshlrev_b32 v4, 4, v4")
    A("    v_add_u32 v3, v3, v4")
    A("    s_mov_b32 s44, s4")
    A("    s_and_b32 s45, s5, 0xffff")
    A(f"    s_mov_b32 s46, {16*64*640*2}")
    A("    s_mov_b32 s47, 0x20000")
    for h in range(16):
        A(f"    s_waitcnt vmcnt({15-h})")
        for i in range(4):
            src = 8 + 4 * h + i
            if h == 0:
                A(f"    v_lshlrev_b32 v{72+2*i}, 16, v{src}")
                A(f"    v_and_b32 v{73+2*i}, 0xffff0000, v{src}")
            else:
                A(f"    v_lshlrev_b32 v5, 16, v{src}")
                A(f"    v_and_b32 v6, 0xffff0000, v{src}")
                A(f"    v_add_f32 v{72+2*i}, v{72+2*i}, v5")
                A(f"    v_add_f32 v{73+2*i}, v{73+2*i}, v6")
    for i in range(4):
        A(f"    v_cvt_pk_bf16_f32 v{80+i}, v{72+2*i}, v{73+2*i}")
    A("    buffer_store_dwordx4 v[80:83], v3, s[44:47], s22 offen")
    A("L_rexit:")
    A("    s_endpgm")
    return L

def kd(name, vgpr, sgpr=100):
    return [f".amdhsa_kernel {name}", f"  .amdhsa_next_free_vgpr {vgpr}", f"  .amdhsa_next_free_sgpr {sgpr}",
            f"  .amdhsa_accum_offset {vgpr}", "  .amdhsa_group_segment_fixed_size 0", "  .amdhsa_kernarg_size 64",
            "  .amdhsa_user_sgpr_count 2", "  .amdhsa_user_sgpr_kernarg_segment_ptr 1", "  .amdhsa_system_sgpr_workgroup_id_x 1",
            "  .amdhsa_float_denorm_mode_32 3", ".end_amdhsa_kernel"]

def generate(cfg, fn):
    S = build_schedule(cfg)
    P = prologue(cfg); A = gen_A(cfg, S); B = gen_B(cfg, S)
    assert A.nbar == B.nbar, (A.nbar, B.nbar)
    L = []
    L.append(f"; @launch kernel={KN} grid=(256,1,1) block=(512,1,1) lds=163840")
    L.append(f"; @launch kernel={KN2} grid=(320,1,1) block=(256,1,1) lds=0")
    L.append('.amdgcn_target "amdgcn-amd-amdhsa--gfx950"')
    L.append(".text")
    L.append(f".globl {KN}")
    L.append(".p2align 8")
    L.append(f".type {KN},@function")
    L.append(f"{KN}:")
    L += P.lines + A.lines + B.lines
    L.append("L_exit:")
    L.append("    s_endpgm")
    L += gen_reduce()
    L.append('.section .rodata,"a"')
    L.append(".p2align 6")
    L += kd(KN, 256)
    L.append(".p2align 6")
    L += kd(KN2, 88)
    open(fn, "w").write("\n".join(L) + "\n")
    print("ticks", S['nticks'], "A instr", A.ninstr, A.stats, "B instr", B.ninstr, B.stats, file=sys.stderr)
    return S

if __name__ == "__main__":
    cfg = Cfg()
    if "--prof" in sys.argv: cfg.prof = True
    for a in sys.argv[2:]:
        if "=" in a:
            k, v = a.split("=", 1)
            setattr(cfg, k, eval(v))
    S = generate(cfg, sys.argv[1] if len(sys.argv) > 1 else "k1.s")
    if "-v" in sys.argv:
        for t in S['allt']:
            print(t.name, hex(t.addr), "issue", t.issue, "by", t.by, "consume", t.consume)
```

```python
import sys, struct
from emit import Em, vr, sr, R
import gen as G
from gen import (Tile, V, calc_dK, calc_dWQ, calc_dX, calc_dV, calc_dWO, mfma16, mfma32, dsr128, dsrtr, dsw64, cvtpk, f32, kd,
                 gen_reduce, KN, KN2, QO, stamp, lstamp, STAMPS, PROF_LDS, dma_tile,
                 S_WG, S_WAVE, S_W, S_B, S_HP, S_ROT, S_PTR, SRD_K, SRD_V, SRD_WQ, SRD_X, SRD_WO, SRD_P,
                 S_W3072, S_W1024, S_W2048, S_W5120, S_WQCOL, S_C, S_T0, S_T1, S_T2, S_T3, S_KT, S_W6144, S_DH12, S_W64)

class Cfg:
    nt_kv = True
    prof = False
    rot = True
    touch = False
    w0_slots = 6
    xbase = 80 * 1024
    x_issue = [0, 0, 0, 1, 1, 1, 1, 2, 2, 2]
    w0_issue = None
    kpre = 6
    W1 = 0
    WSZ = 81920
    OB = 80 * 1024
    Q0B = 0
    Q1B = 56 * 1024
    HB = 88 * 1024
    HSZ = 72 * 1024
    touch_wq1 = 3
    touch_wo_lead = 5
    early_lead = 1
    x_cons = [1, 2, 2, 3, 3, 3, 3, 3, 3, 3]
    x_iss = [0, 0, 0, 1, 1, 1, 1, 1, 1, 2]
    x_ord = [0, 3, 4, 2, 3, 4, 5, 6, 7, 0]
    w0_iss = [0, 0, 1, 1, 2, 2, 2, 2]
    w0_ord = [1, 2, 0, 1, 1, 2, 3, 4]
    kpre_ticks = [8, 8, 9, 9, 11, 11]
    x_all = True
    kpre_by = 'B'
    w0_first = 6
    pf_wq = True
    pf_dst1 = staticmethod(lambda SB, i: SB + 8 * i + 4)
    pf_ticks = [0] * 14
    exp_ahead = True
    skipA = ()
    skipB = ()
    skiptile = ()
    k_lead = [[9, 9], [9, 9]]
    v_lead = [9, 9]
    inred = False
    st_flags = ''
    spin_max = 200000
    b_pos = 0
    fineB = 21
    fineA = 15
    final_addr = None
    wo_rot = False
    wo_g = 'and3'
    pair_rot = False
    a_end_until = 0
    wq1_earliest = 0
    a_delay = 0
    nt_pf = ''
    nt_wq = ''
    nt_x = ''
    nt_wo = ''
    wq1_lead = 99

def build_schedule(cfg):
    T0 = 1
    HB, HSZ, W1 = cfg.HB, cfg.HSZ, cfg.W1
    X = []
    for j in range(10):
        t = Tile('x', f"x_{j}", cfg.xbase + j * 8192, 8192, j=j)
        t.consume = [cfg.x_cons[j]]; t.by = 'B'; t.earliest = cfg.x_iss[j]; t.order = cfg.x_ord[j]
        X.append(t)
    W0 = []
    for i in range(20):
        t = Tile('w0', f"w0_{i}", (i % cfg.w0_slots) * 12288, 12288, hd=0, i=i)
        t.consume = [T0 + i // 2]; t.by = 'B'
        t.earliest = cfg.w0_iss[i] if i < len(cfg.w0_iss) else 1
        t.order = cfg.w0_ord[i] if i < len(cfg.w0_ord) else 50 + i
        W0.append(t)
    tQ0 = T0 + 10
    tK0 = tQ0 + 1
    H = []
    pos = 0
    tk = tK0
    info = {}
    for hd in range(2):
        info[('k', hd)] = tk
        for j in range(16):
            assert pos + 12288 <= HSZ
            t = Tile('k', f"k{hd}_{j}", HB + pos, 12288, hd=hd, j=j)
            pos = (pos + 12288) % HSZ
            t.consume = [tk + j // 2]; t.by = 'B'; t.earliest = max(0, t.consume[0] - cfg.k_lead[hd][j % 2])
            H.append(t)
        tk += 8
        info[('v', hd)] = tk
        for sl in range(3):
            for j in range(8):
                assert pos + 8192 <= HSZ
                t = Tile('v', f"v{hd}_{sl}_{j}", HB + pos, 8192, hd=hd, sl=sl, j=j)
                pos = (pos + 8192) % HSZ
                t.consume = [tk + j // 2]; t.by = 'B'; t.earliest = max(0, t.consume[0] - cfg.v_lead[j % 2])
                H.append(t)
            tk += 4
    for n, t in enumerate(H[:cfg.kpre]):
        t.by = cfg.kpre_by; t.earliest = cfg.kpre_ticks[n]
    tEnd = tk
    W1t = []
    tq1 = tK0 + cfg.a_delay
    nq1 = cfg.WSZ // 12288
    for i in range(20):
        t = Tile('wq1', f"wq1_{i}", W1 + ((i + 2) % nq1) * 12288, 12288, hd=1, i=i)
        t.consume = [tq1 + i // 2]; t.by = 'A'; t.earliest = max(cfg.wq1_earliest, t.consume[0] - cfg.wq1_lead)
        W1t.append(t)
    tQ1 = tq1 + 10
    v0 = info[('v', 0)]
    assert cfg.a_delay <= 2
    WO = []
    slot = 0
    nwo = cfg.WSZ // 20480
    for hd in range(2):
        vstart = info[('v', hd)]
        for sl in range(3):
            tO = vstart + 4 * sl + 3
            for a in range(4):
                final = (hd == 1 and sl == 2)
                t = Tile('wo', f"wo{hd}_{sl}_{a}", None, 20480, hd=hd, sl=sl, a=a)
                if final:
                    t.addr = cfg.final_addr[a]
                    t.consume = [tO + 1]
                else:
                    t.addr = W1 + (slot % nwo) * 20480
                    slot += 1
                    t.consume = [tO + 1 + a + (cfg.a_delay if hd == 0 else 0)]
                t.by = 'A'
                t.earliest = tQ0 + 1
                WO.append(t)
    nticks = tEnd + 1
    free_at = [0] * 160
    PQ = []
    q0 = Tile('q', 'Q0', cfg.Q0B, 24576); q0.fixed = tQ0; q0.consume = [tQ0 + 1]; q0.by = None; PQ.append(q0)
    q1 = Tile('q', 'Q1', cfg.Q1B, 24576); q1.fixed = tQ1; q1.consume = [tQ1 + 1]; q1.by = None; PQ.append(q1)
    ob = Tile('q', 'OB', cfg.OB, 8192); ob.fixed = v0 + 3; ob.consume = [tEnd]; ob.by = None; PQ.append(ob)
    streams = [X, W0, H, W1t, WO, PQ]
    def okey(t):
        first = t.fixed if t.kind == 'q' else t.consume[0]
        return (first, t.kind, getattr(t, 'i', 0), getattr(t, 'sl', 0), getattr(t, 'j', 0), getattr(t, 'a', 0))
    allt = sorted([t for s_ in streams for t in s_], key=okey)
    last_issue = {}
    for t in allt:
        lo = t.addr // 1024; hi = (t.addr + t.size) // 1024
        e = max(free_at[lo:hi])
        if t.kind == 'q':
            assert e <= t.fixed, (t, e, t.fixed)
            t.issue = t.fixed
        else:
            key = t.kind if t.kind in ('x', 'w0', 'wq1', 'wo') else 'h'
            e = max(e, last_issue.get(key, 0), t.earliest)
            t.issue = e
            last_issue[key] = e
            assert t.issue < t.consume[0], (t, t.issue, t.consume)
        for k in range(lo, hi):
            free_at[k] = t.consume[-1] + 1
    for a in allt:
        for b in allt:
            if a is b: continue
            if a.addr < b.addr + b.size and b.addr < a.addr + a.size:
                assert a.consume[-1] < b.issue or b.consume[-1] < a.issue, ("overlap", a, a.issue, a.consume, b, b.issue, b.consume)
    allt = [t for t in allt if t.kind != 'q']
    return dict(nticks=nticks, X=X, W0=W0, H=H, W1t=W1t, WO=WO, tQ0=tQ0, tQ1=tQ1, info=info, tEnd=tEnd, allt=allt)

def srd(e, d, p, offs, size):
    if offs is None:
        e.salu(f"s_mov_b32 s{d}, s{p}")
        e.salu(f"s_and_b32 s{d+1}, s{p+1}, 0xffff")
    else:
        e.salu(f"s_add_u32 s{d}, s{p}, s{offs}")
        e.salu(f"s_addc_u32 s{d+1}, s{p+1}, 0")
        e.salu(f"s_and_b32 s{d+1}, s{d+1}, 0xffff")
    e.salu(f"s_mov_b32 s{d+2}, {size}")
    e.salu(f"s_mov_b32 s{d+3}, 0x20000")

S_OKV = 56; S_OP = 57; S_OX = 58; S_OWO = 59
def build_srds(e, cfg, first):
    e.raw("    s_waitcnt lgkmcnt(0)")
    stamp(e, cfg, 0)
    lst = {
        'WQ': lambda: srd(e, SRD_WQ, S_PTR + 6, None, 640 * 12288),
        'X': lambda: srd(e, SRD_X, S_PTR + 0, S_OX, 81920),
        'K': lambda: srd(e, SRD_K, S_PTR + 2, S_OKV, 393216),
        'V': lambda: srd(e, SRD_V, S_PTR + 4, S_OKV, 393216),
        'WO': lambda: srd(e, SRD_WO, S_PTR + 8, S_OWO, 2 * 192 * 1280),
        'P': lambda: srd(e, SRD_P, S_PTR + 14, S_OP, 81920),
    }
    lst[first]()
    return [k for k in lst if k != first], lst

def prologue(cfg):
    e = Em('P')
    e.salu(f"s_cmp_ge_u32 s{S_WG}, 256")
    e.raw("    s_cbranch_scc1 L_exit")
    e.raw(f"    s_load_dwordx16 s[{S_PTR}:{S_PTR+15}], s[0:1], 0")
    if cfg.prof:
        e.raw("    s_memtime s[82:83]")
        e.raw("    s_memrealtime s[8:9]")
    e.valu("v_lshrrev_b32 v1, 6, v0", w=[1], r=[0])
    e.I(f"v_readfirstlane_b32 s{S_WAVE}, v1", 'readlane', w=[f's{S_WAVE}'], r=[1])
    e.valu("v_and_b32 v0, 63, v0", w=[0], r=[0])
    e.salu(f"s_and_b32 s{S_T0}, s{S_WG}, 7")
    e.salu(f"s_lshr_b32 s{S_T1}, s{S_WG}, 3")
    e.salu(f"s_lshr_b32 s{S_T2}, s{S_T1}, 4")
    e.salu(f"s_lshl_b32 s{S_HP}, s{S_T0}, 1")
    e.salu(f"s_add_u32 s{S_HP}, s{S_HP}, s{S_T2}")
    e.salu(f"s_and_b32 s{S_B}, s{S_T1}, 15")
    e.I(f"s_and_b32 s{S_W}, s{S_WAVE}, 3", 'salu', r=[f's{S_WAVE}'])
    e.salu(f"s_mul_i32 s{S_ROT}, s{S_B}, 5")
    e.salu(f"s_lshr_b32 s{S_ROT}, s{S_ROT}, 3")
    e.salu(f"s_lshl_b32 s{S_ROT}, s{S_ROT}, 1")
    if cfg.pair_rot:
        e.salu(f"s_mul_i32 s{S_T2}, s{S_T2}, 10")
        e.salu(f"s_add_u32 s{S_ROT}, s{S_ROT}, s{S_T2}")
        e.salu(f"s_sub_u32 s{S_T2}, s{S_ROT}, 20")
        e.salu(f"s_cmp_ge_u32 s{S_ROT}, 20")
        e.salu(f"s_cselect_b32 s{S_ROT}, s{S_T2}, s{S_ROT}")
    if cfg.wo_g == 'and3':
        e.salu(f"s_and_b32 s13, s{S_B}, 3")
    else:
        e.salu(f"s_lshr_b32 s13, s{S_B}, 2")
    e.salu(f"s_mul_i32 s{S_W3072}, s{S_W}, 3072")
    e.salu(f"s_lshl_b32 s{S_W1024}, s{S_W}, 10")
    e.salu(f"s_lshl_b32 s{S_W2048}, s{S_W}, 11")
    e.salu(f"s_mul_i32 s{S_W5120}, s{S_W}, 5120")
    e.salu(f"s_mul_i32 s{S_W6144}, s{S_W}, 6144")
    e.salu(f"s_lshl_b32 s{S_W64}, s{S_W}, 6")
    e.salu(f"s_mul_i32 s{S_WQCOL}, s{S_HP}, 768")
    e.salu(f"s_lshr_b32 s{S_DH12}, s{S_W}, 1")
    e.salu(f"s_mul_i32 s{S_DH12}, s{S_DH12}, 12")
    e.salu(f"s_mov_b32 s{S_C}, {f32((192 ** -0.5) * 1.4426950408889634):#x}")
    e.salu(f"s_lshl_b32 s{S_T0}, s{S_B}, 4")
    e.salu(f"s_add_u32 s{S_T0}, s{S_T0}, s{S_HP}")
    e.salu(f"s_mul_i32 s{S_OKV}, s{S_T0}, 393216")
    e.salu(f"s_mul_i32 s{S_OP}, s{S_T0}, 81920")
    e.salu(f"s_mul_i32 s{S_OX}, s{S_B}, 81920")
    e.salu(f"s_mul_i32 s{S_OWO}, s{S_HP}, {2*192*1280}")
    e.salu(f"s_cmp_ge_u32 s{S_WAVE}, 4")
    e.raw("    s_cbranch_scc1 L_B")
    return e

def plan(S, who):
    issue = {}; need = {}
    for t in S['allt']:
        if t.by == who:
            issue.setdefault(t.issue, []).append(t)
            need.setdefault(t.consume[0], []).append(t)
    for k in issue:
        issue[k].sort(key=lambda t: getattr(t, 'order', 100))
    return issue, need

class Fine:
    def __init__(s, e, cfg, reg, tick):
        s.e, s.cfg, s.reg, s.tick, s.n, s.cur = e, cfg, reg, tick, 0, -1
    def __call__(s, label=""):
        if s.cfg.prof and s.cur == s.tick and s.n < 12:
            s.e.raw("    s_memtime s[96:97]")
            s.e.raw("    s_waitcnt lgkmcnt(0)")
            s.e.lgkm = []
            s.e.raw(f"    v_writelane_b32 v{s.reg}, s96, {s.n}")
            print("fine", s.reg, s.n, label, file=sys.stderr)
            s.n += 1

def gen_B(cfg, S):
    e = Em('B')
    e.skip = cfg.skipB; e.skiptile = cfg.skiptile
    dreg = dict(K=[1, 2, 3], WQ=[4, 5, 6], V=[8, 9])
    kA = [10, 11]; vA = [12, 13, 14, 15]; oA = [16, 17, 18, 19]; TT = [20, 21, 22, 23]; TU = [7, 26 + 0, 30, 31]
    vm, vmc, vinvl, t0, t1, t2 = 24, 25, 26, 27, 28, 29
    ONES = 32; LACC = 36; OACC = 40; QF = 56; FR = 80; SB = 128
    qt = [27, 28]
    fine = Fine(e, cfg, 29, cfg.fineB)
    e.label("L_B")
    dreg['X'] = [20, 21]
    calc_dX(e, dreg['X'], t0, t1)
    calc_dWQ(e, dreg['WQ'], t0, t1, t2)
    rest, lst = build_srds(e, cfg, 'X')
    lst['WQ'](); rest.remove('WQ')
    issue, needB = plan(S, 'B')
    cons = {}
    for t in S['H']:
        cons.setdefault(t.consume[0], []).append(t)
    pfitems = []
    PFA = 7
    def mk_wo(hd, i, reg):
        def f():
            e.salu(f"s_mul_i32 s{S_T0}, s{S_B}, 15360")
            e.salu(f"s_add_u32 s{S_T0}, s{S_T0}, s{S_W1024}")
            e.salu(f"s_add_u32 s{S_T1}, s{S_T0}, {hd*245760 + i*4096}")
            e.I(f"buffer_load_dwordx4 {vr(reg, 4)}, v{PFA}, s[{SRD_WO}:{SRD_WO+3}], s{S_T1} offen{cfg.nt_pf}", 'vload', w=R(reg, 4), r=[PFA])
        return f
    def mk_wq(rb, p, reg):
        def f():
            e.salu(f"s_mul_i32 s{S_T0}, s{S_B}, {40*12288}")
            e.salu(f"s_add_u32 s{S_T0}, s{S_T0}, s{S_WQCOL}")
            e.salu(f"s_add_u32 s{S_T0}, s{S_T0}, {384 + rb*12288}")
            off = f" offset:{1024*p}" if p else ""
            e.I(f"buffer_load_dwordx4 {vr(reg, 4)}, v{dreg['WQ'][p]}, s[{SRD_WQ}:{SRD_WQ+3}], s{S_T0} offen{off}", 'vload', w=R(reg, 4), r=[dreg['WQ'][p]])
        return f
    wq_items = [mk_wq(rb, p, SB + 12 * (rb // 8) + 4 * p) for rb in (0, 8) for p in range(3)]
    wo_items = [mk_wo(hd, i, (OACC + 4 * i) if hd == 0 else cfg.pf_dst1(SB, i)) for hd in range(2) for i in range(4)]
    allitems = (wq_items if cfg.pf_wq else []) + wo_items
    pfplan = {}
    for n, it in enumerate(allitems):
        pfplan.setdefault(cfg.pf_ticks[min(n, len(cfg.pf_ticks) - 1)], []).append(it)
    def do_issue(tk):
        for t in issue.get(tk, []):
            dma_tile(e, t, cfg, dreg)
        if tk > 0:
            for it in pfplan.get(tk, []): it()
    stamp(e, cfg, 1)
    do_issue(0)
    stamp(e, cfg, 2)
    for k in rest: lst[k]()
    V(e, f"v_lshlrev_b32 v{PFA}, 4, v0", [PFA], [0])
    for it in pfplan.get(0, []): it()
    calc_dK(e, dreg['K'], t0, t1)
    calc_dV(e, dreg['V'], t0, t1)
    V(e, f"v_and_b32 v{t0}, 15, v0", [t0], [0])
    V(e, f"v_lshrrev_b32 v{t1}, 1, v{t0}", [t1], [t0])
    V(e, f"v_lshrrev_b32 v{t2}, 4, v0", [t2], [0])
    V(e, f"v_xor_b32 v{t2}, v{t2}, v{t1}", [t2], [t1, t2])
    V(e, f"v_lshlrev_b32 v{t2}, 4, v{t2}", [t2], [t2])
    V(e, f"v_mul_u32_u24 v{kA[0]}, 384, v{t0}", [kA[0]], [t0])
    V(e, f"v_add_u32 v{kA[0]}, v{kA[0]}, v{t2}", [kA[0]], [kA[0], t2])
    V(e, f"v_xor_b32 v{t2}, 64, v{t2}", [t2], [t2])
    V(e, f"v_mul_u32_u24 v{kA[1]}, 384, v{t0}", [kA[1]], [t0])
    V(e, f"v_add_u32 v{kA[1]}, v{kA[1]}, v{t2}", [kA[1]], [kA[1], t2])
    V(e, f"v_lshlrev_b32 v{t2}, 7, v{t0}", [t2], [t0])
    V(e, f"v_add_u32 v{t2}, s{S_W2048}, v{t2}", [t2], [t2])
    V(e, f"v_add_u32 v{t2}, {cfg.OB}, v{t2}", [t2], [t2])
    V(e, f"v_lshrrev_b32 v{vm}, 4, v0", [vm], [0])
    V(e, f"v_and_b32 v{vmc}, 1, v{vm}", [vmc], [vm])
    V(e, f"v_lshlrev_b32 v{vmc}, 3, v{vmc}", [vmc], [vmc])
    V(e, f"v_add_u32 v{t2}, v{t2}, v{vmc}", [t2], [t2, vmc])
    V(e, f"v_lshrrev_b32 v{vm}, 1, v{vm}", [vm], [vm])
    for dt in range(4):
        V(e, f"v_add_u32 v{vmc}, {2*dt}, v{vm}", [vmc], [vm])
        V(e, f"v_xor_b32 v{vmc}, v{vmc}, v{t1}", [vmc], [vmc, t1])
        V(e, f"v_lshlrev_b32 v{vmc}, 4, v{vmc}", [vmc], [vmc])
        V(e, f"v_add_u32 v{oA[dt]}, v{t2}, v{vmc}", [oA[dt]], [t2, vmc])
    V(e, f"v_lshrrev_b32 v{t0}, 2, v0", [t0], [0])
    V(e, f"v_and_b32 v{t1}, 6, v{t0}", [t1], [t0])
    V(e, f"v_lshlrev_b32 v{t0}, 7, v{t0}", [t0], [t0])
    V(e, f"v_and_b32 v{t2}, 3, v0", [t2], [0])
    V(e, f"v_lshlrev_b32 v{t2}, 3, v{t2}", [t2], [t2])
    V(e, f"v_add_u32 v{t0}, v{t0}, v{t2}", [t0], [t0, t2])
    for dt in range(4):
        V(e, f"v_xor_b32 v{t2}, {2*dt}, v{t1}", [t2], [t1])
        V(e, f"v_lshlrev_b32 v{t2}, 4, v{t2}", [t2], [t2])
        V(e, f"v_add_u32 v{vA[dt]}, v{t0}, v{t2}", [vA[dt]], [t0, t2])
    for i in range(4):
        V(e, f"v_mov_b32 v{ONES+i}, 0x3f803f80", [ONES + i])

    def load_qfrags(qb):
        V(e, f"v_add_u32 v{qt[0]}, s{S_W6144}, v{kA[0]}", [qt[0]], [kA[0]])
        V(e, f"v_add_u32 v{qt[1]}, s{S_W6144}, v{kA[1]}", [qt[1]], [kA[1]])
        if qb:
            V(e, f"v_add_u32 v{qt[0]}, {qb}, v{qt[0]}", [qt[0]], [qt[0]])
            V(e, f"v_add_u32 v{qt[1]}, {qb}, v{qt[1]}", [qt[1]], [qt[1]])
        for s in range(6):
            dsr128(e, QF + 4 * s, qt[s % 2], (s // 2) * 128)

    def maxtile(jt):
        b = SB + 8 * jt
        if jt == 0:
            e.valu(f"v_max3_f32 v{vm}, v{b}, v{b+1}, v{b+2}", w=[vm], r=[b, b + 1, b + 2])
            e.valu(f"v_max3_f32 v{vm}, v{vm}, v{b+3}, v{b+4}", w=[vm], r=[vm, b + 3, b + 4])
            e.valu(f"v_max3_f32 v{vm}, v{vm}, v{b+5}, v{b+6}", w=[vm], r=[vm, b + 5, b + 6])
            e.valu(f"v_max_f32 v{vm}, v{vm}, v{b+7}", w=[vm], r=[vm, b + 7])
        else:
            for i in range(4):
                e.valu(f"v_max3_f32 v{vm}, v{vm}, v{b+2*i}, v{b+2*i+1}", w=[vm], r=[vm, b + 2 * i, b + 2 * i + 1])

    def maxlist(jt):
        b = SB + 8 * jt
        out = []
        if jt == 0:
            out.append(lambda: e.valu(f"v_max3_f32 v{vm}, v{b}, v{b+1}, v{b+2}", w=[vm], r=[b, b + 1, b + 2]))
            out.append(lambda: e.valu(f"v_max3_f32 v{vm}, v{vm}, v{b+3}, v{b+4}", w=[vm], r=[vm, b + 3, b + 4]))
            out.append(lambda: e.valu(f"v_max3_f32 v{vm}, v{vm}, v{b+5}, v{b+6}", w=[vm], r=[vm, b + 5, b + 6]))
            out.append(lambda: e.valu(f"v_max_f32 v{vm}, v{vm}, v{b+7}", w=[vm], r=[vm, b + 7]))
        else:
            for i in range(4):
                out.append(lambda i=i: e.valu(f"v_max3_f32 v{vm}, v{vm}, v{b+2*i}, v{b+2*i+1}", w=[vm], r=[vm, b + 2 * i, b + 2 * i + 1]))
        return out

    def qk2(ta, tb, tk):
        if ta.j == 0 and ta.hd == 0:
            load_qfrags(cfg.Q0B)
        for n, t in enumerate((ta, tb)):
            V(e, f"v_add_u32 v{TT[2*n]}, {t.addr}, v{kA[0]}", [TT[2*n]], [kA[0]])
            V(e, f"v_add_u32 v{TT[2*n+1]}, {t.addr}, v{kA[1]}", [TT[2*n+1]], [kA[1]])
        pairs = [(n, tp, s_) for n in range(2) for s_ in range(6) for tp in range(2)]
        def rd(i):
            n, tp, s_ = pairs[i]
            dsr128(e, FR + 4 * (i % 12), TT[2 * n + s_ % 2], tp * 6144 + (s_ // 2) * 128)
        def mm(i):
            n, tp, s_ = pairs[i]
            t = (ta, tb)[n]
            d = SB + 4 * (2 * t.j + tp)
            mfma16(e, d, FR + 4 * (i % 12), QF + 4 * s_, None if s_ == 0 else d)
        for i in range(12): rd(i)
        if cfg.b_pos == 0: do_issue(tk)
        mx = []
        if ta.j > 0:
            mx = maxlist(ta.j - 2) + maxlist(ta.j - 1)
        for i in range(24):
            mm(i)
            if i + 12 < 24: rd(i + 12)
            if i < len(mx): mx[i]()
            if cfg.b_pos == 1 and i == 5: do_issue(tk)
            if cfg.b_pos == 2 and i == 11: do_issue(tk)
        if cfg.b_pos == 3: do_issue(tk)

    def softmax_fin():
        maxtile(14); maxtile(15)
        V(e, f"v_mov_b32 v{t0}, v{vm}", [t0], [vm])
        e.I(f"v_permlane32_swap_b32 v{t0}, v{vm}", 'permlane', w=[t0, vm], r=[t0, vm])
        V(e, f"v_max_f32 v{vm}, v{vm}, v{t0}", [vm], [vm, t0])
        V(e, f"v_mov_b32 v{t0}, v{vm}", [t0], [vm])
        e.I(f"v_permlane16_swap_b32 v{t0}, v{vm}", 'permlane', w=[t0, vm], r=[t0, vm])
        V(e, f"v_max_f32 v{vm}, v{vm}, v{t0}", [vm], [vm, t0])
        V(e, f"v_mul_f32 v{vmc}, s{S_C}, v{vm}", [vmc], [vm])

    def expstep(sp):
        b = SB + 8 * sp
        for i in range(8):
            e.valu(f"v_fma_f32 v{b+i}, v{b+i}, s{S_C}, -v{vmc}", w=[b + i], r=[b + i, vmc])
        for i in range(8):
            e.I(f"v_exp_f32 v{b+i}, v{b+i}", 'trans', w=[b + i], r=[b + i])
        for i in range(4):
            cvtpk(e, b + i, b + 2 * i, b + 2 * i + 1)

    def explist(sp):
        b = SB + 8 * sp
        out = []
        for i in range(8):
            out.append(lambda i=i: e.valu(f"v_fma_f32 v{b+i}, v{b+i}, s{S_C}, -v{vmc}", w=[b + i], r=[b + i, vmc]))
        for i in range(8):
            out.append(lambda i=i: e.I(f"v_exp_f32 v{b+i}, v{b+i}", 'trans', w=[b + i], r=[b + i]))
        for i in range(4):
            out.append(lambda i=i: cvtpk(e, b + i, b + 2 * i, b + 2 * i + 1))
        return out

    def pv2(ta, tb, tk):
        sl = ta.sl
        last = (tb.j == 7)
        if tk == S['tQ1'] + 1:
            load_qfrags(cfg.Q1B)
        AR = [TT, [4, 5, 6, 7]]
        for n, t in enumerate((ta, tb)):
            for dt in range(4):
                V(e, f"v_add_u32 v{AR[n][dt]}, {t.addr}, v{vA[dt]}", [AR[n][dt]], [vA[dt]])
        pairs = [(q, dt) for q in range(4) for dt in range(4)]
        def rd(i):
            q, dt = pairs[i]
            n, ks = q // 2, q % 2
            for h in range(2):
                dsrtr(e, FR + 4 * (i % 12) + 2 * h, AR[n][dt], ks * 4096 + h * 2048)
        def mm(i):
            q, dt = pairs[i]
            P = SB + 8 * (2 * ta.j + q)
            first = (ta.j == 0 and q == 0)
            mfma16(e, OACC + 4 * dt, FR + 4 * (i % 12), P, None if first else OACC + 4 * dt)
            if sl == 0 and dt == 3:
                mfma16(e, LACC, ONES, P, None if first else LACC)
        for i in range(12): rd(i)
        if cfg.b_pos == 0: do_issue(tk)
        if sl == 0:
            if ta.j == 0:
                softmax_fin_deferred()
                for f in explist(0): f()
            elif not cfg.exp_ahead:
                for f in explist(2 * ta.j): f()
        for q in range(4):
            nxt = []
            if sl == 0:
                sp_next = 2 * ta.j + q + 1
                if q < 3 or (cfg.exp_ahead and sp_next < 16):
                    nxt = explist(sp_next)
            for dt in range(4):
                i = 4 * q + dt
                mm(i)
                if i + 12 < 16: rd(i + 12)
                for f in nxt[5 * dt:5 * dt + 5]: f()
            if cfg.b_pos == q + 1: do_issue(tk)
        if last:
            if sl == 0:
                e.I(f"v_rcp_f32 v{vinvl}, v{LACC}", 'trans', w=[vinvl], r=[LACC])
            for dt in range(4):
                o = OACC + 4 * dt
                for i in range(4):
                    V(e, f"v_mul_f32 v{o+i}, v{o+i}, v{vinvl}", [o + i], [o + i, vinvl])
                cvtpk(e, o, o, o + 1)
                cvtpk(e, o + 1, o + 2, o + 3)
                dsw64(e, oA[dt], o, 0)

    def softmax_fin_deferred():
        maxtile(14); maxtile(15)
        u = 27
        V(e, f"v_mov_b32 v{u}, v{vm}", [u], [vm])
        e.I(f"v_permlane32_swap_b32 v{u}, v{vm}", 'permlane', w=[u, vm], r=[u, vm])
        V(e, f"v_max_f32 v{vm}, v{vm}, v{u}", [vm], [vm, u])
        V(e, f"v_mov_b32 v{u}, v{vm}", [u], [vm])
        e.I(f"v_permlane16_swap_b32 v{u}, v{vm}", 'permlane', w=[u, vm], r=[u, vm])
        V(e, f"v_max_f32 v{vm}, v{vm}, v{u}", [vm], [vm, u])
        V(e, f"v_mul_f32 v{vmc}, s{S_C}, v{vm}", [vmc], [vm])

    for tk in range(0, S['nticks']):
        if tk > 0:
            e.comment(f"---- B tick {tk}")
            if cfg.prof:
                e.raw("    s_memtime s[80:81]")
                e.raw("    s_waitcnt lgkmcnt(0)")
                e.lgkm = []
            e.barrier()
            if cfg.prof:
                e.raw(f"    v_writelane_b32 v31, s80, {tk}")
            ts = cons.get(tk)
            fine.cur = tk
            if ts is None:
                do_issue(tk)
            elif ts[0].kind == 'k':
                qk2(ts[0], ts[1], tk)
            else:
                pv2(ts[0], ts[1], tk)
        if tk == 0: stamp(e, cfg, 3)
        lstamp2(e, cfg, 1, 0, tk, S)
        for t in needB.get(tk + 1, []):
            e.wait_tile(t)
        lstamp2(e, cfg, 1, 1, tk, S)
        if tk == 0: stamp(e, cfg, 4)
    if cfg.prof:
        e.raw("    s_memtime s[80:81]")
        e.raw("    s_waitcnt lgkmcnt(0)")
        e.raw(f"    v_writelane_b32 v31, s80, 63")
        e.raw(f"    v_writelane_b32 v31, s82, 0")
        for n in range(5):
            e.raw(f"    v_writelane_b32 v31, s{STAMPS[n]}, {56+n}")
        e.raw(f"    s_lshl_b32 s84, s{S_WG}, 3")
        e.raw(f"    s_add_u32 s84, s84, s{S_WAVE}")
        e.raw(f"    s_lshl_b32 s84, s84, 10")
        e.raw(f"    s_add_u32 s84, s84, {64<<20}")
        e.raw(f"    s_add_u32 s88, s{S_PTR+14}, s84")
        e.raw(f"    s_addc_u32 s89, s{S_PTR+15}, 0")
        e.raw(f"    s_and_b32 s89, s89, 0xffff")
        e.raw(f"    s_mov_b32 s90, 1024")
        e.raw(f"    s_mov_b32 s91, 0x20000")
        e.raw(f"    v_lshlrev_b32 v28, 2, v0")
        e.raw(f"    buffer_store_dword v31, v28, s[88:91], 0 offen")
        e.raw(f"    buffer_store_dword v29, v28, s[88:91], 0 offen offset:256")
        e.raw(f"    buffer_store_dword v30, v28, s[88:91], 0 offen offset:512")
    if cfg.inred:
        e.raw("    s_barrier")
        e.raw(f"    s_cmp_eq_u32 s{S_W}, 0")
        e.raw("    s_cbranch_scc0 L_Bwait")
        e.raw(f"    s_lshl_b32 s56, s{S_B}, 4")
        e.raw(f"    s_add_u32 s58, s{S_PTR+12}, s56")
        e.raw(f"    s_addc_u32 s59, s{S_PTR+13}, 0")
        e.raw("    v_mov_b32 v2, 0")
        e.raw("    v_mov_b32 v3, 1")
        e.raw("    s_mov_b64 s[60:61], exec")
        e.raw("    s_mov_b64 exec, 1")
        e.raw("    global_atomic_add v2, v3, s[58:59]")
        e.raw("    s_mov_b32 s62, 0")
        e.raw("L_poll:")
        e.raw("    global_load_dword v4, v2, s[58:59] sc1")
        e.raw("    s_waitcnt vmcnt(0)")
        e.raw("    v_readfirstlane_b32 s63, v4")
        e.raw("    s_add_u32 s62, s62, 1")
        e.raw("    s_nop 2")
        e.raw("    s_cmp_ge_u32 s63, 16")
        e.raw("    s_cbranch_scc1 L_polldone")
        e.raw(f"    s_cmp_ge_u32 s62, {cfg.spin_max}")
        e.raw("    s_cbranch_scc1 L_polldone")
        e.raw("    s_sleep 1")
        e.raw("    s_branch L_poll")
        e.raw("L_polldone:")
        e.raw("    s_mov_b64 exec, s[60:61]")
        e.raw("L_Bwait:")
        e.raw("    s_barrier")
        e.raw(f"    s_mov_b32 s56, s{S_W}")
        e.raw("    s_branch L_RED")
        e.nbar += 2
    else:
        e.raw("    s_endpgm")
    return e

def lstamp2(e, cfg, grp, kind, tk, S):
    if not cfg.prof or tk > 62 or tk < cfg.prof_from: return
    e.raw("    s_memtime s[96:97]")
    e.raw("    s_waitcnt lgkmcnt(0)")
    e.lgkm = []
    reg = {(0, 0): 91, (0, 1): 92, (1, 0): 29, (1, 1): 30}[(grp, kind)]
    e.raw(f"    v_writelane_b32 v{reg}, s96, {tk}")

def gen_A(cfg, S):
    e = Em('A')
    e.skip = cfg.skipA; e.skiptile = cfg.skiptile
    e.label("L_A")
    dreg = dict(K=[1, 2, 3], WQ=[4, 5, 6], X=[88, 89])
    wA = [7, 8, 9]; xA = [10, 11, 90, 91]; t0, t1, t2, t3 = 12, 13, 14, 15
    QACC = 32; XR = 96
    FS = [16, 20, 24, 28, 80, 84]
    rest, lst = build_srds(e, cfg, 'WQ')
    issue, needA = plan(S, 'A')
    touches = {}
    if cfg.touch:
        touches.setdefault(cfg.touch_wq1, []).append(('wq1',))
        for t in S['WO']:
            if t.a == 0:
                touches.setdefault(max(cfg.touch_wq1 + 1, t.issue - cfg.touch_wo_lead), []).append(('wo', t.hd, t.sl))
    def do_issue(tk, part='all'):
        for t in issue.get(tk, []):
            early = (t.consume[0] - t.issue) <= cfg.early_lead and tk > cfg.a_end_until
            if part == 'all' or (part == 'start') == early:
                dma_tile(e, t, cfg, dreg)
        if part == 'start': return
        for tc in touches.get(tk, []):
            if tc[0] == 'wq1':
                e.salu(f"s_mul_i32 s{S_T0}, s{S_B}, {40*12288}")
                e.salu(f"s_add_u32 s{S_T0}, s{S_T0}, s{S_WQCOL}")
                e.salu(f"s_add_u32 s{S_T0}, s{S_T0}, 384")
                e.I(f"buffer_load_dword v93, v94, s[{SRD_WQ}:{SRD_WQ+3}], s{S_T0} offen", 'vload', w=[93], r=[94])
            else:
                e.salu(f"s_mul_i32 s{S_T0}, s{S_B}, {40*128}")
                e.salu(f"s_add_u32 s{S_T0}, s{S_T0}, {(tc[1]*192 + 64*tc[2])*1280}")
                e.I(f"buffer_load_dword v93, v95, s[{SRD_WO}:{SRD_WO+3}], s{S_T0} offen", 'vload', w=[93], r=[95])
    stamp(e, cfg, 1)
    do_issue(0)
    stamp(e, cfg, 2)
    for k in rest: lst[k]()
    if cfg.touch:
        V(e, f"v_add_u32 v{t0}, s{S_W64}, v0", [t0], [0])
        V(e, f"v_mul_u32_u24 v{t1}, 171, v{t0}", [t1], [t0])
        V(e, f"v_lshrrev_b32 v{t1}, 9, v{t1}", [t1], [t1])
        V(e, f"v_mul_u32_u24 v{t2}, 3, v{t1}", [t2], [t1])
        V(e, f"v_sub_u32 v{t2}, v{t0}, v{t2}", [t2], [t0, t2])
        V(e, f"v_lshlrev_b32 v{t2}, 7, v{t2}", [t2], [t2])
        e.salu(f"s_mov_b32 s{S_T1}, 12288")
        V(e, f"v_mul_lo_u32 v{t1}, v{t1}, s{S_T1}", [t1], [t1])
        V(e, f"v_add_u32 v{t1}, v{t1}, v{t2}", [t1], [t1, t2])
        V(e, f"v_cmp_gt_u32 vcc, 120, v{t0}", ['vcc'], [t0])
        V(e, f"v_mov_b32 v{t2}, 0x7fffffff", [t2])
        e.valu(f"v_cndmask_b32 v94, v{t2}, v{t1}, vcc", w=[94], r=[t1, t2, 'vcc'])
        V(e, f"v_lshlrev_b32 v{t1}, 7, v{t0}", [t1], [t0])
        V(e, f"v_cmp_gt_u32 vcc, 40, v{t0}", ['vcc'], [t0])
        e.valu(f"v_cndmask_b32 v95, v{t2}, v{t1}, vcc", w=[95], r=[t1, t2, 'vcc'])
    calc_dK(e, dreg['K'], t0, t1)
    calc_dWQ(e, dreg['WQ'], t0, t1, t2)
    V(e, f"v_lshrrev_b32 v{t0}, 5, v0", [t0], [0])
    V(e, f"v_lshlrev_b32 v{t0}, 3, v{t0}", [t0], [t0])
    V(e, f"v_bfe_u32 v{t1}, v0, 2, 2", [t1], [0])
    V(e, f"v_add_u32 v{t0}, v{t0}, v{t1}", [t0], [t0, t1])
    V(e, f"v_mul_u32_u24 v{t0}, 384, v{t0}", [t0], [t0])
    V(e, f"v_and_b32 v{t2}, 1, v0", [t2], [0])
    V(e, f"v_lshlrev_b32 v{t2}, 3, v{t2}", [t2], [t2])
    V(e, f"v_add_u32 v{t0}, v{t0}, v{t2}", [t0], [t0, t2])
    V(e, f"v_and_b32 v{t1}, 2, v{t1}", [t1], [t1])
    V(e, f"v_lshlrev_b32 v{t1}, 1, v{t1}", [t1], [t1])
    V(e, f"v_bfe_u32 v{t2}, v0, 4, 1", [t2], [0])
    V(e, f"v_lshlrev_b32 v{t2}, 1, v{t2}", [t2], [t2])
    V(e, f"v_bfe_u32 v{t3}, v0, 1, 1", [t3], [0])
    V(e, f"v_add_u32 v{t2}, v{t2}, v{t3}", [t2], [t2, t3])
    V(e, f"v_add_u32 v{t2}, s{S_DH12}, v{t2}", [t2], [t2])
    for j in range(3):
        V(e, f"v_add_u32 v{t3}, {4*j}, v{t2}", [t3], [t2])
        V(e, f"v_xor_b32 v{t3}, v{t3}, v{t1}", [t3], [t3, t1])
        V(e, f"v_lshlrev_b32 v{t3}, 4, v{t3}", [t3], [t3])
        V(e, f"v_add_u32 v{wA[j]}, v{t0}, v{t3}", [wA[j]], [t0, t3])
    e.salu(f"s_and_b32 s{S_T0}, s{S_W}, 1")
    e.salu(f"s_lshl_b32 s{S_T1}, s{S_T0}, 5")
    V(e, f"v_and_b32 v{t0}, 31, v0", [t0], [0])
    V(e, f"v_add_u32 v{t0}, s{S_T1}, v{t0}", [t0], [t0])
    V(e, f"v_bfe_u32 v{t1}, v{t0}, 1, 3", [t1], [t0])
    V(e, f"v_lshrrev_b32 v{t2}, 5, v0", [t2], [0])
    V(e, f"v_lshlrev_b32 v{t0}, 7, v{t0}", [t0], [t0])
    V(e, f"v_add_u32 v{t0}, {cfg.xbase}, v{t0}", [t0], [t0])
    for m in range(4):
        V(e, f"v_add_u32 v{t3}, {2*m}, v{t2}", [t3], [t2])
        V(e, f"v_xor_b32 v{t3}, v{t3}, v{t1}", [t3], [t3, t1])
        V(e, f"v_lshlrev_b32 v{t3}, 4, v{t3}", [t3], [t3])
        V(e, f"v_add_u32 v{xA[m]}, v{t0}, v{t3}", [xA[m]], [t0, t3])

    consA = {}
    for t in S['W0'] + S['W1t']:
        consA.setdefault(t.consume[0], []).append(t)
    woc = {}
    for t in S['WO']:
        woc.setdefault(t.consume[0], []).append(t)

    st = {'wB': False}
    wBr = [t0, t1, t2]
    def qproj2(ts, tk):
        regs = []
        for n, t in enumerate(ts):
            if t.addr + 12288 > 65536:
                if not st['wB']:
                    for j in range(3):
                        V(e, f"v_add_u32 v{wBr[j]}, 32768, v{wA[j]}", [wBr[j]], [wA[j]])
                    st['wB'] = True
                regs.append((wBr, t.addr - 32768))
            else:
                regs.append((wA, t.addr))
        def reads(q):
            n, s = q // 2, q % 2
            t = ts[n]
            if t.hd == 0:
                m = q
                xo = (t.i // 2) * 8192
                if xo >= 65536:
                    V(e, f"v_add_u32 v{t3}, 65536, v{xA[m]}", [t3], [xA[m]])
                    dsr128(e, XR + 4 * (2 * t.i + s), t3, xo - 65536)
                else:
                    dsr128(e, XR + 4 * (2 * t.i + s), xA[m], xo)
            wr, wb = regs[n]
            for j in range(3):
                for h in range(2):
                    dsrtr(e, FS[3 * (q % 2) + j] + 2 * h, wr[j], wb + s * 16 * 384 + h * 4 * 384)
        def mm(q):
            n, s = q // 2, q % 2
            t = ts[n]
            for j in range(3):
                d = QACC + 16 * j
                mfma32(e, d, FS[3 * (q % 2) + j], XR + 4 * (2 * t.i + s), None if (t.i == 0 and s == 0) else d)
        def rdx_abs(blk, m):
            xo = blk * 8192
            dst = XR + 4 * (4 * blk + m)
            if xo >= 65536:
                V(e, f"v_add_u32 v{t3}, 65536, v{xA[m]}", [t3], [xA[m]])
                dsr128(e, dst, t3, xo - 65536)
            else:
                dsr128(e, dst, xA[m], xo)
        def rdx(q):
            pass
        def rdw(q, j):
            n, s_ = q // 2, q % 2
            wr, wb = regs[n]
            for h in range(2):
                dsrtr(e, FS[3 * (q % 2) + j] + 2 * h, wr[j], wb + s_ * 16 * 384 + h * 4 * 384)
        def mm1(q, j):
            n, s_ = q // 2, q % 2
            t = ts[n]
            d = QACC + 16 * j
            mfma32(e, d, FS[3 * (q % 2) + j], XR + 4 * (2 * t.i + s_), None if (t.i == 0 and s_ == 0) else d)
        extra = []
        if ts[0].hd == 0:
            blks = [t.j for t in S['X'] if t.consume[0] == tk]
            cur = ts[0].i // 2
            if cur in blks:
                for m in range(4): rdx_abs(cur, m)
            extra = [(blk, m) for blk in blks if blk != cur for m in range(4)]
        for j in range(3): rdw(0, j)
        for j in range(3): rdw(1, j)
        do_issue(tk, 'start')
        for q in range(4):
            for j in range(3):
                mm1(q, j)
                if q + 2 < 4: rdw(q + 2, j)
                for _ in range(3):
                    if extra: rdx_abs(*extra.pop(0))
        do_issue(tk, 'end')

    def qfin(qb):
        st['wB'] = False
        e.salu(f"s_and_b32 s{S_T0}, s{S_W}, 1")
        e.salu(f"s_lshl_b32 s{S_T1}, s{S_T0}, 5")
        V(e, f"v_and_b32 v{t0}, 31, v0", [t0], [0])
        V(e, f"v_add_u32 v{t0}, s{S_T1}, v{t0}", [t0], [t0])
        V(e, f"v_bfe_u32 v{t1}, v{t0}, 1, 3", [t1], [t0])
        V(e, f"v_mul_u32_u24 v{t0}, 384, v{t0}", [t0], [t0])
        V(e, f"v_lshrrev_b32 v{t2}, 5, v0", [t2], [0])
        V(e, f"v_lshlrev_b32 v{t2}, 3, v{t2}", [t2], [t2])
        V(e, f"v_add_u32 v{t0}, v{t0}, v{t2}", [t0], [t0, t2])
        if qb:
            V(e, f"v_add_u32 v{t0}, {qb}, v{t0}", [t0], [t0])
        for j in range(3):
            for g in range(4):
                a = QACC + 16 * j + 4 * g
                cvtpk(e, a, a, a + 1)
                cvtpk(e, a + 1, a + 2, a + 3)
                e.salu(f"s_add_u32 s{S_T0}, s{S_DH12}, {4*j+g}")
                tt = t2 if g % 2 == 0 else t3
                V(e, f"v_xor_b32 v{tt}, s{S_T0}, v{t1}", [tt], [t1])
                V(e, f"v_lshl_add_u32 v{tt}, v{tt}, 4, v{t0}", [tt], [tt, t0])
                dsw64(e, tt, a, 0)

    dWO = [1, 2, 3, 88, 89]; woA = [6, 7, 8, 9]; ofA = [10, 11, 12, 13]
    OF = 32
    AS = [48, 52, 56, 60, 64, 68, 72, 76, 80, 84, 88, 92]
    OUT = XR
    def setup_out1():
        calc_dWO(e, dWO, 15, 90)
        dreg['WO'] = dWO
    def setup_out2():
        a0, a1, a2, a3 = 20, 21, 22, 23
        V(e, f"v_lshrrev_b32 v{a0}, 5, v0", [a0], [0])
        V(e, f"v_lshlrev_b32 v{a0}, 3, v{a0}", [a0], [a0])
        V(e, f"v_bfe_u32 v{a1}, v0, 2, 2", [a1], [0])
        V(e, f"v_add_u32 v{a0}, v{a0}, v{a1}", [a0], [a0, a1])
        V(e, f"v_mul_u32_u24 v{a0}, 1280, v{a0}", [a0], [a0])
        V(e, f"v_bfe_u32 v{a2}, v0, 1, 1", [a2], [0])
        V(e, f"v_lshlrev_b32 v{a2}, 3, v{a2}", [a2], [a2])
        V(e, f"v_add_u32 v{a0}, v{a0}, v{a2}", [a0], [a0, a2])
        V(e, f"v_bfe_u32 v{a2}, v0, 4, 1", [a2], [0])
        V(e, f"v_lshlrev_b32 v{a2}, 1, v{a2}", [a2], [a2])
        V(e, f"v_and_b32 v{a3}, 1, v0", [a3], [0])
        V(e, f"v_add_u32 v{a2}, v{a2}, v{a3}", [a2], [a2, a3])
        V(e, f"v_lshl_add_u32 v{a0}, v{a2}, 4, v{a0}", [a0], [a2, a0])
        e.salu(f"s_lshr_b32 s{S_T0}, s{S_W}, 1")
        e.salu(f"s_mul_i32 s{S_T0}, s{S_T0}, 10")
        for j in range(4):
            e.salu(f"s_add_u32 s{S_T1}, s{S_T0}, {j}")
            V(e, f"v_xor_b32 v{a2}, s{S_T1}, v{a1}", [a2], [a1])
            V(e, f"v_lshl_add_u32 v{woA[j]}, v{a2}, 6, v{a0}", [woA[j]], [a2, a0])
        e.salu(f"s_and_b32 s{S_T0}, s{S_W}, 1")
        e.salu(f"s_lshl_b32 s{S_T1}, s{S_T0}, 5")
        V(e, f"v_and_b32 v{a0}, 31, v0", [a0], [0])
        V(e, f"v_add_u32 v{a0}, s{S_T1}, v{a0}", [a0], [a0])
        V(e, f"v_bfe_u32 v{a1}, v{a0}, 1, 3", [a1], [a0])
        V(e, f"v_lshlrev_b32 v{a0}, 7, v{a0}", [a0], [a0])
        V(e, f"v_add_u32 v{a0}, {cfg.OB}, v{a0}", [a0], [a0])
        V(e, f"v_lshrrev_b32 v{a2}, 5, v0", [a2], [0])
        for ss in range(4):
            if cfg.wo_rot:
                e.salu(f"s_add_u32 s{S_T0}, s13, {ss}")
                e.salu(f"s_and_b32 s{S_T0}, s{S_T0}, 3")
                e.salu(f"s_lshl_b32 s{S_T0}, s{S_T0}, 1")
                V(e, f"v_add_u32 v{a3}, s{S_T0}, v{a2}", [a3], [a2])
            else:
                V(e, f"v_add_u32 v{a3}, {2*ss}, v{a2}", [a3], [a2])
            V(e, f"v_xor_b32 v{a3}, v{a3}, v{a1}", [a3], [a3, a1])
            V(e, f"v_lshl_add_u32 v{ofA[ss]}, v{a3}, 4, v{a0}", [ofA[ss]], [a3, a0])

    wost = {}
    def wo_reads(t, js, slots):
        if t.addr + 20480 <= 65536:
            regs, base = woA, t.addr
        else:
            key = t.addr
            if key not in wost:
                sets_ = [[16, 17, 18, 19], [20, 21, 22, 23], [24, 25, 26, 27], [28, 29, 30, 31]]
                idx = wost.get('n', 0)
                regs = sets_[idx % 4]
                for k2 in [k for k, v in wost.items() if k != 'n' and v is regs]:
                    del wost[k2]
                wost['n'] = idx + 1
                for j in range(4):
                    V(e, f"v_add_u32 v{regs[j]}, {t.addr}, v{woA[j]}", [regs[j]], [woA[j]])
                wost[key] = regs
            regs, base = wost[key], 0
        for j, sl in zip(js, slots):
            areg = regs[j % 4]
            for h in range(2):
                dsrtr(e, sl + 2 * h, areg, base + h * 4 * 1280 + (j // 4) * 256)

    def outproj(t, tk):
        first_ever = (t.hd == 0 and t.sl == 0 and t.a == 0)
        if t.a == 0:
            for ss in range(4):
                dsr128(e, OF + 4 * ss, ofA[ss], 0)
        wo_reads(t, list(range(10)), AS[:10])
        do_issue(tk, 'start')
        for j in range(10):
            d = OUT + 16 * j
            mfma32(e, d, AS[j], OF + 4 * t.a, None if first_ever else d)
        do_issue(tk, 'end')

    def outproj_final(ts, tk):
        sl_ = ts[0].sl
        for ss in range(4):
            dsr128(e, OF + 4 * ss, ofA[ss], 0)
        tl = sorted(ts, key=lambda t: t.a)
        sv = 14
        V(e, f"v_lshlrev_b32 v{sv}, 4, v0", [sv], [0])
        e.salu(f"s_mul_i32 s{S_T2}, s{S_W}, {20*1024}")
        sets = [AS[0:4], AS[4:8], AS[8:12]]
        def reads(j):
            for a in range(4):
                wo_reads(tl[a], [j], [sets[j % 3][a]])
        def store(j):
            d = OUT + 16 * j
            for o in range(2):
                b = d + 8 * o
                for i in range(4):
                    cvtpk(e, b + i, b + 2 * i, b + 2 * i + 1)
                e.salu(f"s_add_u32 s{S_T3}, s{S_T2}, {(2*j+o)*1024}")
                e.I(f"buffer_store_dwordx4 {vr(b,4)}, v{sv}, s[{SRD_P}:{SRD_P+3}], s{S_T3} offen{cfg.st_flags}", 'vstore', r=R(b, 4) + [sv])
        reads(0); reads(1)
        for j in range(10):
            if j + 2 < 10:
                reads(j + 2)
            d = OUT + 16 * j
            for a in range(4):
                mfma32(e, d, sets[j % 3][a], OF + 4 * a, d)
            if j >= 2:
                store(j - 2)
        store(8); store(9)

    for tk in range(0, S['nticks']):
        if tk > 0:
            e.comment(f"---- A tick {tk}")
            e.barrier()
            if tk in consA:
                qproj2(consA[tk], tk)
            elif tk == S['tQ0']:
                qfin(cfg.Q0B); do_issue(tk); setup_out1()
            elif tk == S['tQ1']:
                qfin(cfg.Q1B)
                do_issue(tk)
            elif tk == S['tQ1'] + 1:
                setup_out2()
                do_issue(tk)
                assert tk not in woc
            elif tk in woc:
                lst_ = woc[tk]
                if len(lst_) == 1:
                    outproj(lst_[0], tk)
                else:
                    do_issue(tk)
                    if cfg.prof:
                        e.raw("    v_lshlrev_b32 v14, 2, v0")
                        e.raw("    v_add_u32 v14, 65536, v14")
                        e.raw(f"    s_lshr_b32 s84, s{S_W1024}, 1")
                        e.raw("    v_add_u32 v14, s84, v14")
                        e.raw("    ds_write_b32 v14, v91 offset:0")
                        e.raw("    ds_write_b32 v14, v92 offset:256")
                        e.raw("    s_waitcnt lgkmcnt(0)")
                    outproj_final(lst_, tk)
                    if cfg.prof:
                        e.raw("    s_waitcnt lgkmcnt(0)")
                        e.lgkm = []
                        e.raw("    v_lshlrev_b32 v15, 2, v0")
                        e.raw("    v_add_u32 v15, 65536, v15")
                        e.raw(f"    s_lshr_b32 s84, s{S_W1024}, 1")
                        e.raw("    v_add_u32 v15, s84, v15")
                        e.raw("    s_waitcnt vmcnt(0)")
                        e.vm = []
                        e.raw("    ds_read_b32 v91, v15 offset:0")
                        e.raw("    ds_read_b32 v92, v15 offset:256")
                        e.raw("    s_waitcnt lgkmcnt(0)")
            else:
                do_issue(tk)
        if tk == 0: stamp(e, cfg, 3)
        if tk < S['nticks'] - 1: lstamp2(e, cfg, 0, 0, tk, S)
        for t in needA.get(tk + 1, []):
            e.wait_tile(t)
        if tk < S['nticks'] - 1: lstamp2(e, cfg, 0, 1, tk, S)
        if tk == 0: stamp(e, cfg, 4)
    if cfg.prof:
        e.raw("    s_memtime s[80:81]")
        e.raw("    s_waitcnt vmcnt(0)")
        e.raw("    s_memtime s[86:87]")
        e.raw("    s_memrealtime s[10:11]")
        e.raw("    s_getreg_b32 s12, hwreg(HW_REG_XCC_ID)")
        e.raw("    s_waitcnt lgkmcnt(0)")
        e.raw(f"    s_lshl_b32 s84, s{S_WG}, 3")
        e.raw(f"    s_add_u32 s84, s84, s{S_WAVE}")
        e.raw(f"    s_lshl_b32 s84, s84, 10")
        e.raw(f"    s_add_u32 s84, s84, {64<<20}")
        e.raw(f"    s_add_u32 s88, s{S_PTR+14}, s84")
        e.raw(f"    s_addc_u32 s89, s{S_PTR+15}, 0")
        e.raw(f"    s_and_b32 s89, s89, 0xffff")
        e.raw(f"    s_mov_b32 s90, 1024")
        e.raw(f"    s_mov_b32 s91, 0x20000")
        e.raw(f"    v_writelane_b32 v91, s82, 0")
        e.raw(f"    v_writelane_b32 v91, s80, 1")
        e.raw(f"    v_writelane_b32 v91, s86, 2")
        e.raw(f"    v_writelane_b32 v91, s8, 8")
        e.raw(f"    v_writelane_b32 v91, s10, 9")
        e.raw(f"    v_writelane_b32 v91, s12, 10")
        for n in range(5):
            e.raw(f"    v_writelane_b32 v91, s{STAMPS[n]}, {3+n}")
        e.raw(f"    v_lshlrev_b32 v28, 2, v0")
        e.raw(f"    buffer_store_dword v91, v28, s[88:91], 0 offen offset:256")
        e.raw(f"    buffer_store_dword v92, v28, s[88:91], 0 offen offset:512")
    if cfg.inred:
        e.raw("    s_waitcnt vmcnt(0)")
        e.raw("    s_barrier")
        e.raw("    s_barrier")
        e.raw(f"    s_cmp_eq_u32 s{S_W}, 0")
        e.raw("    s_cbranch_scc0 L_exit")
        e.raw("    s_mov_b32 s56, 4")
        e.raw("    s_branch L_RED")
        e.nbar += 2
    else:
        e.raw("    s_endpgm")
    return e

def gen_red(cfg):
    L = []
    A = lambda t: L.append("    " + t)
    L.append("L_RED:")
    A(f"s_mul_i32 s57, s{S_HP}, 5")
    A("s_add_u32 s57, s57, s56")
    A(f"s_mul_i32 s58, s{S_B}, {16*81920}")
    A(f"s_add_u32 s32, s{S_PTR+14}, s58")
    A(f"s_addc_u32 s33, s{S_PTR+15}, 0")
    A("s_and_b32 s33, s33, 0xffff")
    A(f"s_mov_b32 s34, {16*81920}")
    A("s_mov_b32 s35, 0x20000")
    A("s_lshl_b32 s59, s57, 10")
    A("v_lshlrev_b32 v2, 4, v0")
    A("v_add_u32 v2, s59, v2")
    for h in range(16):
        A(f"s_mov_b32 s{60+h}, {h*81920}")
    for h in range(16):
        A(f"buffer_load_dwordx4 v[{8+4*h}:{11+4*h}], v2, s[32:35], s{60+h} offen sc1")
    A("s_mul_hi_u32 s40, s57, 214748365")
    A("s_mul_i32 s41, s40, 20")
    A("s_sub_u32 s41, s57, s41")
    A("s_and_b32 s42, s40, 1")
    A("s_lshr_b32 s43, s40, 1")
    A("s_mul_i32 s43, s43, 320")
    A("s_lshl_b32 s41, s41, 4")
    A("s_add_u32 s43, s43, s41")
    A("s_lshl_b32 s42, s42, 5")
    A(f"s_lshl_b32 s44, s{S_B}, 6")
    A("s_add_u32 s42, s42, s44")
    A("s_mul_i32 s42, s42, 1280")
    A("s_lshl_b32 s43, s43, 1")
    A("s_add_u32 s42, s42, s43")
    A("v_and_b32 v3, 31, v0")
    A("v_mul_u32_u24 v3, 1280, v3")
    A("v_lshrrev_b32 v4, 5, v0")
    A("v_lshlrev_b32 v4, 4, v4")
    A("v_add_u32 v3, v3, v4")
    A(f"s_mov_b32 s44, s{S_PTR+10}")
    A(f"s_and_b32 s45, s{S_PTR+11}, 0xffff")
    A(f"s_mov_b32 s46, {16*64*640*2}")
    A("s_mov_b32 s47, 0x20000")
    for h in range(16):
        A(f"s_waitcnt vmcnt({15-h})")
        for i in range(4):
            src = 8 + 4 * h + i
            if h == 0:
                A(f"v_lshlrev_b32 v{72+2*i}, 16, v{src}")
                A(f"v_and_b32 v{73+2*i}, 0xffff0000, v{src}")
            else:
                A(f"v_lshlrev_b32 v5, 16, v{src}")
                A(f"v_and_b32 v6, 0xffff0000, v{src}")
                A(f"v_add_f32 v{72+2*i}, v{72+2*i}, v5")
                A(f"v_add_f32 v{73+2*i}, v{73+2*i}, v6")
    for i in range(4):
        A(f"v_cvt_pk_bf16_f32 v{80+i}, v{72+2*i}, v{73+2*i}")
    A("buffer_store_dwordx4 v[80:83], v3, s[44:47], s42 offen")
    A("s_endpgm")
    return L

def generate(cfg, fn):
    S = build_schedule(cfg)
    P = prologue(cfg); A = gen_A(cfg, S); B = gen_B(cfg, S)
    assert A.nbar == B.nbar, (A.nbar, B.nbar)
    L = []
    if cfg.inred:
        L.append(f"; @launch grid=(256,1,1) block=(512,1,1) lds=163840")
    else:
        L.append(f"; @launch kernel={KN} grid=(256,1,1) block=(512,1,1) lds=163840")
        L.append(f"; @launch kernel={KN2} grid=(320,1,1) block=(256,1,1) lds=0")
    L.append('.amdgcn_target "amdgcn-amd-amdhsa--gfx950"')
    L.append(".text")
    L.append(f".globl {KN}")
    L.append(".p2align 8")
    L.append(f".type {KN},@function")
    L.append(f"{KN}:")
    L += P.lines + A.lines + B.lines
    if cfg.inred:
        L += gen_red(cfg)
    L.append("L_exit:")
    L.append("    s_endpgm")
    if not cfg.inred:
        L += gen_reduce()
    L.append('.section .rodata,"a"')
    L.append(".p2align 6")
    L += kd(KN, 256)
    if not cfg.inred:
        L.append(".p2align 6")
        L += kd(KN2, 88)
    open(fn, "w").write("\n".join(L) + "\n")
    print("ticks", S['nticks'], "A instr", A.ninstr, A.stats, "B instr", B.ninstr, B.stats, file=sys.stderr)
    return S

if __name__ == "__main__":
    cfg = Cfg()
    cfg.prof_lds = 72 * 1024 if False else 79 * 1024
    cfg.prof_from = 12
    cfg.prof_t = {0: (14, 15), 1: (28, 29)}
    cfg.final_addr = [136 * 1024, 0, 20 * 1024, 40 * 1024]
    if "--prof" in sys.argv: cfg.prof = True
    for a in sys.argv[2:]:
        if "=" in a:
            k, v = a.split("=", 1)
            setattr(cfg, k, eval(v))
    S = generate(cfg, sys.argv[1] if len(sys.argv) > 1 else "k4.s")
    if "-v" in sys.argv:
        for t in S['allt']:
            print(t.name, hex(t.addr), "issue", t.issue, "by", t.by, "consume", t.consume)
```

```python
import sys, struct
from emit import Em, vr, sr, R
import gen as G
from gen import (Tile, V, calc_dK, calc_dWQ, calc_dX, calc_dV, calc_dWO, mfma16, mfma32, dsr128, dsrtr, dsw64, cvtpk, f32, kd,
                 gen_reduce, KN, KN2, QO, stamp, lstamp, STAMPS, PROF_LDS, dma_tile,
                 S_WG, S_WAVE, S_W, S_B, S_HP, S_ROT, S_PTR, SRD_K, SRD_V, SRD_WQ, SRD_X, SRD_WO, SRD_P,
                 S_W3072, S_W1024, S_W2048, S_W5120, S_WQCOL, S_C, S_T0, S_T1, S_T2, S_T3, S_KT, S_W6144, S_DH12, S_W64)

class Cfg:
    nt_kv = True
    prof = False
    rot = True
    touch = False
    w0_slots = 6
    xbase = 80 * 1024
    x_issue = [0, 0, 0, 1, 1, 1, 1, 2, 2, 2]
    w0_issue = None
    kpre = 6
    W1 = 0
    WSZ = 81920
    OB = 80 * 1024
    Q0B = 0
    Q1B = 56 * 1024
    HB = 88 * 1024
    HSZ = 72 * 1024
    touch_wq1 = 3
    touch_wo_lead = 5
    early_lead = 1
    x_cons = [1, 2, 2, 3, 3, 3, 3, 3, 3, 3]
    x_iss = [0, 0, 0, 1, 1, 1, 1, 1, 1, 2]
    x_ord = [0, 3, 4, 2, 3, 4, 5, 6, 7, 0]
    w0_iss = [0, 0, 1, 1, 2, 2, 2, 2]
    w0_ord = [1, 2, 0, 1, 1, 2, 3, 4]
    kpre_ticks = [8, 8, 9, 9, 11, 11]
    x_all = True
    kpre_by = 'B'
    w0_first = 6
    pf_wq = True
    pf_dst1 = staticmethod(lambda SB, i: SB + 8 * i + 4)
    pf_ticks = [0] * 14
    exp_ahead = True
    skipA = ()
    skipB = ()
    skiptile = ()
    k_lead = [[9, 9], [9, 9]]
    v_lead = [9, 9]
    inred = False
    st_flags = ''
    spin_max = 200000
    b_pos = 0
    fineB = 21
    fineA = 15
    final_addr = None
    wo_rot = False
    wo_g = 'and3'
    pair_rot = False
    a_end_until = 0
    wq1_earliest = 0
    a_delay = 0
    h_pol = None
    h_from = 11
    nt_pf = ''
    nt_wq = ''
    nt_x = ''
    nt_wo = ''
    wq1_lead = 99

def build_schedule(cfg):
    T0 = 1
    HB, HSZ, W1 = cfg.HB, cfg.HSZ, cfg.W1
    X = []
    for j in range(10):
        t = Tile('x', f"x_{j}", cfg.xbase + j * 8192, 8192, j=j)
        t.consume = [cfg.x_cons[j]]; t.by = 'B'; t.earliest = cfg.x_iss[j]; t.order = cfg.x_ord[j]
        X.append(t)
    W0 = []
    for i in range(20):
        t = Tile('w0', f"w0_{i}", (i % cfg.w0_slots) * 12288, 12288, hd=0, i=i)
        t.consume = [T0 + i // 2]; t.by = 'B'
        t.earliest = cfg.w0_iss[i] if i < len(cfg.w0_iss) else 1
        t.order = cfg.w0_ord[i] if i < len(cfg.w0_ord) else 50 + i
        W0.append(t)
    tQ0 = T0 + 10
    tK0 = tQ0 + 1
    H = []
    pos = 0
    tk = tK0
    info = {}
    for hd in range(2):
        info[('k', hd)] = tk
        for j in range(16):
            assert pos + 12288 <= HSZ
            t = Tile('k', f"k{hd}_{j}", HB + pos, 12288, hd=hd, j=j)
            pos = (pos + 12288) % HSZ
            t.consume = [tk + j // 2]; t.by = 'B'; t.earliest = max(0, t.consume[0] - cfg.k_lead[hd][j % 2])
            H.append(t)
        tk += 8
        info[('v', hd)] = tk
        for sl in range(3):
            for j in range(8):
                assert pos + 8192 <= HSZ
                t = Tile('v', f"v{hd}_{sl}_{j}", HB + pos, 8192, hd=hd, sl=sl, j=j)
                pos = (pos + 8192) % HSZ
                t.consume = [tk + j // 2]; t.by = 'B'; t.earliest = max(0, t.consume[0] - cfg.v_lead[j % 2])
                H.append(t)
            tk += 4
    for n, t in enumerate(H[:cfg.kpre]):
        t.by = cfg.kpre_by; t.earliest = cfg.kpre_ticks[n]
    tEnd = tk
    W1t = []
    tq1 = tK0 + cfg.a_delay
    nq1 = cfg.WSZ // 12288
    for i in range(20):
        t = Tile('wq1', f"wq1_{i}", W1 + ((i + 2) % nq1) * 12288, 12288, hd=1, i=i)
        t.consume = [tq1 + i // 2]; t.by = 'A'; t.earliest = max(cfg.wq1_earliest, t.consume[0] - cfg.wq1_lead)
        W1t.append(t)
    tQ1 = tq1 + 10
    v0 = info[('v', 0)]
    assert cfg.a_delay <= 2
    WO = []
    slot = 0
    nwo = cfg.WSZ // 20480
    for hd in range(2):
        vstart = info[('v', hd)]
        for sl in range(3):
            tO = vstart + 4 * sl + 3
            for a in range(4):
                final = (hd == 1 and sl == 2)
                t = Tile('wo', f"wo{hd}_{sl}_{a}", None, 20480, hd=hd, sl=sl, a=a)
                if final:
                    t.addr = cfg.final_addr[a]
                    t.consume = [tO + 1]
                else:
                    t.addr = W1 + (slot % nwo) * 20480
                    slot += 1
                    t.consume = [tO + 1 + a + (cfg.a_delay if hd == 0 else 0)]
                t.by = 'A'
                t.earliest = tQ0 + 1
                WO.append(t)
    nticks = tEnd + 1
    free_at = [0] * 160
    PQ = []
    q0 = Tile('q', 'Q0', cfg.Q0B, 24576); q0.fixed = tQ0; q0.consume = [tQ0 + 1]; q0.by = None; PQ.append(q0)
    q1 = Tile('q', 'Q1', cfg.Q1B, 24576); q1.fixed = tQ1; q1.consume = [tQ1 + 1]; q1.by = None; PQ.append(q1)
    ob = Tile('q', 'OB', cfg.OB, 8192); ob.fixed = v0 + 3; ob.consume = [tEnd]; ob.by = None; PQ.append(ob)
    streams = [X, W0, H, W1t, WO, PQ]
    def okey(t):
        first = t.fixed if t.kind == 'q' else t.consume[0]
        return (first, t.kind, getattr(t, 'i', 0), getattr(t, 'sl', 0), getattr(t, 'j', 0), getattr(t, 'a', 0))
    allt = sorted([t for s_ in streams for t in s_], key=okey)
    last_issue = {}
    for t in allt:
        lo = t.addr // 1024; hi = (t.addr + t.size) // 1024
        e = max(free_at[lo:hi])
        if t.kind == 'q':
            assert e <= t.fixed, (t, e, t.fixed)
            t.issue = t.fixed
        else:
            key = t.kind if t.kind in ('x', 'w0', 'wq1', 'wo') else 'h'
            e = max(e, last_issue.get(key, 0), t.earliest)
            t.issue = e
            last_issue[key] = e
            assert t.issue < t.consume[0], (t, t.issue, t.consume)
        for k in range(lo, hi):
            free_at[k] = t.consume[-1] + 1
    for a in allt:
        for b in allt:
            if a is b: continue
            if a.addr < b.addr + b.size and b.addr < a.addr + a.size:
                assert a.consume[-1] < b.issue or b.consume[-1] < a.issue, ("overlap", a, a.issue, a.consume, b, b.issue, b.consume)
    allt = [t for t in allt if t.kind != 'q']
    if cfg.h_pol is not None:
        for t in H:
            if t.issue >= cfg.h_from and cfg.h_pol(t): t.by = 'A'
    return dict(nticks=nticks, X=X, W0=W0, H=H, W1t=W1t, WO=WO, tQ0=tQ0, tQ1=tQ1, info=info, tEnd=tEnd, allt=allt)

def srd(e, d, p, offs, size):
    if offs is None:
        e.salu(f"s_mov_b32 s{d}, s{p}")
        e.salu(f"s_and_b32 s{d+1}, s{p+1}, 0xffff")
    else:
        e.salu(f"s_add_u32 s{d}, s{p}, s{offs}")
        e.salu(f"s_addc_u32 s{d+1}, s{p+1}, 0")
        e.salu(f"s_and_b32 s{d+1}, s{d+1}, 0xffff")
    e.salu(f"s_mov_b32 s{d+2}, {size}")
    e.salu(f"s_mov_b32 s{d+3}, 0x20000")

S_OKV = 56; S_OP = 57; S_OX = 58; S_OWO = 59
def build_srds(e, cfg, first):
    e.raw("    s_waitcnt lgkmcnt(0)")
    stamp(e, cfg, 0)
    lst = {
        'WQ': lambda: srd(e, SRD_WQ, S_PTR + 6, None, 640 * 12288),
        'X': lambda: srd(e, SRD_X, S_PTR + 0, S_OX, 81920),
        'K': lambda: srd(e, SRD_K, S_PTR + 2, S_OKV, 393216),
        'V': lambda: srd(e, SRD_V, S_PTR + 4, S_OKV, 393216),
        'WO': lambda: srd(e, SRD_WO, S_PTR + 8, S_OWO, 2 * 192 * 1280),
        'P': lambda: srd(e, SRD_P, S_PTR + 14, S_OP, 81920),
    }
    lst[first]()
    return [k for k in lst if k != first], lst

def prologue(cfg):
    e = Em('P')
    e.salu(f"s_cmp_ge_u32 s{S_WG}, 256")
    e.raw("    s_cbranch_scc1 L_exit")
    e.raw(f"    s_load_dwordx16 s[{S_PTR}:{S_PTR+15}], s[0:1], 0")
    if cfg.prof:
        e.raw("    s_memtime s[82:83]")
        e.raw("    s_memrealtime s[8:9]")
    e.valu("v_lshrrev_b32 v1, 6, v0", w=[1], r=[0])
    e.I(f"v_readfirstlane_b32 s{S_WAVE}, v1", 'readlane', w=[f's{S_WAVE}'], r=[1])
    e.valu("v_and_b32 v0, 63, v0", w=[0], r=[0])
    e.salu(f"s_and_b32 s{S_T0}, s{S_WG}, 7")
    e.salu(f"s_lshr_b32 s{S_T1}, s{S_WG}, 3")
    e.salu(f"s_lshr_b32 s{S_T2}, s{S_T1}, 4")
    e.salu(f"s_lshl_b32 s{S_HP}, s{S_T0}, 1")
    e.salu(f"s_add_u32 s{S_HP}, s{S_HP}, s{S_T2}")
    e.salu(f"s_and_b32 s{S_B}, s{S_T1}, 15")
    e.I(f"s_and_b32 s{S_W}, s{S_WAVE}, 3", 'salu', r=[f's{S_WAVE}'])
    e.salu(f"s_mul_i32 s{S_ROT}, s{S_B}, 5")
    e.salu(f"s_lshr_b32 s{S_ROT}, s{S_ROT}, 3")
    e.salu(f"s_lshl_b32 s{S_ROT}, s{S_ROT}, 1")
    if cfg.pair_rot:
        e.salu(f"s_mul_i32 s{S_T2}, s{S_T2}, 10")
        e.salu(f"s_add_u32 s{S_ROT}, s{S_ROT}, s{S_T2}")
        e.salu(f"s_sub_u32 s{S_T2}, s{S_ROT}, 20")
        e.salu(f"s_cmp_ge_u32 s{S_ROT}, 20")
        e.salu(f"s_cselect_b32 s{S_ROT}, s{S_T2}, s{S_ROT}")
    if cfg.wo_g == 'and3':
        e.salu(f"s_and_b32 s13, s{S_B}, 3")
    else:
        e.salu(f"s_lshr_b32 s13, s{S_B}, 2")
    e.salu(f"s_mul_i32 s{S_W3072}, s{S_W}, 3072")
    e.salu(f"s_lshl_b32 s{S_W1024}, s{S_W}, 10")
    e.salu(f"s_lshl_b32 s{S_W2048}, s{S_W}, 11")
    e.salu(f"s_mul_i32 s{S_W5120}, s{S_W}, 5120")
    e.salu(f"s_mul_i32 s{S_W6144}, s{S_W}, 6144")
    e.salu(f"s_lshl_b32 s{S_W64}, s{S_W}, 6")
    e.salu(f"s_mul_i32 s{S_WQCOL}, s{S_HP}, 768")
    e.salu(f"s_lshr_b32 s{S_DH12}, s{S_W}, 1")
    e.salu(f"s_mul_i32 s{S_DH12}, s{S_DH12}, 12")
    e.salu(f"s_mov_b32 s{S_C}, {f32((192 ** -0.5) * 1.4426950408889634):#x}")
    e.salu(f"s_lshl_b32 s{S_T0}, s{S_B}, 4")
    e.salu(f"s_add_u32 s{S_T0}, s{S_T0}, s{S_HP}")
    e.salu(f"s_mul_i32 s{S_OKV}, s{S_T0}, 393216")
    e.salu(f"s_mul_i32 s{S_OP}, s{S_T0}, 81920")
    e.salu(f"s_mul_i32 s{S_OX}, s{S_B}, 81920")
    e.salu(f"s_mul_i32 s{S_OWO}, s{S_HP}, {2*192*1280}")
    e.salu(f"s_cmp_ge_u32 s{S_WAVE}, 4")
    e.raw("    s_cbranch_scc1 L_B")
    return e

def plan(S, who):
    issue = {}; need = {}
    for t in S['allt']:
        if t.by == who:
            issue.setdefault(t.issue, []).append(t)
            need.setdefault(t.consume[0], []).append(t)
    for k in issue:
        issue[k].sort(key=lambda t: getattr(t, 'order', 100))
    return issue, need

class Fine:
    def __init__(s, e, cfg, reg, tick):
        s.e, s.cfg, s.reg, s.tick, s.n, s.cur = e, cfg, reg, tick, 0, -1
    def __call__(s, label=""):
        if s.cfg.prof and s.cur == s.tick and s.n < 12:
            s.e.raw("    s_memtime s[96:97]")
            s.e.raw("    s_waitcnt lgkmcnt(0)")
            s.e.lgkm = []
            s.e.raw(f"    v_writelane_b32 v{s.reg}, s96, {s.n}")
            print("fine", s.reg, s.n, label, file=sys.stderr)
            s.n += 1

def gen_B(cfg, S):
    e = Em('B')
    e.skip = cfg.skipB; e.skiptile = cfg.skiptile
    dreg = dict(K=[1, 2, 3], WQ=[4, 5, 6], V=[8, 9])
    kA = [10, 11]; vA = [12, 13, 14, 15]; oA = [16, 17, 18, 19]; TT = [20, 21, 22, 23]; TU = [7, 26 + 0, 30, 31]
    vm, vmc, vinvl, t0, t1, t2 = 24, 25, 26, 27, 28, 29
    ONES = 32; LACC = 36; OACC = 40; QF = 56; FR = 80; SB = 128
    qt = [27, 28]
    fine = Fine(e, cfg, 29, cfg.fineB)
    e.label("L_B")
    dreg['X'] = [20, 21]
    calc_dX(e, dreg['X'], t0, t1)
    calc_dWQ(e, dreg['WQ'], t0, t1, t2)
    rest, lst = build_srds(e, cfg, 'X')
    lst['WQ'](); rest.remove('WQ')
    issue, needB = plan(S, 'B')
    cons = {}
    for t in S['H']:
        cons.setdefault(t.consume[0], []).append(t)
    pfitems = []
    PFA = 7
    def mk_wo(hd, i, reg):
        def f():
            e.salu(f"s_mul_i32 s{S_T0}, s{S_B}, 15360")
            e.salu(f"s_add_u32 s{S_T0}, s{S_T0}, s{S_W1024}")
            e.salu(f"s_add_u32 s{S_T1}, s{S_T0}, {hd*245760 + i*4096}")
            e.I(f"buffer_load_dwordx4 {vr(reg, 4)}, v{PFA}, s[{SRD_WO}:{SRD_WO+3}], s{S_T1} offen{cfg.nt_pf}", 'vload', w=R(reg, 4), r=[PFA])
        return f
    def mk_wq(rb, p, reg):
        def f():
            e.salu(f"s_mul_i32 s{S_T0}, s{S_B}, {40*12288}")
            e.salu(f"s_add_u32 s{S_T0}, s{S_T0}, s{S_WQCOL}")
            e.salu(f"s_add_u32 s{S_T0}, s{S_T0}, {384 + rb*12288}")
            off = f" offset:{1024*p}" if p else ""
            e.I(f"buffer_load_dwordx4 {vr(reg, 4)}, v{dreg['WQ'][p]}, s[{SRD_WQ}:{SRD_WQ+3}], s{S_T0} offen{off}", 'vload', w=R(reg, 4), r=[dreg['WQ'][p]])
        return f
    wq_items = [mk_wq(rb, p, SB + 12 * (rb // 8) + 4 * p) for rb in (0, 8) for p in range(3)]
    wo_items = [mk_wo(hd, i, (OACC + 4 * i) if hd == 0 else cfg.pf_dst1(SB, i)) for hd in range(2) for i in range(4)]
    allitems = (wq_items if cfg.pf_wq else []) + wo_items
    pfplan = {}
    for n, it in enumerate(allitems):
        pfplan.setdefault(cfg.pf_ticks[min(n, len(cfg.pf_ticks) - 1)], []).append(it)
    def do_issue(tk):
        for t in issue.get(tk, []):
            dma_tile(e, t, cfg, dreg)
        if tk > 0:
            for it in pfplan.get(tk, []): it()
    stamp(e, cfg, 1)
    do_issue(0)
    stamp(e, cfg, 2)
    for k in rest: lst[k]()
    V(e, f"v_lshlrev_b32 v{PFA}, 4, v0", [PFA], [0])
    for it in pfplan.get(0, []): it()
    calc_dK(e, dreg['K'], t0, t1)
    calc_dV(e, dreg['V'], t0, t1)
    V(e, f"v_and_b32 v{t0}, 15, v0", [t0], [0])
    V(e, f"v_lshrrev_b32 v{t1}, 1, v{t0}", [t1], [t0])
    V(e, f"v_lshrrev_b32 v{t2}, 4, v0", [t2], [0])
    V(e, f"v_xor_b32 v{t2}, v{t2}, v{t1}", [t2], [t1, t2])
    V(e, f"v_lshlrev_b32 v{t2}, 4, v{t2}", [t2], [t2])
    V(e, f"v_mul_u32_u24 v{kA[0]}, 384, v{t0}", [kA[0]], [t0])
    V(e, f"v_add_u32 v{kA[0]}, v{kA[0]}, v{t2}", [kA[0]], [kA[0], t2])
    V(e, f"v_xor_b32 v{t2}, 64, v{t2}", [t2], [t2])
    V(e, f"v_mul_u32_u24 v{kA[1]}, 384, v{t0}", [kA[1]], [t0])
    V(e, f"v_add_u32 v{kA[1]}, v{kA[1]}, v{t2}", [kA[1]], [kA[1], t2])
    V(e, f"v_lshlrev_b32 v{t2}, 7, v{t0}", [t2], [t0])
    V(e, f"v_add_u32 v{t2}, s{S_W2048}, v{t2}", [t2], [t2])
    V(e, f"v_add_u32 v{t2}, {cfg.OB}, v{t2}", [t2], [t2])
    V(e, f"v_lshrrev_b32 v{vm}, 4, v0", [vm], [0])
    V(e, f"v_and_b32 v{vmc}, 1, v{vm}", [vmc], [vm])
    V(e, f"v_lshlrev_b32 v{vmc}, 3, v{vmc}", [vmc], [vmc])
    V(e, f"v_add_u32 v{t2}, v{t2}, v{vmc}", [t2], [t2, vmc])
    V(e, f"v_lshrrev_b32 v{vm}, 1, v{vm}", [vm], [vm])
    for dt in range(4):
        V(e, f"v_add_u32 v{vmc}, {2*dt}, v{vm}", [vmc], [vm])
        V(e, f"v_xor_b32 v{vmc}, v{vmc}, v{t1}", [vmc], [vmc, t1])
        V(e, f"v_lshlrev_b32 v{vmc}, 4, v{vmc}", [vmc], [vmc])
        V(e, f"v_add_u32 v{oA[dt]}, v{t2}, v{vmc}", [oA[dt]], [t2, vmc])
    V(e, f"v_lshrrev_b32 v{t0}, 2, v0", [t0], [0])
    V(e, f"v_and_b32 v{t1}, 6, v{t0}", [t1], [t0])
    V(e, f"v_lshlrev_b32 v{t0}, 7, v{t0}", [t0], [t0])
    V(e, f"v_and_b32 v{t2}, 3, v0", [t2], [0])
    V(e, f"v_lshlrev_b32 v{t2}, 3, v{t2}", [t2], [t2])
    V(e, f"v_add_u32 v{t0}, v{t0}, v{t2}", [t0], [t0, t2])
    for dt in range(4):
        V(e, f"v_xor_b32 v{t2}, {2*dt}, v{t1}", [t2], [t1])
        V(e, f"v_lshlrev_b32 v{t2}, 4, v{t2}", [t2], [t2])
        V(e, f"v_add_u32 v{vA[dt]}, v{t0}, v{t2}", [vA[dt]], [t0, t2])
    for i in range(4):
        V(e, f"v_mov_b32 v{ONES+i}, 0x3f803f80", [ONES + i])

    def load_qfrags(qb):
        V(e, f"v_add_u32 v{qt[0]}, s{S_W6144}, v{kA[0]}", [qt[0]], [kA[0]])
        V(e, f"v_add_u32 v{qt[1]}, s{S_W6144}, v{kA[1]}", [qt[1]], [kA[1]])
        if qb:
            V(e, f"v_add_u32 v{qt[0]}, {qb}, v{qt[0]}", [qt[0]], [qt[0]])
            V(e, f"v_add_u32 v{qt[1]}, {qb}, v{qt[1]}", [qt[1]], [qt[1]])
        for s in range(6):
            dsr128(e, QF + 4 * s, qt[s % 2], (s // 2) * 128)

    def maxtile(jt):
        b = SB + 8 * jt
        if jt == 0:
            e.valu(f"v_max3_f32 v{vm}, v{b}, v{b+1}, v{b+2}", w=[vm], r=[b, b + 1, b + 2])
            e.valu(f"v_max3_f32 v{vm}, v{vm}, v{b+3}, v{b+4}", w=[vm], r=[vm, b + 3, b + 4])
            e.valu(f"v_max3_f32 v{vm}, v{vm}, v{b+5}, v{b+6}", w=[vm], r=[vm, b + 5, b + 6])
            e.valu(f"v_max_f32 v{vm}, v{vm}, v{b+7}", w=[vm], r=[vm, b + 7])
        else:
            for i in range(4):
                e.valu(f"v_max3_f32 v{vm}, v{vm}, v{b+2*i}, v{b+2*i+1}", w=[vm], r=[vm, b + 2 * i, b + 2 * i + 1])

    def maxlist(jt):
        b = SB + 8 * jt
        out = []
        if jt == 0:
            out.append(lambda: e.valu(f"v_max3_f32 v{vm}, v{b}, v{b+1}, v{b+2}", w=[vm], r=[b, b + 1, b + 2]))
            out.append(lambda: e.valu(f"v_max3_f32 v{vm}, v{vm}, v{b+3}, v{b+4}", w=[vm], r=[vm, b + 3, b + 4]))
            out.append(lambda: e.valu(f"v_max3_f32 v{vm}, v{vm}, v{b+5}, v{b+6}", w=[vm], r=[vm, b + 5, b + 6]))
            out.append(lambda: e.valu(f"v_max_f32 v{vm}, v{vm}, v{b+7}", w=[vm], r=[vm, b + 7]))
        else:
            for i in range(4):
                out.append(lambda i=i: e.valu(f"v_max3_f32 v{vm}, v{vm}, v{b+2*i}, v{b+2*i+1}", w=[vm], r=[vm, b + 2 * i, b + 2 * i + 1]))
        return out

    def qk2(ta, tb, tk):
        if ta.j == 0 and ta.hd == 0:
            load_qfrags(cfg.Q0B)
        for n, t in enumerate((ta, tb)):
            V(e, f"v_add_u32 v{TT[2*n]}, {t.addr}, v{kA[0]}", [TT[2*n]], [kA[0]])
            V(e, f"v_add_u32 v{TT[2*n+1]}, {t.addr}, v{kA[1]}", [TT[2*n+1]], [kA[1]])
        pairs = [(n, tp, s_) for n in range(2) for s_ in range(6) for tp in range(2)]
        def rd(i):
            n, tp, s_ = pairs[i]
            dsr128(e, FR + 4 * (i % 12), TT[2 * n + s_ % 2], tp * 6144 + (s_ // 2) * 128)
        def mm(i):
            n, tp, s_ = pairs[i]
            t = (ta, tb)[n]
            d = SB + 4 * (2 * t.j + tp)
            mfma16(e, d, FR + 4 * (i % 12), QF + 4 * s_, None if s_ == 0 else d)
        for i in range(12): rd(i)
        if cfg.b_pos == 0: do_issue(tk)
        mx = []
        if ta.j > 0:
            mx = maxlist(ta.j - 2) + maxlist(ta.j - 1)
        for i in range(24):
            mm(i)
            if i + 12 < 24: rd(i + 12)
            if i < len(mx): mx[i]()
            if cfg.b_pos == 1 and i == 5: do_issue(tk)
            if cfg.b_pos == 2 and i == 11: do_issue(tk)
        if cfg.b_pos == 3: do_issue(tk)

    def softmax_fin():
        maxtile(14); maxtile(15)
        V(e, f"v_mov_b32 v{t0}, v{vm}", [t0], [vm])
        e.I(f"v_permlane32_swap_b32 v{t0}, v{vm}", 'permlane', w=[t0, vm], r=[t0, vm])
        V(e, f"v_max_f32 v{vm}, v{vm}, v{t0}", [vm], [vm, t0])
        V(e, f"v_mov_b32 v{t0}, v{vm}", [t0], [vm])
        e.I(f"v_permlane16_swap_b32 v{t0}, v{vm}", 'permlane', w=[t0, vm], r=[t0, vm])
        V(e, f"v_max_f32 v{vm}, v{vm}, v{t0}", [vm], [vm, t0])
        V(e, f"v_mul_f32 v{vmc}, s{S_C}, v{vm}", [vmc], [vm])

    def expstep(sp):
        b = SB + 8 * sp
        for i in range(8):
            e.valu(f"v_fma_f32 v{b+i}, v{b+i}, s{S_C}, -v{vmc}", w=[b + i], r=[b + i, vmc])
        for i in range(8):
            e.I(f"v_exp_f32 v{b+i}, v{b+i}", 'trans', w=[b + i], r=[b + i])
        for i in range(4):
            cvtpk(e, b + i, b + 2 * i, b + 2 * i + 1)

    def explist(sp):
        b = SB + 8 * sp
        out = []
        for i in range(8):
            out.append(lambda i=i: e.valu(f"v_fma_f32 v{b+i}, v{b+i}, s{S_C}, -v{vmc}", w=[b + i], r=[b + i, vmc]))
        for i in range(8):
            out.append(lambda i=i: e.I(f"v_exp_f32 v{b+i}, v{b+i}", 'trans', w=[b + i], r=[b + i]))
        for i in range(4):
            out.append(lambda i=i: cvtpk(e, b + i, b + 2 * i, b + 2 * i + 1))
        return out

    def pv2(ta, tb, tk):
        sl = ta.sl
        last = (tb.j == 7)
        if tk == S['tQ1'] + 1:
            load_qfrags(cfg.Q1B)
        AR = [TT, [4, 5, 6, 7]]
        for n, t in enumerate((ta, tb)):
            for dt in range(4):
                V(e, f"v_add_u32 v{AR[n][dt]}, {t.addr}, v{vA[dt]}", [AR[n][dt]], [vA[dt]])
        pairs = [(q, dt) for q in range(4) for dt in range(4)]
        def rd(i):
            q, dt = pairs[i]
            n, ks = q // 2, q % 2
            for h in range(2):
                dsrtr(e, FR + 4 * (i % 12) + 2 * h, AR[n][dt], ks * 4096 + h * 2048)
        def mm(i):
            q, dt = pairs[i]
            P = SB + 8 * (2 * ta.j + q)
            first = (ta.j == 0 and q == 0)
            mfma16(e, OACC + 4 * dt, FR + 4 * (i % 12), P, None if first else OACC + 4 * dt)
            if sl == 0 and dt == 3:
                mfma16(e, LACC, ONES, P, None if first else LACC)
        for i in range(12): rd(i)
        if cfg.b_pos == 0: do_issue(tk)
        if sl == 0:
            if ta.j == 0:
                softmax_fin_deferred()
                for f in explist(0): f()
            elif not cfg.exp_ahead:
                for f in explist(2 * ta.j): f()
        for q in range(4):
            nxt = []
            if sl == 0:
                sp_next = 2 * ta.j + q + 1
                if q < 3 or (cfg.exp_ahead and sp_next < 16):
                    nxt = explist(sp_next)
            for dt in range(4):
                i = 4 * q + dt
                mm(i)
                if i + 12 < 16: rd(i + 12)
                for f in nxt[5 * dt:5 * dt + 5]: f()
            if cfg.b_pos == q + 1: do_issue(tk)
        if last:
            if sl == 0:
                e.I(f"v_rcp_f32 v{vinvl}, v{LACC}", 'trans', w=[vinvl], r=[LACC])
            for dt in range(4):
                o = OACC + 4 * dt
                for i in range(4):
                    V(e, f"v_mul_f32 v{o+i}, v{o+i}, v{vinvl}", [o + i], [o + i, vinvl])
                cvtpk(e, o, o, o + 1)
                cvtpk(e, o + 1, o + 2, o + 3)
                dsw64(e, oA[dt], o, 0)

    def softmax_fin_deferred():
        maxtile(14); maxtile(15)
        u = 27
        V(e, f"v_mov_b32 v{u}, v{vm}", [u], [vm])
        e.I(f"v_permlane32_swap_b32 v{u}, v{vm}", 'permlane', w=[u, vm], r=[u, vm])
        V(e, f"v_max_f32 v{vm}, v{vm}, v{u}", [vm], [vm, u])
        V(e, f"v_mov_b32 v{u}, v{vm}", [u], [vm])
        e.I(f"v_permlane16_swap_b32 v{u}, v{vm}", 'permlane', w=[u, vm], r=[u, vm])
        V(e, f"v_max_f32 v{vm}, v{vm}, v{u}", [vm], [vm, u])
        V(e, f"v_mul_f32 v{vmc}, s{S_C}, v{vm}", [vmc], [vm])

    for tk in range(0, S['nticks']):
        if tk > 0:
            e.comment(f"---- B tick {tk}")
            if cfg.prof:
                e.raw("    s_memtime s[80:81]")
                e.raw("    s_waitcnt lgkmcnt(0)")
                e.lgkm = []
            e.barrier()
            if cfg.prof:
                e.raw(f"    v_writelane_b32 v31, s80, {tk}")
            ts = cons.get(tk)
            fine.cur = tk
            if ts is None:
                do_issue(tk)
            elif ts[0].kind == 'k':
                qk2(ts[0], ts[1], tk)
            else:
                pv2(ts[0], ts[1], tk)
        if tk == 0: stamp(e, cfg, 3)
        lstamp2(e, cfg, 1, 0, tk, S)
        for t in needB.get(tk + 1, []):
            e.wait_tile(t)
        lstamp2(e, cfg, 1, 1, tk, S)
        if tk == 0: stamp(e, cfg, 4)
    if cfg.prof:
        e.raw("    s_memtime s[80:81]")
        e.raw("    s_waitcnt lgkmcnt(0)")
        e.raw(f"    v_writelane_b32 v31, s80, 63")
        e.raw(f"    v_writelane_b32 v31, s82, 0")
        for n in range(5):
            e.raw(f"    v_writelane_b32 v31, s{STAMPS[n]}, {56+n}")
        e.raw(f"    s_lshl_b32 s84, s{S_WG}, 3")
        e.raw(f"    s_add_u32 s84, s84, s{S_WAVE}")
        e.raw(f"    s_lshl_b32 s84, s84, 10")
        e.raw(f"    s_add_u32 s84, s84, {64<<20}")
        e.raw(f"    s_add_u32 s88, s{S_PTR+14}, s84")
        e.raw(f"    s_addc_u32 s89, s{S_PTR+15}, 0")
        e.raw(f"    s_and_b32 s89, s89, 0xffff")
        e.raw(f"    s_mov_b32 s90, 1024")
        e.raw(f"    s_mov_b32 s91, 0x20000")
        e.raw(f"    v_lshlrev_b32 v28, 2, v0")
        e.raw(f"    buffer_store_dword v31, v28, s[88:91], 0 offen")
        e.raw(f"    buffer_store_dword v29, v28, s[88:91], 0 offen offset:256")
        e.raw(f"    buffer_store_dword v30, v28, s[88:91], 0 offen offset:512")
    if cfg.inred:
        e.raw("    s_barrier")
        e.raw(f"    s_cmp_eq_u32 s{S_W}, 0")
        e.raw("    s_cbranch_scc0 L_Bwait")
        e.raw(f"    s_lshl_b32 s56, s{S_B}, 4")
        e.raw(f"    s_add_u32 s58, s{S_PTR+12}, s56")
        e.raw(f"    s_addc_u32 s59, s{S_PTR+13}, 0")
        e.raw("    v_mov_b32 v2, 0")
        e.raw("    v_mov_b32 v3, 1")
        e.raw("    s_mov_b64 s[60:61], exec")
        e.raw("    s_mov_b64 exec, 1")
        e.raw("    global_atomic_add v2, v3, s[58:59]")
        e.raw("    s_mov_b32 s62, 0")
        e.raw("L_poll:")
        e.raw("    global_load_dword v4, v2, s[58:59] sc1")
        e.raw("    s_waitcnt vmcnt(0)")
        e.raw("    v_readfirstlane_b32 s63, v4")
        e.raw("    s_add_u32 s62, s62, 1")
        e.raw("    s_nop 2")
        e.raw("    s_cmp_ge_u32 s63, 16")
        e.raw("    s_cbranch_scc1 L_polldone")
        e.raw(f"    s_cmp_ge_u32 s62, {cfg.spin_max}")
        e.raw("    s_cbranch_scc1 L_polldone")
        e.raw("    s_sleep 1")
        e.raw("    s_branch L_poll")
        e.raw("L_polldone:")
        e.raw("    s_mov_b64 exec, s[60:61]")
        e.raw("L_Bwait:")
        e.raw("    s_barrier")
        e.raw(f"    s_mov_b32 s56, s{S_W}")
        e.raw("    s_branch L_RED")
        e.nbar += 2
    else:
        e.raw("    s_endpgm")
    return e

def lstamp2(e, cfg, grp, kind, tk, S):
    if not cfg.prof or tk > 62 or tk < cfg.prof_from: return
    if cfg.h_pol is not None and grp == 0 and kind == 0: return
    e.raw("    s_memtime s[96:97]")
    e.raw("    s_waitcnt lgkmcnt(0)")
    e.lgkm = []
    reg = {(0, 0): 91, (0, 1): 92, (1, 0): 29, (1, 1): 30}[(grp, kind)]
    if cfg.h_pol is not None and grp == 0:
        reg = 95
    e.raw(f"    v_writelane_b32 v{reg}, s96, {tk}")

def gen_A(cfg, S):
    e = Em('A')
    e.skip = cfg.skipA; e.skiptile = cfg.skiptile
    e.label("L_A")
    dreg = dict(K=[90, 91, 92], V=[93, 94], WQ=[4, 5, 6], X=[88, 89])
    wA = [7, 8, 9]; xA = [10, 11, 90, 91]; t0, t1, t2, t3 = 12, 13, 14, 15
    QACC = 32; XR = 96
    FS = [16, 20, 24, 28, 80, 84]
    rest, lst = build_srds(e, cfg, 'WQ')
    issue, needA = plan(S, 'A')
    touches = {}
    if cfg.touch:
        touches.setdefault(cfg.touch_wq1, []).append(('wq1',))
        for t in S['WO']:
            if t.a == 0:
                touches.setdefault(max(cfg.touch_wq1 + 1, t.issue - cfg.touch_wo_lead), []).append(('wo', t.hd, t.sl))
    def do_issue(tk, part='all'):
        for t in issue.get(tk, []):
            early = (t.consume[0] - t.issue) <= cfg.early_lead and tk > cfg.a_end_until
            if part == 'all' or (part == 'start') == early:
                dma_tile(e, t, cfg, dreg)
        if part == 'start': return
        for tc in touches.get(tk, []):
            if tc[0] == 'wq1':
                e.salu(f"s_mul_i32 s{S_T0}, s{S_B}, {40*12288}")
                e.salu(f"s_add_u32 s{S_T0}, s{S_T0}, s{S_WQCOL}")
                e.salu(f"s_add_u32 s{S_T0}, s{S_T0}, 384")
                e.I(f"buffer_load_dword v93, v94, s[{SRD_WQ}:{SRD_WQ+3}], s{S_T0} offen", 'vload', w=[93], r=[94])
            else:
                e.salu(f"s_mul_i32 s{S_T0}, s{S_B}, {40*128}")
                e.salu(f"s_add_u32 s{S_T0}, s{S_T0}, {(tc[1]*192 + 64*tc[2])*1280}")
                e.I(f"buffer_load_dword v93, v95, s[{SRD_WO}:{SRD_WO+3}], s{S_T0} offen", 'vload', w=[93], r=[95])
    stamp(e, cfg, 1)
    do_issue(0)
    stamp(e, cfg, 2)
    for k in rest: lst[k]()
    if cfg.touch:
        V(e, f"v_add_u32 v{t0}, s{S_W64}, v0", [t0], [0])
        V(e, f"v_mul_u32_u24 v{t1}, 171, v{t0}", [t1], [t0])
        V(e, f"v_lshrrev_b32 v{t1}, 9, v{t1}", [t1], [t1])
        V(e, f"v_mul_u32_u24 v{t2}, 3, v{t1}", [t2], [t1])
        V(e, f"v_sub_u32 v{t2}, v{t0}, v{t2}", [t2], [t0, t2])
        V(e, f"v_lshlrev_b32 v{t2}, 7, v{t2}", [t2], [t2])
        e.salu(f"s_mov_b32 s{S_T1}, 12288")
        V(e, f"v_mul_lo_u32 v{t1}, v{t1}, s{S_T1}", [t1], [t1])
        V(e, f"v_add_u32 v{t1}, v{t1}, v{t2}", [t1], [t1, t2])
        V(e, f"v_cmp_gt_u32 vcc, 120, v{t0}", ['vcc'], [t0])
        V(e, f"v_mov_b32 v{t2}, 0x7fffffff", [t2])
        e.valu(f"v_cndmask_b32 v94, v{t2}, v{t1}, vcc", w=[94], r=[t1, t2, 'vcc'])
        V(e, f"v_lshlrev_b32 v{t1}, 7, v{t0}", [t1], [t0])
        V(e, f"v_cmp_gt_u32 vcc, 40, v{t0}", ['vcc'], [t0])
        e.valu(f"v_cndmask_b32 v95, v{t2}, v{t1}, vcc", w=[95], r=[t1, t2, 'vcc'])
    calc_dWQ(e, dreg['WQ'], t0, t1, t2)
    V(e, f"v_lshrrev_b32 v{t0}, 5, v0", [t0], [0])
    V(e, f"v_lshlrev_b32 v{t0}, 3, v{t0}", [t0], [t0])
    V(e, f"v_bfe_u32 v{t1}, v0, 2, 2", [t1], [0])
    V(e, f"v_add_u32 v{t0}, v{t0}, v{t1}", [t0], [t0, t1])
    V(e, f"v_mul_u32_u24 v{t0}, 384, v{t0}", [t0], [t0])
    V(e, f"v_and_b32 v{t2}, 1, v0", [t2], [0])
    V(e, f"v_lshlrev_b32 v{t2}, 3, v{t2}", [t2], [t2])
    V(e, f"v_add_u32 v{t0}, v{t0}, v{t2}", [t0], [t0, t2])
    V(e, f"v_and_b32 v{t1}, 2, v{t1}", [t1], [t1])
    V(e, f"v_lshlrev_b32 v{t1}, 1, v{t1}", [t1], [t1])
    V(e, f"v_bfe_u32 v{t2}, v0, 4, 1", [t2], [0])
    V(e, f"v_lshlrev_b32 v{t2}, 1, v{t2}", [t2], [t2])
    V(e, f"v_bfe_u32 v{t3}, v0, 1, 1", [t3], [0])
    V(e, f"v_add_u32 v{t2}, v{t2}, v{t3}", [t2], [t2, t3])
    V(e, f"v_add_u32 v{t2}, s{S_DH12}, v{t2}", [t2], [t2])
    for j in range(3):
        V(e, f"v_add_u32 v{t3}, {4*j}, v{t2}", [t3], [t2])
        V(e, f"v_xor_b32 v{t3}, v{t3}, v{t1}", [t3], [t3, t1])
        V(e, f"v_lshlrev_b32 v{t3}, 4, v{t3}", [t3], [t3])
        V(e, f"v_add_u32 v{wA[j]}, v{t0}, v{t3}", [wA[j]], [t0, t3])
    e.salu(f"s_and_b32 s{S_T0}, s{S_W}, 1")
    e.salu(f"s_lshl_b32 s{S_T1}, s{S_T0}, 5")
    V(e, f"v_and_b32 v{t0}, 31, v0", [t0], [0])
    V(e, f"v_add_u32 v{t0}, s{S_T1}, v{t0}", [t0], [t0])
    V(e, f"v_bfe_u32 v{t1}, v{t0}, 1, 3", [t1], [t0])
    V(e, f"v_lshrrev_b32 v{t2}, 5, v0", [t2], [0])
    V(e, f"v_lshlrev_b32 v{t0}, 7, v{t0}", [t0], [t0])
    V(e, f"v_add_u32 v{t0}, {cfg.xbase}, v{t0}", [t0], [t0])
    for m in range(4):
        V(e, f"v_add_u32 v{t3}, {2*m}, v{t2}", [t3], [t2])
        V(e, f"v_xor_b32 v{t3}, v{t3}, v{t1}", [t3], [t3, t1])
        V(e, f"v_lshlrev_b32 v{t3}, 4, v{t3}", [t3], [t3])
        V(e, f"v_add_u32 v{xA[m]}, v{t0}, v{t3}", [xA[m]], [t0, t3])

    consA = {}
    for t in S['W0'] + S['W1t']:
        consA.setdefault(t.consume[0], []).append(t)
    woc = {}
    for t in S['WO']:
        woc.setdefault(t.consume[0], []).append(t)

    st = {'wB': False}
    wBr = [t0, t1, t2]
    def qproj2(ts, tk):
        regs = []
        for n, t in enumerate(ts):
            if t.addr + 12288 > 65536:
                if not st['wB']:
                    for j in range(3):
                        V(e, f"v_add_u32 v{wBr[j]}, 32768, v{wA[j]}", [wBr[j]], [wA[j]])
                    st['wB'] = True
                regs.append((wBr, t.addr - 32768))
            else:
                regs.append((wA, t.addr))
        def reads(q):
            n, s = q // 2, q % 2
            t = ts[n]
            if t.hd == 0:
                m = q
                xo = (t.i // 2) * 8192
                if xo >= 65536:
                    V(e, f"v_add_u32 v{t3}, 65536, v{xA[m]}", [t3], [xA[m]])
                    dsr128(e, XR + 4 * (2 * t.i + s), t3, xo - 65536)
                else:
                    dsr128(e, XR + 4 * (2 * t.i + s), xA[m], xo)
            wr, wb = regs[n]
            for j in range(3):
                for h in range(2):
                    dsrtr(e, FS[3 * (q % 2) + j] + 2 * h, wr[j], wb + s * 16 * 384 + h * 4 * 384)
        def mm(q):
            n, s = q // 2, q % 2
            t = ts[n]
            for j in range(3):
                d = QACC + 16 * j
                mfma32(e, d, FS[3 * (q % 2) + j], XR + 4 * (2 * t.i + s), None if (t.i == 0 and s == 0) else d)
        def rdx_abs(blk, m):
            xo = blk * 8192
            dst = XR + 4 * (4 * blk + m)
            if xo >= 65536:
                V(e, f"v_add_u32 v{t3}, 65536, v{xA[m]}", [t3], [xA[m]])
                dsr128(e, dst, t3, xo - 65536)
            else:
                dsr128(e, dst, xA[m], xo)
        def rdx(q):
            pass
        def rdw(q, j):
            n, s_ = q // 2, q % 2
            wr, wb = regs[n]
            for h in range(2):
                dsrtr(e, FS[3 * (q % 2) + j] + 2 * h, wr[j], wb + s_ * 16 * 384 + h * 4 * 384)
        def mm1(q, j):
            n, s_ = q // 2, q % 2
            t = ts[n]
            d = QACC + 16 * j
            mfma32(e, d, FS[3 * (q % 2) + j], XR + 4 * (2 * t.i + s_), None if (t.i == 0 and s_ == 0) else d)
        extra = []
        if ts[0].hd == 0:
            blks = [t.j for t in S['X'] if t.consume[0] == tk]
            cur = ts[0].i // 2
            if cur in blks:
                for m in range(4): rdx_abs(cur, m)
            extra = [(blk, m) for blk in blks if blk != cur for m in range(4)]
        for j in range(3): rdw(0, j)
        for j in range(3): rdw(1, j)
        do_issue(tk, 'start')
        for q in range(4):
            for j in range(3):
                mm1(q, j)
                if q + 2 < 4: rdw(q + 2, j)
                for _ in range(3):
                    if extra: rdx_abs(*extra.pop(0))
        do_issue(tk, 'end')

    def qfin(qb):
        st['wB'] = False
        e.salu(f"s_and_b32 s{S_T0}, s{S_W}, 1")
        e.salu(f"s_lshl_b32 s{S_T1}, s{S_T0}, 5")
        V(e, f"v_and_b32 v{t0}, 31, v0", [t0], [0])
        V(e, f"v_add_u32 v{t0}, s{S_T1}, v{t0}", [t0], [t0])
        V(e, f"v_bfe_u32 v{t1}, v{t0}, 1, 3", [t1], [t0])
        V(e, f"v_mul_u32_u24 v{t0}, 384, v{t0}", [t0], [t0])
        V(e, f"v_lshrrev_b32 v{t2}, 5, v0", [t2], [0])
        V(e, f"v_lshlrev_b32 v{t2}, 3, v{t2}", [t2], [t2])
        V(e, f"v_add_u32 v{t0}, v{t0}, v{t2}", [t0], [t0, t2])
        if qb:
            V(e, f"v_add_u32 v{t0}, {qb}, v{t0}", [t0], [t0])
        for j in range(3):
            for g in range(4):
                a = QACC + 16 * j + 4 * g
                cvtpk(e, a, a, a + 1)
                cvtpk(e, a + 1, a + 2, a + 3)
                e.salu(f"s_add_u32 s{S_T0}, s{S_DH12}, {4*j+g}")
                tt = t2 if g % 2 == 0 else t3
                V(e, f"v_xor_b32 v{tt}, s{S_T0}, v{t1}", [tt], [t1])
                V(e, f"v_lshl_add_u32 v{tt}, v{tt}, 4, v{t0}", [tt], [tt, t0])
                dsw64(e, tt, a, 0)

    dWO = [1, 2, 3, 88, 89]; woA = [6, 7, 8, 9]; ofA = [10, 11, 12, 13]
    OF = 32
    AS = [48, 52, 56, 60, 64, 68, 72, 76, 80, 84, 88, 92]
    OUT = XR
    def setup_out1():
        calc_dWO(e, dWO, 15, 90)
        dreg['WO'] = dWO
    def setup_out2():
        a0, a1, a2, a3 = 20, 21, 22, 23
        V(e, f"v_lshrrev_b32 v{a0}, 5, v0", [a0], [0])
        V(e, f"v_lshlrev_b32 v{a0}, 3, v{a0}", [a0], [a0])
        V(e, f"v_bfe_u32 v{a1}, v0, 2, 2", [a1], [0])
        V(e, f"v_add_u32 v{a0}, v{a0}, v{a1}", [a0], [a0, a1])
        V(e, f"v_mul_u32_u24 v{a0}, 1280, v{a0}", [a0], [a0])
        V(e, f"v_bfe_u32 v{a2}, v0, 1, 1", [a2], [0])
        V(e, f"v_lshlrev_b32 v{a2}, 3, v{a2}", [a2], [a2])
        V(e, f"v_add_u32 v{a0}, v{a0}, v{a2}", [a0], [a0, a2])
        V(e, f"v_bfe_u32 v{a2}, v0, 4, 1", [a2], [0])
        V(e, f"v_lshlrev_b32 v{a2}, 1, v{a2}", [a2], [a2])
        V(e, f"v_and_b32 v{a3}, 1, v0", [a3], [0])
        V(e, f"v_add_u32 v{a2}, v{a2}, v{a3}", [a2], [a2, a3])
        V(e, f"v_lshl_add_u32 v{a0}, v{a2}, 4, v{a0}", [a0], [a2, a0])
        e.salu(f"s_lshr_b32 s{S_T0}, s{S_W}, 1")
        e.salu(f"s_mul_i32 s{S_T0}, s{S_T0}, 10")
        for j in range(4):
            e.salu(f"s_add_u32 s{S_T1}, s{S_T0}, {j}")
            V(e, f"v_xor_b32 v{a2}, s{S_T1}, v{a1}", [a2], [a1])
            V(e, f"v_lshl_add_u32 v{woA[j]}, v{a2}, 6, v{a0}", [woA[j]], [a2, a0])
        e.salu(f"s_and_b32 s{S_T0}, s{S_W}, 1")
        e.salu(f"s_lshl_b32 s{S_T1}, s{S_T0}, 5")
        V(e, f"v_and_b32 v{a0}, 31, v0", [a0], [0])
        V(e, f"v_add_u32 v{a0}, s{S_T1}, v{a0}", [a0], [a0])
        V(e, f"v_bfe_u32 v{a1}, v{a0}, 1, 3", [a1], [a0])
        V(e, f"v_lshlrev_b32 v{a0}, 7, v{a0}", [a0], [a0])
        V(e, f"v_add_u32 v{a0}, {cfg.OB}, v{a0}", [a0], [a0])
        V(e, f"v_lshrrev_b32 v{a2}, 5, v0", [a2], [0])
        for ss in range(4):
            if cfg.wo_rot:
                e.salu(f"s_add_u32 s{S_T0}, s13, {ss}")
                e.salu(f"s_and_b32 s{S_T0}, s{S_T0}, 3")
                e.salu(f"s_lshl_b32 s{S_T0}, s{S_T0}, 1")
                V(e, f"v_add_u32 v{a3}, s{S_T0}, v{a2}", [a3], [a2])
            else:
                V(e, f"v_add_u32 v{a3}, {2*ss}, v{a2}", [a3], [a2])
            V(e, f"v_xor_b32 v{a3}, v{a3}, v{a1}", [a3], [a3, a1])
            V(e, f"v_lshl_add_u32 v{ofA[ss]}, v{a3}, 4, v{a0}", [ofA[ss]], [a3, a0])

    wost = {}
    def wo_reads(t, js, slots):
        if t.addr + 20480 <= 65536:
            regs, base = woA, t.addr
        else:
            key = t.addr
            if key not in wost:
                sets_ = [[16, 17, 18, 19], [20, 21, 22, 23], [24, 25, 26, 27], [28, 29, 30, 31]]
                idx = wost.get('n', 0)
                regs = sets_[idx % 4]
                for k2 in [k for k, v in wost.items() if k != 'n' and v is regs]:
                    del wost[k2]
                wost['n'] = idx + 1
                for j in range(4):
                    V(e, f"v_add_u32 v{regs[j]}, {t.addr}, v{woA[j]}", [regs[j]], [woA[j]])
                wost[key] = regs
            regs, base = wost[key], 0
        for j, sl in zip(js, slots):
            areg = regs[j % 4]
            for h in range(2):
                dsrtr(e, sl + 2 * h, areg, base + h * 4 * 1280 + (j // 4) * 256)

    def outproj(t, tk):
        first_ever = (t.hd == 0 and t.sl == 0 and t.a == 0)
        if t.a == 0:
            for ss in range(4):
                dsr128(e, OF + 4 * ss, ofA[ss], 0)
        wo_reads(t, list(range(10)), AS[:10])
        do_issue(tk, 'start')
        for j in range(10):
            d = OUT + 16 * j
            mfma32(e, d, AS[j], OF + 4 * t.a, None if first_ever else d)
        do_issue(tk, 'end')

    def outproj_final(ts, tk):
        sl_ = ts[0].sl
        for ss in range(4):
            dsr128(e, OF + 4 * ss, ofA[ss], 0)
        tl = sorted(ts, key=lambda t: t.a)
        sv = 14
        V(e, f"v_lshlrev_b32 v{sv}, 4, v0", [sv], [0])
        e.salu(f"s_mul_i32 s{S_T2}, s{S_W}, {20*1024}")
        sets = [AS[0:4], AS[4:8], AS[8:12]]
        def reads(j):
            for a in range(4):
                wo_reads(tl[a], [j], [sets[j % 3][a]])
        def store(j):
            d = OUT + 16 * j
            for o in range(2):
                b = d + 8 * o
                for i in range(4):
                    cvtpk(e, b + i, b + 2 * i, b + 2 * i + 1)
                e.salu(f"s_add_u32 s{S_T3}, s{S_T2}, {(2*j+o)*1024}")
                e.I(f"buffer_store_dwordx4 {vr(b,4)}, v{sv}, s[{SRD_P}:{SRD_P+3}], s{S_T3} offen{cfg.st_flags}", 'vstore', r=R(b, 4) + [sv])
        reads(0); reads(1)
        for j in range(10):
            if j + 2 < 10:
                reads(j + 2)
            d = OUT + 16 * j
            for a in range(4):
                mfma32(e, d, sets[j % 3][a], OF + 4 * a, d)
            if j >= 2:
                store(j - 2)
        store(8); store(9)

    for tk in range(0, S['nticks']):
        if tk > 0:
            e.comment(f"---- A tick {tk}")
            e.barrier()
            if tk in consA:
                qproj2(consA[tk], tk)
            elif tk == S['tQ0']:
                qfin(cfg.Q0B)
                if cfg.h_pol is not None:
                    calc_dK(e, dreg['K'], t0, t1); calc_dV(e, dreg['V'], t0, t1)
                do_issue(tk); setup_out1()
            elif tk == S['tQ1']:
                qfin(cfg.Q1B)
                do_issue(tk)
            elif tk == S['tQ1'] + 1:
                setup_out2()
                do_issue(tk)
                assert tk not in woc
            elif tk in woc:
                lst_ = woc[tk]
                if len(lst_) == 1:
                    outproj(lst_[0], tk)
                else:
                    do_issue(tk)
                    if cfg.prof:
                        e.raw("    v_lshlrev_b32 v14, 2, v0")
                        e.raw("    v_add_u32 v14, 65536, v14")
                        e.raw(f"    s_lshr_b32 s84, s{S_W1024}, 1")
                        e.raw("    v_add_u32 v14, s84, v14")
                        if cfg.h_pol is not None: e.raw("    v_mov_b32 v92, v95")
                        e.raw("    ds_write_b32 v14, v91 offset:0")
                        e.raw("    ds_write_b32 v14, v92 offset:256")
                        e.raw("    s_waitcnt lgkmcnt(0)")
                    outproj_final(lst_, tk)
                    if cfg.prof:
                        e.raw("    s_waitcnt lgkmcnt(0)")
                        e.lgkm = []
                        e.raw("    v_lshlrev_b32 v15, 2, v0")
                        e.raw("    v_add_u32 v15, 65536, v15")
                        e.raw(f"    s_lshr_b32 s84, s{S_W1024}, 1")
                        e.raw("    v_add_u32 v15, s84, v15")
                        e.raw("    s_waitcnt vmcnt(0)")
                        e.vm = []
                        e.raw("    ds_read_b32 v91, v15 offset:0")
                        e.raw("    ds_read_b32 v92, v15 offset:256")
                        e.raw("    s_waitcnt lgkmcnt(0)")
            else:
                do_issue(tk)
        if tk == 0: stamp(e, cfg, 3)
        if tk < S['nticks'] - 1: lstamp2(e, cfg, 0, 0, tk, S)
        for t in needA.get(tk + 1, []):
            e.wait_tile(t)
        if tk < S['nticks'] - 1: lstamp2(e, cfg, 0, 1, tk, S)
        if tk == 0: stamp(e, cfg, 4)
    if cfg.prof:
        e.raw("    s_memtime s[80:81]")
        e.raw("    s_waitcnt vmcnt(0)")
        e.raw("    s_memtime s[86:87]")
        e.raw("    s_memrealtime s[10:11]")
        e.raw("    s_getreg_b32 s12, hwreg(HW_REG_XCC_ID)")
        e.raw("    s_waitcnt lgkmcnt(0)")
        e.raw(f"    s_lshl_b32 s84, s{S_WG}, 3")
        e.raw(f"    s_add_u32 s84, s84, s{S_WAVE}")
        e.raw(f"    s_lshl_b32 s84, s84, 10")
        e.raw(f"    s_add_u32 s84, s84, {64<<20}")
        e.raw(f"    s_add_u32 s88, s{S_PTR+14}, s84")
        e.raw(f"    s_addc_u32 s89, s{S_PTR+15}, 0")
        e.raw(f"    s_and_b32 s89, s89, 0xffff")
        e.raw(f"    s_mov_b32 s90, 1024")
        e.raw(f"    s_mov_b32 s91, 0x20000")
        e.raw(f"    v_writelane_b32 v91, s82, 0")
        e.raw(f"    v_writelane_b32 v91, s80, 1")
        e.raw(f"    v_writelane_b32 v91, s86, 2")
        e.raw(f"    v_writelane_b32 v91, s8, 8")
        e.raw(f"    v_writelane_b32 v91, s10, 9")
        e.raw(f"    v_writelane_b32 v91, s12, 10")
        for n in range(5):
            e.raw(f"    v_writelane_b32 v91, s{STAMPS[n]}, {3+n}")
        e.raw(f"    v_lshlrev_b32 v28, 2, v0")
        e.raw(f"    buffer_store_dword v91, v28, s[88:91], 0 offen offset:256")
        e.raw(f"    buffer_store_dword v92, v28, s[88:91], 0 offen offset:512")
    if cfg.inred:
        e.raw("    s_waitcnt vmcnt(0)")
        e.raw("    s_barrier")
        e.raw("    s_barrier")
        e.raw(f"    s_cmp_eq_u32 s{S_W}, 0")
        e.raw("    s_cbranch_scc0 L_exit")
        e.raw("    s_mov_b32 s56, 4")
        e.raw("    s_branch L_RED")
        e.nbar += 2
    else:
        e.raw("    s_endpgm")
    return e

def gen_red(cfg):
    L = []
    A = lambda t: L.append("    " + t)
    L.append("L_RED:")
    A(f"s_mul_i32 s57, s{S_HP}, 5")
    A("s_add_u32 s57, s57, s56")
    A(f"s_mul_i32 s58, s{S_B}, {16*81920}")
    A(f"s_add_u32 s32, s{S_PTR+14}, s58")
    A(f"s_addc_u32 s33, s{S_PTR+15}, 0")
    A("s_and_b32 s33, s33, 0xffff")
    A(f"s_mov_b32 s34, {16*81920}")
    A("s_mov_b32 s35, 0x20000")
    A("s_lshl_b32 s59, s57, 10")
    A("v_lshlrev_b32 v2, 4, v0")
    A("v_add_u32 v2, s59, v2")
    for h in range(16):
        A(f"s_mov_b32 s{60+h}, {h*81920}")
    for h in range(16):
        A(f"buffer_load_dwordx4 v[{8+4*h}:{11+4*h}], v2, s[32:35], s{60+h} offen sc1")
    A("s_mul_hi_u32 s40, s57, 214748365")
    A("s_mul_i32 s41, s40, 20")
    A("s_sub_u32 s41, s57, s41")
    A("s_and_b32 s42, s40, 1")
    A("s_lshr_b32 s43, s40, 1")
    A("s_mul_i32 s43, s43, 320")
    A("s_lshl_b32 s41, s41, 4")
    A("s_add_u32 s43, s43, s41")
    A("s_lshl_b32 s42, s42, 5")
    A(f"s_lshl_b32 s44, s{S_B}, 6")
    A("s_add_u32 s42, s42, s44")
    A("s_mul_i32 s42, s42, 1280")
    A("s_lshl_b32 s43, s43, 1")
    A("s_add_u32 s42, s42, s43")
    A("v_and_b32 v3, 31, v0")
    A("v_mul_u32_u24 v3, 1280, v3")
    A("v_lshrrev_b32 v4, 5, v0")
    A("v_lshlrev_b32 v4, 4, v4")
    A("v_add_u32 v3, v3, v4")
    A(f"s_mov_b32 s44, s{S_PTR+10}")
    A(f"s_and_b32 s45, s{S_PTR+11}, 0xffff")
    A(f"s_mov_b32 s46, {16*64*640*2}")
    A("s_mov_b32 s47, 0x20000")
    for h in range(16):
        A(f"s_waitcnt vmcnt({15-h})")
        for i in range(4):
            src = 8 + 4 * h + i
            if h == 0:
                A(f"v_lshlrev_b32 v{72+2*i}, 16, v{src}")
                A(f"v_and_b32 v{73+2*i}, 0xffff0000, v{src}")
            else:
                A(f"v_lshlrev_b32 v5, 16, v{src}")
                A(f"v_and_b32 v6, 0xffff0000, v{src}")
                A(f"v_add_f32 v{72+2*i}, v{72+2*i}, v5")
                A(f"v_add_f32 v{73+2*i}, v{73+2*i}, v6")
    for i in range(4):
        A(f"v_cvt_pk_bf16_f32 v{80+i}, v{72+2*i}, v{73+2*i}")
    A("buffer_store_dwordx4 v[80:83], v3, s[44:47], s42 offen")
    A("s_endpgm")
    return L

def generate(cfg, fn):
    S = build_schedule(cfg)
    P = prologue(cfg); A = gen_A(cfg, S); B = gen_B(cfg, S)
    assert A.nbar == B.nbar, (A.nbar, B.nbar)
    L = []
    if cfg.inred:
        L.append(f"; @launch grid=(256,1,1) block=(512,1,1) lds=163840")
    else:
        L.append(f"; @launch kernel={KN} grid=(256,1,1) block=(512,1,1) lds=163840")
        L.append(f"; @launch kernel={KN2} grid=(320,1,1) block=(256,1,1) lds=0")
    L.append('.amdgcn_target "amdgcn-amd-amdhsa--gfx950"')
    L.append(".text")
    L.append(f".globl {KN}")
    L.append(".p2align 8")
    L.append(f".type {KN},@function")
    L.append(f"{KN}:")
    L += P.lines + A.lines + B.lines
    if cfg.inred:
        L += gen_red(cfg)
    L.append("L_exit:")
    L.append("    s_endpgm")
    if not cfg.inred:
        L += gen_reduce()
    L.append('.section .rodata,"a"')
    L.append(".p2align 6")
    L += kd(KN, 256)
    if not cfg.inred:
        L.append(".p2align 6")
        L += kd(KN2, 88)
    open(fn, "w").write("\n".join(L) + "\n")
    print("ticks", S['nticks'], "A instr", A.ninstr, A.stats, "B instr", B.ninstr, B.stats, file=sys.stderr)
    return S

if __name__ == "__main__":
    cfg = Cfg()
    cfg.prof_lds = 72 * 1024 if False else 79 * 1024
    cfg.prof_from = 12
    cfg.prof_t = {0: (14, 15), 1: (28, 29)}
    cfg.final_addr = [136 * 1024, 0, 20 * 1024, 40 * 1024]
    if "--prof" in sys.argv: cfg.prof = True
    for a in sys.argv[2:]:
        if "=" in a:
            k, v = a.split("=", 1)
            setattr(cfg, k, eval(v))
    S = generate(cfg, sys.argv[1] if len(sys.argv) > 1 else "k4.s")
    if "-v" in sys.argv:
        for t in S['allt']:
            print(t.name, hex(t.addr), "issue", t.issue, "by", t.by, "consume", t.consume)
```

```python
import sys, struct
from emit import Em, vr, sr, R
import gen as G
from gen import (Tile, V, calc_dK, calc_dWQ, calc_dX, calc_dV, calc_dWO, mfma16, mfma32, dsr128, dsrtr, dsw64, cvtpk, f32, kd,
                 gen_reduce, KN, KN2, QO, stamp, lstamp, STAMPS, PROF_LDS, dma_tile,
                 S_WG, S_WAVE, S_W, S_B, S_HP, S_ROT, S_PTR, SRD_K, SRD_V, SRD_WQ, SRD_X, SRD_WO, SRD_P,
                 S_W3072, S_W1024, S_W2048, S_W5120, S_WQCOL, S_C, S_T0, S_T1, S_T2, S_T3, S_KT, S_W6144, S_DH12, S_W64)

class Cfg:
    nt_kv = True
    prof = False
    rot = True
    touch = False
    w0_slots = 6
    xbase = 80 * 1024
    x_issue = [0, 0, 0, 1, 1, 1, 1, 2, 2, 2]
    w0_issue = None
    kpre = 6
    W1 = 0
    WSZ = 81920
    OB = 80 * 1024
    Q0B = 0
    Q1B = 56 * 1024
    HB = 88 * 1024
    HSZ = 72 * 1024
    touch_wq1 = 3
    touch_wo_lead = 5
    early_lead = 1
    x_cons = [1, 2, 2, 3, 3, 3, 3, 3, 3, 3]
    x_iss = [0, 0, 0, 1, 1, 1, 1, 1, 1, 2]
    x_ord = [0, 3, 4, 2, 3, 4, 5, 6, 7, 0]
    w0_iss = [0, 0, 1, 1, 2, 2, 2, 2]
    w0_ord = [1, 2, 0, 1, 1, 2, 3, 4]
    kpre_ticks = [8, 8, 9, 9, 11, 11]
    x_all = True
    kpre_by = 'B'
    w0_first = 6
    pf_wq = True
    pf_dst1 = staticmethod(lambda SB, i: SB + 8 * i + 4)
    pf_ticks = [0] * 14
    exp_ahead = True
    skipA = ()
    skipB = ()
    skiptile = ()
    k_lead = [[9, 9], [9, 9]]
    v_lead = [9, 9]
    inred = False
    st_flags = ''
    spin_max = 200000
    b_pos = 0
    fineB = 21
    fineA = 15
    final_addr = None
    wo_rot = False
    wo_g = 'and3'
    pair_rot = False
    a_end_until = 0
    wq1_earliest = 0
    a_delay = 0
    tlb = ''
    tlb_tick = 1
    pf_wq_trim = False
    h_pol = None
    h_from = 11
    nt_pf = ''
    nt_wq = ''
    nt_x = ''
    nt_wo = ''
    wq1_lead = 99

def build_schedule(cfg):
    T0 = 1
    HB, HSZ, W1 = cfg.HB, cfg.HSZ, cfg.W1
    X = []
    for j in range(10):
        t = Tile('x', f"x_{j}", cfg.xbase + j * 8192, 8192, j=j)
        t.consume = [cfg.x_cons[j]]; t.by = 'B'; t.earliest = cfg.x_iss[j]; t.order = cfg.x_ord[j]
        X.append(t)
    W0 = []
    for i in range(20):
        t = Tile('w0', f"w0_{i}", (i % cfg.w0_slots) * 12288, 12288, hd=0, i=i)
        t.consume = [T0 + i // 2]; t.by = 'B'
        t.earliest = cfg.w0_iss[i] if i < len(cfg.w0_iss) else 1
        t.order = cfg.w0_ord[i] if i < len(cfg.w0_ord) else 50 + i
        W0.append(t)
    tQ0 = T0 + 10
    tK0 = tQ0 + 1
    H = []
    pos = 0
    tk = tK0
    info = {}
    for hd in range(2):
        info[('k', hd)] = tk
        for j in range(16):
            assert pos + 12288 <= HSZ
            t = Tile('k', f"k{hd}_{j}", HB + pos, 12288, hd=hd, j=j)
            pos = (pos + 12288) % HSZ
            t.consume = [tk + j // 2]; t.by = 'B'; t.earliest = max(0, t.consume[0] - cfg.k_lead[hd][j % 2])
            H.append(t)
        tk += 8
        info[('v', hd)] = tk
        for sl in range(3):
            for j in range(8):
                assert pos + 8192 <= HSZ
                t = Tile('v', f"v{hd}_{sl}_{j}", HB + pos, 8192, hd=hd, sl=sl, j=j)
                pos = (pos + 8192) % HSZ
                t.consume = [tk + j // 2]; t.by = 'B'; t.earliest = max(0, t.consume[0] - cfg.v_lead[j % 2])
                H.append(t)
            tk += 4
    for n, t in enumerate(H[:cfg.kpre]):
        t.by = cfg.kpre_by; t.earliest = cfg.kpre_ticks[n]
    tEnd = tk
    W1t = []
    tq1 = tK0 + cfg.a_delay
    nq1 = cfg.WSZ // 12288
    for i in range(20):
        t = Tile('wq1', f"wq1_{i}", W1 + ((i + 2) % nq1) * 12288, 12288, hd=1, i=i)
        t.consume = [tq1 + i // 2]; t.by = 'A'; t.earliest = max(cfg.wq1_earliest, t.consume[0] - cfg.wq1_lead)
        W1t.append(t)
    tQ1 = tq1 + 10
    v0 = info[('v', 0)]
    assert cfg.a_delay <= 2
    WO = []
    slot = 0
    nwo = cfg.WSZ // 20480
    for hd in range(2):
        vstart = info[('v', hd)]
        for sl in range(3):
            tO = vstart + 4 * sl + 3
            for a in range(4):
                final = (hd == 1 and sl == 2)
                t = Tile('wo', f"wo{hd}_{sl}_{a}", None, 20480, hd=hd, sl=sl, a=a)
                if final:
                    t.addr = cfg.final_addr[a]
                    t.consume = [tO + 1]
                else:
                    t.addr = W1 + (slot % nwo) * 20480
                    slot += 1
                    t.consume = [tO + 1 + a + (cfg.a_delay if hd == 0 else 0)]
                t.by = 'A'
                t.earliest = tQ0 + 1
                WO.append(t)
    nticks = tEnd + 1
    free_at = [0] * 160
    PQ = []
    q0 = Tile('q', 'Q0', cfg.Q0B, 24576); q0.fixed = tQ0; q0.consume = [tQ0 + 1]; q0.by = None; PQ.append(q0)
    q1 = Tile('q', 'Q1', cfg.Q1B, 24576); q1.fixed = tQ1; q1.consume = [tQ1 + 1]; q1.by = None; PQ.append(q1)
    ob = Tile('q', 'OB', cfg.OB, 8192); ob.fixed = v0 + 3; ob.consume = [tEnd]; ob.by = None; PQ.append(ob)
    streams = [X, W0, H, W1t, WO, PQ]
    def okey(t):
        first = t.fixed if t.kind == 'q' else t.consume[0]
        return (first, t.kind, getattr(t, 'i', 0), getattr(t, 'sl', 0), getattr(t, 'j', 0), getattr(t, 'a', 0))
    allt = sorted([t for s_ in streams for t in s_], key=okey)
    last_issue = {}
    for t in allt:
        lo = t.addr // 1024; hi = (t.addr + t.size) // 1024
        e = max(free_at[lo:hi])
        if t.kind == 'q':
            assert e <= t.fixed, (t, e, t.fixed)
            t.issue = t.fixed
        else:
            key = t.kind if t.kind in ('x', 'w0', 'wq1', 'wo') else 'h'
            e = max(e, last_issue.get(key, 0), t.earliest)
            t.issue = e
            last_issue[key] = e
            assert t.issue < t.consume[0], (t, t.issue, t.consume)
        for k in range(lo, hi):
            free_at[k] = t.consume[-1] + 1
    for a in allt:
        for b in allt:
            if a is b: continue
            if a.addr < b.addr + b.size and b.addr < a.addr + a.size:
                assert a.consume[-1] < b.issue or b.consume[-1] < a.issue, ("overlap", a, a.issue, a.consume, b, b.issue, b.consume)
    allt = [t for t in allt if t.kind != 'q']
    if cfg.h_pol is not None:
        for t in H:
            if t.issue >= cfg.h_from and cfg.h_pol(t): t.by = 'A'
    return dict(nticks=nticks, X=X, W0=W0, H=H, W1t=W1t, WO=WO, tQ0=tQ0, tQ1=tQ1, info=info, tEnd=tEnd, allt=allt)

def srd(e, d, p, offs, size):
    if offs is None:
        e.salu(f"s_mov_b32 s{d}, s{p}")
        e.salu(f"s_and_b32 s{d+1}, s{p+1}, 0xffff")
    else:
        e.salu(f"s_add_u32 s{d}, s{p}, s{offs}")
        e.salu(f"s_addc_u32 s{d+1}, s{p+1}, 0")
        e.salu(f"s_and_b32 s{d+1}, s{d+1}, 0xffff")
    e.salu(f"s_mov_b32 s{d+2}, {size}")
    e.salu(f"s_mov_b32 s{d+3}, 0x20000")

S_OKV = 56; S_OP = 57; S_OX = 58; S_OWO = 59
def build_srds(e, cfg, first):
    e.raw("    s_waitcnt lgkmcnt(0)")
    stamp(e, cfg, 0)
    lst = {
        'WQ': lambda: srd(e, SRD_WQ, S_PTR + 6, None, 640 * 12288),
        'X': lambda: srd(e, SRD_X, S_PTR + 0, S_OX, 81920),
        'K': lambda: srd(e, SRD_K, S_PTR + 2, S_OKV, 393216),
        'V': lambda: srd(e, SRD_V, S_PTR + 4, S_OKV, 393216),
        'WO': lambda: srd(e, SRD_WO, S_PTR + 8, S_OWO, 2 * 192 * 1280),
        'P': lambda: srd(e, SRD_P, S_PTR + 14, S_OP, 81920),
    }
    lst[first]()
    return [k for k in lst if k != first], lst

def prologue(cfg):
    e = Em('P')
    e.salu(f"s_cmp_ge_u32 s{S_WG}, 256")
    e.raw("    s_cbranch_scc1 L_exit")
    e.raw(f"    s_load_dwordx16 s[{S_PTR}:{S_PTR+15}], s[0:1], 0")
    if cfg.prof:
        e.raw("    s_memtime s[82:83]")
        e.raw("    s_memrealtime s[8:9]")
    e.valu("v_lshrrev_b32 v1, 6, v0", w=[1], r=[0])
    e.I(f"v_readfirstlane_b32 s{S_WAVE}, v1", 'readlane', w=[f's{S_WAVE}'], r=[1])
    e.valu("v_and_b32 v0, 63, v0", w=[0], r=[0])
    e.salu(f"s_and_b32 s{S_T0}, s{S_WG}, 7")
    e.salu(f"s_lshr_b32 s{S_T1}, s{S_WG}, 3")
    e.salu(f"s_lshr_b32 s{S_T2}, s{S_T1}, 4")
    e.salu(f"s_lshl_b32 s{S_HP}, s{S_T0}, 1")
    e.salu(f"s_add_u32 s{S_HP}, s{S_HP}, s{S_T2}")
    e.salu(f"s_and_b32 s{S_B}, s{S_T1}, 15")
    e.I(f"s_and_b32 s{S_W}, s{S_WAVE}, 3", 'salu', r=[f's{S_WAVE}'])
    e.salu(f"s_mul_i32 s{S_ROT}, s{S_B}, 5")
    e.salu(f"s_lshr_b32 s{S_ROT}, s{S_ROT}, 3")
    e.salu(f"s_lshl_b32 s{S_ROT}, s{S_ROT}, 1")
    if cfg.pair_rot:
        e.salu(f"s_mul_i32 s{S_T2}, s{S_T2}, 10")
        e.salu(f"s_add_u32 s{S_ROT}, s{S_ROT}, s{S_T2}")
        e.salu(f"s_sub_u32 s{S_T2}, s{S_ROT}, 20")
        e.salu(f"s_cmp_ge_u32 s{S_ROT}, 20")
        e.salu(f"s_cselect_b32 s{S_ROT}, s{S_T2}, s{S_ROT}")
    if cfg.wo_g == 'and3':
        e.salu(f"s_and_b32 s13, s{S_B}, 3")
    else:
        e.salu(f"s_lshr_b32 s13, s{S_B}, 2")
    e.salu(f"s_mul_i32 s{S_W3072}, s{S_W}, 3072")
    e.salu(f"s_lshl_b32 s{S_W1024}, s{S_W}, 10")
    e.salu(f"s_lshl_b32 s{S_W2048}, s{S_W}, 11")
    e.salu(f"s_mul_i32 s{S_W5120}, s{S_W}, 5120")
    e.salu(f"s_mul_i32 s{S_W6144}, s{S_W}, 6144")
    e.salu(f"s_lshl_b32 s{S_W64}, s{S_W}, 6")
    e.salu(f"s_mul_i32 s{S_WQCOL}, s{S_HP}, 768")
    e.salu(f"s_lshr_b32 s{S_DH12}, s{S_W}, 1")
    e.salu(f"s_mul_i32 s{S_DH12}, s{S_DH12}, 12")
    e.salu(f"s_mov_b32 s{S_C}, {f32((192 ** -0.5) * 1.4426950408889634):#x}")
    e.salu(f"s_lshl_b32 s{S_T0}, s{S_B}, 4")
    e.salu(f"s_add_u32 s{S_T0}, s{S_T0}, s{S_HP}")
    e.salu(f"s_mul_i32 s{S_OKV}, s{S_T0}, 393216")
    e.salu(f"s_mul_i32 s{S_OP}, s{S_T0}, 81920")
    e.salu(f"s_mul_i32 s{S_OX}, s{S_B}, 81920")
    e.salu(f"s_mul_i32 s{S_OWO}, s{S_HP}, {2*192*1280}")
    e.salu(f"s_cmp_ge_u32 s{S_WAVE}, 4")
    e.raw("    s_cbranch_scc1 L_B")
    return e

def plan(S, who):
    issue = {}; need = {}
    for t in S['allt']:
        if t.by == who:
            issue.setdefault(t.issue, []).append(t)
            need.setdefault(t.consume[0], []).append(t)
    for k in issue:
        issue[k].sort(key=lambda t: getattr(t, 'order', 100))
    return issue, need

class Fine:
    def __init__(s, e, cfg, reg, tick):
        s.e, s.cfg, s.reg, s.tick, s.n, s.cur = e, cfg, reg, tick, 0, -1
    def __call__(s, label=""):
        if s.cfg.prof and s.cur == s.tick and s.n < 12:
            s.e.raw("    s_memtime s[96:97]")
            s.e.raw("    s_waitcnt lgkmcnt(0)")
            s.e.lgkm = []
            s.e.raw(f"    v_writelane_b32 v{s.reg}, s96, {s.n}")
            print("fine", s.reg, s.n, label, file=sys.stderr)
            s.n += 1

def gen_B(cfg, S):
    e = Em('B')
    e.skip = cfg.skipB; e.skiptile = cfg.skiptile
    dreg = dict(K=[1, 2, 3], WQ=[4, 5, 6], V=[8, 9])
    kA = [10, 11]; vA = [12, 13, 14, 15]; oA = [16, 17, 18, 19]; TT = [20, 21, 22, 23]; TU = [7, 26 + 0, 30, 31]
    vm, vmc, vinvl, t0, t1, t2 = 24, 25, 26, 27, 28, 29
    ONES = 32; LACC = 36; OACC = 40; QF = 56; FR = 80; SB = 128
    qt = [27, 28]
    fine = Fine(e, cfg, 29, cfg.fineB)
    e.label("L_B")
    dreg['X'] = [20, 21]
    calc_dX(e, dreg['X'], t0, t1)
    calc_dWQ(e, dreg['WQ'], t0, t1, t2)
    rest, lst = build_srds(e, cfg, 'X')
    lst['WQ'](); rest.remove('WQ')
    issue, needB = plan(S, 'B')
    cons = {}
    for t in S['H']:
        cons.setdefault(t.consume[0], []).append(t)
    pfitems = []
    PFA = 7
    def mk_wo(hd, i, reg):
        def f():
            e.salu(f"s_mul_i32 s{S_T0}, s{S_B}, 15360")
            e.salu(f"s_add_u32 s{S_T0}, s{S_T0}, s{S_W1024}")
            e.salu(f"s_add_u32 s{S_T1}, s{S_T0}, {hd*245760 + i*4096}")
            e.I(f"buffer_load_dwordx4 {vr(reg, 4)}, v{PFA}, s[{SRD_WO}:{SRD_WO+3}], s{S_T1} offen{cfg.nt_pf}", 'vload', w=R(reg, 4), r=[PFA])
        return f
    def mk_wq(rb, p, reg):
        def f():
            e.salu(f"s_mul_i32 s{S_T0}, s{S_B}, {40*12288}")
            e.salu(f"s_add_u32 s{S_T0}, s{S_T0}, s{S_WQCOL}")
            e.salu(f"s_add_u32 s{S_T0}, s{S_T0}, {384 + rb*12288}")
            off = f" offset:{1024*p}" if p else ""
            if rb == 8 and cfg.pf_wq_trim:
                e.raw(f"    s_cmp_eq_u32 s{S_W}, 3")
                e.raw(f"    s_cbranch_scc0 L_pfskip{p}")
                e.raw(f"    buffer_load_dwordx4 {vr(reg, 4)}, v{dreg['WQ'][p]}, s[{SRD_WQ}:{SRD_WQ+3}], s{S_T0} offen{off}{cfg.nt_pf}")
                e.raw(f"L_pfskip{p}:")
                return
            e.I(f"buffer_load_dwordx4 {vr(reg, 4)}, v{dreg['WQ'][p]}, s[{SRD_WQ}:{SRD_WQ+3}], s{S_T0} offen{off}{cfg.nt_pf}", 'vload', w=R(reg, 4), r=[dreg['WQ'][p]])
        return f
    wq_items = [mk_wq(rb, p, SB + 12 * (rb // 8) + 4 * p) for rb in (0, 8) for p in range(3)]
    wo_items = [mk_wo(hd, i, (OACC + 4 * i) if hd == 0 else cfg.pf_dst1(SB, i)) for hd in range(2) for i in range(4)]
    allitems = (wq_items if cfg.pf_wq else []) + wo_items
    pfplan = {}
    for n, it in enumerate(allitems):
        pfplan.setdefault(cfg.pf_ticks[min(n, len(cfg.pf_ticks) - 1)], []).append(it)
    def tlb_touch():
        tg = {'K': (SRD_K, 16, ' nt'), 'V': (SRD_V, 16, ' nt'), 'P': (SRD_P, 12, ' nt')}
        for n, k in enumerate(cfg.tlb):
            srd_, sh, fl = tg[k]
            e.raw(f"    s_cmp_eq_u32 s{S_W}, {n}")
            e.raw(f"    s_cbranch_scc0 L_tlb{n}")
            e.raw(f"    v_lshlrev_b32 v{SB+100}, {sh}, v0")
            e.raw(f"    buffer_load_dword v{SB+101}, v{SB+100}, s[{srd_}:{srd_+3}], 0 offen{fl}")
            e.raw(f"L_tlb{n}:")
    def do_issue(tk):
        for t in issue.get(tk, []):
            dma_tile(e, t, cfg, dreg)
        if tk > 0:
            for it in pfplan.get(tk, []): it()
        if cfg.tlb and tk == cfg.tlb_tick and tk > 0: tlb_touch()
    stamp(e, cfg, 1)
    do_issue(0)
    stamp(e, cfg, 2)
    for k in rest: lst[k]()
    V(e, f"v_lshlrev_b32 v{PFA}, 4, v0", [PFA], [0])
    for it in pfplan.get(0, []): it()
    if cfg.tlb and cfg.tlb_tick == 0: tlb_touch()
    calc_dK(e, dreg['K'], t0, t1)
    calc_dV(e, dreg['V'], t0, t1)
    V(e, f"v_and_b32 v{t0}, 15, v0", [t0], [0])
    V(e, f"v_lshrrev_b32 v{t1}, 1, v{t0}", [t1], [t0])
    V(e, f"v_lshrrev_b32 v{t2}, 4, v0", [t2], [0])
    V(e, f"v_xor_b32 v{t2}, v{t2}, v{t1}", [t2], [t1, t2])
    V(e, f"v_lshlrev_b32 v{t2}, 4, v{t2}", [t2], [t2])
    V(e, f"v_mul_u32_u24 v{kA[0]}, 384, v{t0}", [kA[0]], [t0])
    V(e, f"v_add_u32 v{kA[0]}, v{kA[0]}, v{t2}", [kA[0]], [kA[0], t2])
    V(e, f"v_xor_b32 v{t2}, 64, v{t2}", [t2], [t2])
    V(e, f"v_mul_u32_u24 v{kA[1]}, 384, v{t0}", [kA[1]], [t0])
    V(e, f"v_add_u32 v{kA[1]}, v{kA[1]}, v{t2}", [kA[1]], [kA[1], t2])
    V(e, f"v_lshlrev_b32 v{t2}, 7, v{t0}", [t2], [t0])
    V(e, f"v_add_u32 v{t2}, s{S_W2048}, v{t2}", [t2], [t2])
    V(e, f"v_add_u32 v{t2}, {cfg.OB}, v{t2}", [t2], [t2])
    V(e, f"v_lshrrev_b32 v{vm}, 4, v0", [vm], [0])
    V(e, f"v_and_b32 v{vmc}, 1, v{vm}", [vmc], [vm])
    V(e, f"v_lshlrev_b32 v{vmc}, 3, v{vmc}", [vmc], [vmc])
    V(e, f"v_add_u32 v{t2}, v{t2}, v{vmc}", [t2], [t2, vmc])
    V(e, f"v_lshrrev_b32 v{vm}, 1, v{vm}", [vm], [vm])
    for dt in range(4):
        V(e, f"v_add_u32 v{vmc}, {2*dt}, v{vm}", [vmc], [vm])
        V(e, f"v_xor_b32 v{vmc}, v{vmc}, v{t1}", [vmc], [vmc, t1])
        V(e, f"v_lshlrev_b32 v{vmc}, 4, v{vmc}", [vmc], [vmc])
        V(e, f"v_add_u32 v{oA[dt]}, v{t2}, v{vmc}", [oA[dt]], [t2, vmc])
    V(e, f"v_lshrrev_b32 v{t0}, 2, v0", [t0], [0])
    V(e, f"v_and_b32 v{t1}, 6, v{t0}", [t1], [t0])
    V(e, f"v_lshlrev_b32 v{t0}, 7, v{t0}", [t0], [t0])
    V(e, f"v_and_b32 v{t2}, 3, v0", [t2], [0])
    V(e, f"v_lshlrev_b32 v{t2}, 3, v{t2}", [t2], [t2])
    V(e, f"v_add_u32 v{t0}, v{t0}, v{t2}", [t0], [t0, t2])
    for dt in range(4):
        V(e, f"v_xor_b32 v{t2}, {2*dt}, v{t1}", [t2], [t1])
        V(e, f"v_lshlrev_b32 v{t2}, 4, v{t2}", [t2], [t2])
        V(e, f"v_add_u32 v{vA[dt]}, v{t0}, v{t2}", [vA[dt]], [t0, t2])
    for i in range(4):
        V(e, f"v_mov_b32 v{ONES+i}, 0x3f803f80", [ONES + i])

    def load_qfrags(qb):
        V(e, f"v_add_u32 v{qt[0]}, s{S_W6144}, v{kA[0]}", [qt[0]], [kA[0]])
        V(e, f"v_add_u32 v{qt[1]}, s{S_W6144}, v{kA[1]}", [qt[1]], [kA[1]])
        if qb:
            V(e, f"v_add_u32 v{qt[0]}, {qb}, v{qt[0]}", [qt[0]], [qt[0]])
            V(e, f"v_add_u32 v{qt[1]}, {qb}, v{qt[1]}", [qt[1]], [qt[1]])
        for s in range(6):
            dsr128(e, QF + 4 * s, qt[s % 2], (s // 2) * 128)

    def maxtile(jt):
        b = SB + 8 * jt
        if jt == 0:
            e.valu(f"v_max3_f32 v{vm}, v{b}, v{b+1}, v{b+2}", w=[vm], r=[b, b + 1, b + 2])
            e.valu(f"v_max3_f32 v{vm}, v{vm}, v{b+3}, v{b+4}", w=[vm], r=[vm, b + 3, b + 4])
            e.valu(f"v_max3_f32 v{vm}, v{vm}, v{b+5}, v{b+6}", w=[vm], r=[vm, b + 5, b + 6])
            e.valu(f"v_max_f32 v{vm}, v{vm}, v{b+7}", w=[vm], r=[vm, b + 7])
        else:
            for i in range(4):
                e.valu(f"v_max3_f32 v{vm}, v{vm}, v{b+2*i}, v{b+2*i+1}", w=[vm], r=[vm, b + 2 * i, b + 2 * i + 1])

    def maxlist(jt):
        b = SB + 8 * jt
        out = []
        if jt == 0:
            out.append(lambda: e.valu(f"v_max3_f32 v{vm}, v{b}, v{b+1}, v{b+2}", w=[vm], r=[b, b + 1, b + 2]))
            out.append(lambda: e.valu(f"v_max3_f32 v{vm}, v{vm}, v{b+3}, v{b+4}", w=[vm], r=[vm, b + 3, b + 4]))
            out.append(lambda: e.valu(f"v_max3_f32 v{vm}, v{vm}, v{b+5}, v{b+6}", w=[vm], r=[vm, b + 5, b + 6]))
            out.append(lambda: e.valu(f"v_max_f32 v{vm}, v{vm}, v{b+7}", w=[vm], r=[vm, b + 7]))
        else:
            for i in range(4):
                out.append(lambda i=i: e.valu(f"v_max3_f32 v{vm}, v{vm}, v{b+2*i}, v{b+2*i+1}", w=[vm], r=[vm, b + 2 * i, b + 2 * i + 1]))
        return out

    def qk2(ta, tb, tk):
        if ta.j == 0 and ta.hd == 0:
            load_qfrags(cfg.Q0B)
        for n, t in enumerate((ta, tb)):
            V(e, f"v_add_u32 v{TT[2*n]}, {t.addr}, v{kA[0]}", [TT[2*n]], [kA[0]])
            V(e, f"v_add_u32 v{TT[2*n+1]}, {t.addr}, v{kA[1]}", [TT[2*n+1]], [kA[1]])
        pairs = [(n, tp, s_) for n in range(2) for s_ in range(6) for tp in range(2)]
        def rd(i):
            n, tp, s_ = pairs[i]
            dsr128(e, FR + 4 * (i % 12), TT[2 * n + s_ % 2], tp * 6144 + (s_ // 2) * 128)
        def mm(i):
            n, tp, s_ = pairs[i]
            t = (ta, tb)[n]
            d = SB + 4 * (2 * t.j + tp)
            mfma16(e, d, FR + 4 * (i % 12), QF + 4 * s_, None if s_ == 0 else d)
        for i in range(12): rd(i)
        if cfg.b_pos == 0: do_issue(tk)
        mx = []
        if ta.j > 0:
            mx = maxlist(ta.j - 2) + maxlist(ta.j - 1)
        for i in range(24):
            mm(i)
            if i + 12 < 24: rd(i + 12)
            if i < len(mx): mx[i]()
            if cfg.b_pos == 1 and i == 5: do_issue(tk)
            if cfg.b_pos == 2 and i == 11: do_issue(tk)
        if cfg.b_pos == 3: do_issue(tk)

    def softmax_fin():
        maxtile(14); maxtile(15)
        V(e, f"v_mov_b32 v{t0}, v{vm}", [t0], [vm])
        e.I(f"v_permlane32_swap_b32 v{t0}, v{vm}", 'permlane', w=[t0, vm], r=[t0, vm])
        V(e, f"v_max_f32 v{vm}, v{vm}, v{t0}", [vm], [vm, t0])
        V(e, f"v_mov_b32 v{t0}, v{vm}", [t0], [vm])
        e.I(f"v_permlane16_swap_b32 v{t0}, v{vm}", 'permlane', w=[t0, vm], r=[t0, vm])
        V(e, f"v_max_f32 v{vm}, v{vm}, v{t0}", [vm], [vm, t0])
        V(e, f"v_mul_f32 v{vmc}, s{S_C}, v{vm}", [vmc], [vm])

    def expstep(sp):
        b = SB + 8 * sp
        for i in range(8):
            e.valu(f"v_fma_f32 v{b+i}, v{b+i}, s{S_C}, -v{vmc}", w=[b + i], r=[b + i, vmc])
        for i in range(8):
            e.I(f"v_exp_f32 v{b+i}, v{b+i}", 'trans', w=[b + i], r=[b + i])
        for i in range(4):
            cvtpk(e, b + i, b + 2 * i, b + 2 * i + 1)

    def explist(sp):
        b = SB + 8 * sp
        out = []
        for i in range(8):
            out.append(lambda i=i: e.valu(f"v_fma_f32 v{b+i}, v{b+i}, s{S_C}, -v{vmc}", w=[b + i], r=[b + i, vmc]))
        for i in range(8):
            out.append(lambda i=i: e.I(f"v_exp_f32 v{b+i}, v{b+i}", 'trans', w=[b + i], r=[b + i]))
        for i in range(4):
            out.append(lambda i=i: cvtpk(e, b + i, b + 2 * i, b + 2 * i + 1))
        return out

    def pv2(ta, tb, tk):
        sl = ta.sl
        last = (tb.j == 7)
        if tk == S['tQ1'] + 1:
            load_qfrags(cfg.Q1B)
        AR = [TT, [4, 5, 6, 7]]
        for n, t in enumerate((ta, tb)):
            for dt in range(4):
                V(e, f"v_add_u32 v{AR[n][dt]}, {t.addr}, v{vA[dt]}", [AR[n][dt]], [vA[dt]])
        pairs = [(q, dt) for q in range(4) for dt in range(4)]
        def rd(i):
            q, dt = pairs[i]
            n, ks = q // 2, q % 2
            for h in range(2):
                dsrtr(e, FR + 4 * (i % 12) + 2 * h, AR[n][dt], ks * 4096 + h * 2048)
        def mm(i):
            q, dt = pairs[i]
            P = SB + 8 * (2 * ta.j + q)
            first = (ta.j == 0 and q == 0)
            mfma16(e, OACC + 4 * dt, FR + 4 * (i % 12), P, None if first else OACC + 4 * dt)
            if sl == 0 and dt == 3:
                mfma16(e, LACC, ONES, P, None if first else LACC)
        for i in range(12): rd(i)
        if cfg.b_pos == 0: do_issue(tk)
        if sl == 0:
            if ta.j == 0:
                softmax_fin_deferred()
                for f in explist(0): f()
            elif not cfg.exp_ahead:
                for f in explist(2 * ta.j): f()
        for q in range(4):
            nxt = []
            if sl == 0:
                sp_next = 2 * ta.j + q + 1
                if q < 3 or (cfg.exp_ahead and sp_next < 16):
                    nxt = explist(sp_next)
            for dt in range(4):
                i = 4 * q + dt
                mm(i)
                if i + 12 < 16: rd(i + 12)
                for f in nxt[5 * dt:5 * dt + 5]: f()
            if cfg.b_pos == q + 1: do_issue(tk)
        if last:
            if sl == 0:
                e.I(f"v_rcp_f32 v{vinvl}, v{LACC}", 'trans', w=[vinvl], r=[LACC])
            for dt in range(4):
                o = OACC + 4 * dt
                for i in range(4):
                    V(e, f"v_mul_f32 v{o+i}, v{o+i}, v{vinvl}", [o + i], [o + i, vinvl])
                cvtpk(e, o, o, o + 1)
                cvtpk(e, o + 1, o + 2, o + 3)
                dsw64(e, oA[dt], o, 0)

    def softmax_fin_deferred():
        maxtile(14); maxtile(15)
        u = 27
        V(e, f"v_mov_b32 v{u}, v{vm}", [u], [vm])
        e.I(f"v_permlane32_swap_b32 v{u}, v{vm}", 'permlane', w=[u, vm], r=[u, vm])
        V(e, f"v_max_f32 v{vm}, v{vm}, v{u}", [vm], [vm, u])
        V(e, f"v_mov_b32 v{u}, v{vm}", [u], [vm])
        e.I(f"v_permlane16_swap_b32 v{u}, v{vm}", 'permlane', w=[u, vm], r=[u, vm])
        V(e, f"v_max_f32 v{vm}, v{vm}, v{u}", [vm], [vm, u])
        V(e, f"v_mul_f32 v{vmc}, s{S_C}, v{vm}", [vmc], [vm])

    for tk in range(0, S['nticks']):
        if tk > 0:
            e.comment(f"---- B tick {tk}")
            if cfg.prof:
                e.raw("    s_memtime s[80:81]")
                e.raw("    s_waitcnt lgkmcnt(0)")
                e.lgkm = []
            e.barrier()
            if cfg.prof:
                e.raw(f"    v_writelane_b32 v31, s80, {tk}")
            ts = cons.get(tk)
            fine.cur = tk
            if ts is None:
                do_issue(tk)
            elif ts[0].kind == 'k':
                qk2(ts[0], ts[1], tk)
            else:
                pv2(ts[0], ts[1], tk)
        if tk == 0: stamp(e, cfg, 3)
        lstamp2(e, cfg, 1, 0, tk, S)
        for t in needB.get(tk + 1, []):
            e.wait_tile(t)
        lstamp2(e, cfg, 1, 1, tk, S)
        if tk == 0: stamp(e, cfg, 4)
    if cfg.prof:
        e.raw("    s_memtime s[80:81]")
        e.raw("    s_waitcnt lgkmcnt(0)")
        e.raw(f"    v_writelane_b32 v31, s80, 63")
        e.raw(f"    v_writelane_b32 v31, s82, 0")
        for n in range(5):
            e.raw(f"    v_writelane_b32 v31, s{STAMPS[n]}, {56+n}")
        e.raw(f"    s_lshl_b32 s84, s{S_WG}, 3")
        e.raw(f"    s_add_u32 s84, s84, s{S_WAVE}")
        e.raw(f"    s_lshl_b32 s84, s84, 10")
        e.raw(f"    s_add_u32 s84, s84, {64<<20}")
        e.raw(f"    s_add_u32 s88, s{S_PTR+14}, s84")
        e.raw(f"    s_addc_u32 s89, s{S_PTR+15}, 0")
        e.raw(f"    s_and_b32 s89, s89, 0xffff")
        e.raw(f"    s_mov_b32 s90, 1024")
        e.raw(f"    s_mov_b32 s91, 0x20000")
        e.raw(f"    v_lshlrev_b32 v28, 2, v0")
        e.raw(f"    buffer_store_dword v31, v28, s[88:91], 0 offen")
        e.raw(f"    buffer_store_dword v29, v28, s[88:91], 0 offen offset:256")
        e.raw(f"    buffer_store_dword v30, v28, s[88:91], 0 offen offset:512")
    if cfg.inred:
        e.raw("    s_barrier")
        e.raw(f"    s_cmp_eq_u32 s{S_W}, 0")
        e.raw("    s_cbranch_scc0 L_Bwait")
        e.raw(f"    s_lshl_b32 s56, s{S_B}, 4")
        e.raw(f"    s_add_u32 s58, s{S_PTR+12}, s56")
        e.raw(f"    s_addc_u32 s59, s{S_PTR+13}, 0")
        e.raw("    v_mov_b32 v2, 0")
        e.raw("    v_mov_b32 v3, 1")
        e.raw("    s_mov_b64 s[60:61], exec")
        e.raw("    s_mov_b64 exec, 1")
        e.raw("    global_atomic_add v2, v3, s[58:59]")
        e.raw("    s_mov_b32 s62, 0")
        e.raw("L_poll:")
        e.raw("    global_load_dword v4, v2, s[58:59] sc1")
        e.raw("    s_waitcnt vmcnt(0)")
        e.raw("    v_readfirstlane_b32 s63, v4")
        e.raw("    s_add_u32 s62, s62, 1")
        e.raw("    s_nop 2")
        e.raw("    s_cmp_ge_u32 s63, 16")
        e.raw("    s_cbranch_scc1 L_polldone")
        e.raw(f"    s_cmp_ge_u32 s62, {cfg.spin_max}")
        e.raw("    s_cbranch_scc1 L_polldone")
        e.raw("    s_sleep 1")
        e.raw("    s_branch L_poll")
        e.raw("L_polldone:")
        e.raw("    s_mov_b64 exec, s[60:61]")
        e.raw("L_Bwait:")
        e.raw("    s_barrier")
        e.raw(f"    s_mov_b32 s56, s{S_W}")
        e.raw("    s_branch L_RED")
        e.nbar += 2
    else:
        e.raw("    s_endpgm")
    return e

def lstamp2(e, cfg, grp, kind, tk, S):
    if not cfg.prof or tk > 62 or tk < cfg.prof_from: return
    if cfg.h_pol is not None and grp == 0 and kind == 0: return
    e.raw("    s_memtime s[96:97]")
    e.raw("    s_waitcnt lgkmcnt(0)")
    e.lgkm = []
    reg = {(0, 0): 91, (0, 1): 92, (1, 0): 29, (1, 1): 30}[(grp, kind)]
    if cfg.h_pol is not None and grp == 0:
        reg = 95
    e.raw(f"    v_writelane_b32 v{reg}, s96, {tk}")

def gen_A(cfg, S):
    e = Em('A')
    e.skip = cfg.skipA; e.skiptile = cfg.skiptile
    e.label("L_A")
    dreg = dict(K=[90, 91, 92], V=[93, 94], WQ=[4, 5, 6], X=[88, 89])
    wA = [7, 8, 9]; xA = [10, 11, 90, 91]; t0, t1, t2, t3 = 12, 13, 14, 15
    QACC = 32; XR = 96
    FS = [16, 20, 24, 28, 80, 84]
    rest, lst = build_srds(e, cfg, 'WQ')
    issue, needA = plan(S, 'A')
    touches = {}
    if cfg.touch:
        touches.setdefault(cfg.touch_wq1, []).append(('wq1',))
        for t in S['WO']:
            if t.a == 0:
                touches.setdefault(max(cfg.touch_wq1 + 1, t.issue - cfg.touch_wo_lead), []).append(('wo', t.hd, t.sl))
    def do_issue(tk, part='all'):
        for t in issue.get(tk, []):
            early = (t.consume[0] - t.issue) <= cfg.early_lead and tk > cfg.a_end_until
            if part == 'all' or (part == 'start') == early:
                dma_tile(e, t, cfg, dreg)
        if part == 'start': return
        for tc in touches.get(tk, []):
            if tc[0] == 'wq1':
                e.salu(f"s_mul_i32 s{S_T0}, s{S_B}, {40*12288}")
                e.salu(f"s_add_u32 s{S_T0}, s{S_T0}, s{S_WQCOL}")
                e.salu(f"s_add_u32 s{S_T0}, s{S_T0}, 384")
                e.I(f"buffer_load_dword v93, v94, s[{SRD_WQ}:{SRD_WQ+3}], s{S_T0} offen", 'vload', w=[93], r=[94])
            else:
                e.salu(f"s_mul_i32 s{S_T0}, s{S_B}, {40*128}")
                e.salu(f"s_add_u32 s{S_T0}, s{S_T0}, {(tc[1]*192 + 64*tc[2])*1280}")
                e.I(f"buffer_load_dword v93, v95, s[{SRD_WO}:{SRD_WO+3}], s{S_T0} offen", 'vload', w=[93], r=[95])
    stamp(e, cfg, 1)
    do_issue(0)
    stamp(e, cfg, 2)
    for k in rest: lst[k]()
    if cfg.touch:
        V(e, f"v_add_u32 v{t0}, s{S_W64}, v0", [t0], [0])
        V(e, f"v_mul_u32_u24 v{t1}, 171, v{t0}", [t1], [t0])
        V(e, f"v_lshrrev_b32 v{t1}, 9, v{t1}", [t1], [t1])
        V(e, f"v_mul_u32_u24 v{t2}, 3, v{t1}", [t2], [t1])
        V(e, f"v_sub_u32 v{t2}, v{t0}, v{t2}", [t2], [t0, t2])
        V(e, f"v_lshlrev_b32 v{t2}, 7, v{t2}", [t2], [t2])
        e.salu(f"s_mov_b32 s{S_T1}, 12288")
        V(e, f"v_mul_lo_u32 v{t1}, v{t1}, s{S_T1}", [t1], [t1])
        V(e, f"v_add_u32 v{t1}, v{t1}, v{t2}", [t1], [t1, t2])
        V(e, f"v_cmp_gt_u32 vcc, 120, v{t0}", ['vcc'], [t0])
        V(e, f"v_mov_b32 v{t2}, 0x7fffffff", [t2])
        e.valu(f"v_cndmask_b32 v94, v{t2}, v{t1}, vcc", w=[94], r=[t1, t2, 'vcc'])
        V(e, f"v_lshlrev_b32 v{t1}, 7, v{t0}", [t1], [t0])
        V(e, f"v_cmp_gt_u32 vcc, 40, v{t0}", ['vcc'], [t0])
        e.valu(f"v_cndmask_b32 v95, v{t2}, v{t1}, vcc", w=[95], r=[t1, t2, 'vcc'])
    calc_dWQ(e, dreg['WQ'], t0, t1, t2)
    V(e, f"v_lshrrev_b32 v{t0}, 5, v0", [t0], [0])
    V(e, f"v_lshlrev_b32 v{t0}, 3, v{t0}", [t0], [t0])
    V(e, f"v_bfe_u32 v{t1}, v0, 2, 2", [t1], [0])
    V(e, f"v_add_u32 v{t0}, v{t0}, v{t1}", [t0], [t0, t1])
    V(e, f"v_mul_u32_u24 v{t0}, 384, v{t0}", [t0], [t0])
    V(e, f"v_and_b32 v{t2}, 1, v0", [t2], [0])
    V(e, f"v_lshlrev_b32 v{t2}, 3, v{t2}", [t2], [t2])
    V(e, f"v_add_u32 v{t0}, v{t0}, v{t2}", [t0], [t0, t2])
    V(e, f"v_and_b32 v{t1}, 2, v{t1}", [t1], [t1])
    V(e, f"v_lshlrev_b32 v{t1}, 1, v{t1}", [t1], [t1])
    V(e, f"v_bfe_u32 v{t2}, v0, 4, 1", [t2], [0])
    V(e, f"v_lshlrev_b32 v{t2}, 1, v{t2}", [t2], [t2])
    V(e, f"v_bfe_u32 v{t3}, v0, 1, 1", [t3], [0])
    V(e, f"v_add_u32 v{t2}, v{t2}, v{t3}", [t2], [t2, t3])
    V(e, f"v_add_u32 v{t2}, s{S_DH12}, v{t2}", [t2], [t2])
    for j in range(3):
        V(e, f"v_add_u32 v{t3}, {4*j}, v{t2}", [t3], [t2])
        V(e, f"v_xor_b32 v{t3}, v{t3}, v{t1}", [t3], [t3, t1])
        V(e, f"v_lshlrev_b32 v{t3}, 4, v{t3}", [t3], [t3])
        V(e, f"v_add_u32 v{wA[j]}, v{t0}, v{t3}", [wA[j]], [t0, t3])
    e.salu(f"s_and_b32 s{S_T0}, s{S_W}, 1")
    e.salu(f"s_lshl_b32 s{S_T1}, s{S_T0}, 5")
    V(e, f"v_and_b32 v{t0}, 31, v0", [t0], [0])
    V(e, f"v_add_u32 v{t0}, s{S_T1}, v{t0}", [t0], [t0])
    V(e, f"v_bfe_u32 v{t1}, v{t0}, 1, 3", [t1], [t0])
    V(e, f"v_lshrrev_b32 v{t2}, 5, v0", [t2], [0])
    V(e, f"v_lshlrev_b32 v{t0}, 7, v{t0}", [t0], [t0])
    V(e, f"v_add_u32 v{t0}, {cfg.xbase}, v{t0}", [t0], [t0])
    for m in range(4):
        V(e, f"v_add_u32 v{t3}, {2*m}, v{t2}", [t3], [t2])
        V(e, f"v_xor_b32 v{t3}, v{t3}, v{t1}", [t3], [t3, t1])
        V(e, f"v_lshlrev_b32 v{t3}, 4, v{t3}", [t3], [t3])
        V(e, f"v_add_u32 v{xA[m]}, v{t0}, v{t3}", [xA[m]], [t0, t3])

    consA = {}
    for t in S['W0'] + S['W1t']:
        consA.setdefault(t.consume[0], []).append(t)
    woc = {}
    for t in S['WO']:
        woc.setdefault(t.consume[0], []).append(t)

    st = {'wB': False}
    wBr = [t0, t1, t2]
    def qproj2(ts, tk):
        regs = []
        for n, t in enumerate(ts):
            if t.addr + 12288 > 65536:
                if not st['wB']:
                    for j in range(3):
                        V(e, f"v_add_u32 v{wBr[j]}, 32768, v{wA[j]}", [wBr[j]], [wA[j]])
                    st['wB'] = True
                regs.append((wBr, t.addr - 32768))
            else:
                regs.append((wA, t.addr))
        def reads(q):
            n, s = q // 2, q % 2
            t = ts[n]
            if t.hd == 0:
                m = q
                xo = (t.i // 2) * 8192
                if xo >= 65536:
                    V(e, f"v_add_u32 v{t3}, 65536, v{xA[m]}", [t3], [xA[m]])
                    dsr128(e, XR + 4 * (2 * t.i + s), t3, xo - 65536)
                else:
                    dsr128(e, XR + 4 * (2 * t.i + s), xA[m], xo)
            wr, wb = regs[n]
            for j in range(3):
                for h in range(2):
                    dsrtr(e, FS[3 * (q % 2) + j] + 2 * h, wr[j], wb + s * 16 * 384 + h * 4 * 384)
        def mm(q):
            n, s = q // 2, q % 2
            t = ts[n]
            for j in range(3):
                d = QACC + 16 * j
                mfma32(e, d, FS[3 * (q % 2) + j], XR + 4 * (2 * t.i + s), None if (t.i == 0 and s == 0) else d)
        def rdx_abs(blk, m):
            xo = blk * 8192
            dst = XR + 4 * (4 * blk + m)
            if xo >= 65536:
                V(e, f"v_add_u32 v{t3}, 65536, v{xA[m]}", [t3], [xA[m]])
                dsr128(e, dst, t3, xo - 65536)
            else:
                dsr128(e, dst, xA[m], xo)
        def rdx(q):
            pass
        def rdw(q, j):
            n, s_ = q // 2, q % 2
            wr, wb = regs[n]
            for h in range(2):
                dsrtr(e, FS[3 * (q % 2) + j] + 2 * h, wr[j], wb + s_ * 16 * 384 + h * 4 * 384)
        def mm1(q, j):
            n, s_ = q // 2, q % 2
            t = ts[n]
            d = QACC + 16 * j
            mfma32(e, d, FS[3 * (q % 2) + j], XR + 4 * (2 * t.i + s_), None if (t.i == 0 and s_ == 0) else d)
        extra = []
        if ts[0].hd == 0:
            blks = [t.j for t in S['X'] if t.consume[0] == tk]
            cur = ts[0].i // 2
            if cur in blks:
                for m in range(4): rdx_abs(cur, m)
            extra = [(blk, m) for blk in blks if blk != cur for m in range(4)]
        for j in range(3): rdw(0, j)
        for j in range(3): rdw(1, j)
        do_issue(tk, 'start')
        for q in range(4):
            for j in range(3):
                mm1(q, j)
                if q + 2 < 4: rdw(q + 2, j)
                for _ in range(3):
                    if extra: rdx_abs(*extra.pop(0))
        do_issue(tk, 'end')

    def qfin(qb):
        st['wB'] = False
        e.salu(f"s_and_b32 s{S_T0}, s{S_W}, 1")
        e.salu(f"s_lshl_b32 s{S_T1}, s{S_T0}, 5")
        V(e, f"v_and_b32 v{t0}, 31, v0", [t0], [0])
        V(e, f"v_add_u32 v{t0}, s{S_T1}, v{t0}", [t0], [t0])
        V(e, f"v_bfe_u32 v{t1}, v{t0}, 1, 3", [t1], [t0])
        V(e, f"v_mul_u32_u24 v{t0}, 384, v{t0}", [t0], [t0])
        V(e, f"v_lshrrev_b32 v{t2}, 5, v0", [t2], [0])
        V(e, f"v_lshlrev_b32 v{t2}, 3, v{t2}", [t2], [t2])
        V(e, f"v_add_u32 v{t0}, v{t0}, v{t2}", [t0], [t0, t2])
        if qb:
            V(e, f"v_add_u32 v{t0}, {qb}, v{t0}", [t0], [t0])
        for j in range(3):
            for g in range(4):
                a = QACC + 16 * j + 4 * g
                cvtpk(e, a, a, a + 1)
                cvtpk(e, a + 1, a + 2, a + 3)
                e.salu(f"s_add_u32 s{S_T0}, s{S_DH12}, {4*j+g}")
                tt = t2 if g % 2 == 0 else t3
                V(e, f"v_xor_b32 v{tt}, s{S_T0}, v{t1}", [tt], [t1])
                V(e, f"v_lshl_add_u32 v{tt}, v{tt}, 4, v{t0}", [tt], [tt, t0])
                dsw64(e, tt, a, 0)

    dWO = [1, 2, 3, 88, 89]; woA = [6, 7, 8, 9]; ofA = [10, 11, 12, 13]
    OF = 32
    AS = [48, 52, 56, 60, 64, 68, 72, 76, 80, 84, 88, 92]
    OUT = XR
    def setup_out1():
        calc_dWO(e, dWO, 15, 90)
        dreg['WO'] = dWO
    def setup_out2():
        a0, a1, a2, a3 = 20, 21, 22, 23
        V(e, f"v_lshrrev_b32 v{a0}, 5, v0", [a0], [0])
        V(e, f"v_lshlrev_b32 v{a0}, 3, v{a0}", [a0], [a0])
        V(e, f"v_bfe_u32 v{a1}, v0, 2, 2", [a1], [0])
        V(e, f"v_add_u32 v{a0}, v{a0}, v{a1}", [a0], [a0, a1])
        V(e, f"v_mul_u32_u24 v{a0}, 1280, v{a0}", [a0], [a0])
        V(e, f"v_bfe_u32 v{a2}, v0, 1, 1", [a2], [0])
        V(e, f"v_lshlrev_b32 v{a2}, 3, v{a2}", [a2], [a2])
        V(e, f"v_add_u32 v{a0}, v{a0}, v{a2}", [a0], [a0, a2])
        V(e, f"v_bfe_u32 v{a2}, v0, 4, 1", [a2], [0])
        V(e, f"v_lshlrev_b32 v{a2}, 1, v{a2}", [a2], [a2])
        V(e, f"v_and_b32 v{a3}, 1, v0", [a3], [0])
        V(e, f"v_add_u32 v{a2}, v{a2}, v{a3}", [a2], [a2, a3])
        V(e, f"v_lshl_add_u32 v{a0}, v{a2}, 4, v{a0}", [a0], [a2, a0])
        e.salu(f"s_lshr_b32 s{S_T0}, s{S_W}, 1")
        e.salu(f"s_mul_i32 s{S_T0}, s{S_T0}, 10")
        for j in range(4):
            e.salu(f"s_add_u32 s{S_T1}, s{S_T0}, {j}")
            V(e, f"v_xor_b32 v{a2}, s{S_T1}, v{a1}", [a2], [a1])
            V(e, f"v_lshl_add_u32 v{woA[j]}, v{a2}, 6, v{a0}", [woA[j]], [a2, a0])
        e.salu(f"s_and_b32 s{S_T0}, s{S_W}, 1")
        e.salu(f"s_lshl_b32 s{S_T1}, s{S_T0}, 5")
        V(e, f"v_and_b32 v{a0}, 31, v0", [a0], [0])
        V(e, f"v_add_u32 v{a0}, s{S_T1}, v{a0}", [a0], [a0])
        V(e, f"v_bfe_u32 v{a1}, v{a0}, 1, 3", [a1], [a0])
        V(e, f"v_lshlrev_b32 v{a0}, 7, v{a0}", [a0], [a0])
        V(e, f"v_add_u32 v{a0}, {cfg.OB}, v{a0}", [a0], [a0])
        V(e, f"v_lshrrev_b32 v{a2}, 5, v0", [a2], [0])
        for ss in range(4):
            if cfg.wo_rot:
                e.salu(f"s_add_u32 s{S_T0}, s13, {ss}")
                e.salu(f"s_and_b32 s{S_T0}, s{S_T0}, 3")
                e.salu(f"s_lshl_b32 s{S_T0}, s{S_T0}, 1")
                V(e, f"v_add_u32 v{a3}, s{S_T0}, v{a2}", [a3], [a2])
            else:
                V(e, f"v_add_u32 v{a3}, {2*ss}, v{a2}", [a3], [a2])
            V(e, f"v_xor_b32 v{a3}, v{a3}, v{a1}", [a3], [a3, a1])
            V(e, f"v_lshl_add_u32 v{ofA[ss]}, v{a3}, 4, v{a0}", [ofA[ss]], [a3, a0])

    wost = {}
    def wo_reads(t, js, slots):
        if t.addr + 20480 <= 65536:
            regs, base = woA, t.addr
        else:
            key = t.addr
            if key not in wost:
                sets_ = [[16, 17, 18, 19], [20, 21, 22, 23], [24, 25, 26, 27], [28, 29, 30, 31]]
                idx = wost.get('n', 0)
                regs = sets_[idx % 4]
                for k2 in [k for k, v in wost.items() if k != 'n' and v is regs]:
                    del wost[k2]
                wost['n'] = idx + 1
                for j in range(4):
                    V(e, f"v_add_u32 v{regs[j]}, {t.addr}, v{woA[j]}", [regs[j]], [woA[j]])
                wost[key] = regs
            regs, base = wost[key], 0
        for j, sl in zip(js, slots):
            areg = regs[j % 4]
            for h in range(2):
                dsrtr(e, sl + 2 * h, areg, base + h * 4 * 1280 + (j // 4) * 256)

    def outproj(t, tk):
        first_ever = (t.hd == 0 and t.sl == 0 and t.a == 0)
        if t.a == 0:
            for ss in range(4):
                dsr128(e, OF + 4 * ss, ofA[ss], 0)
        wo_reads(t, list(range(10)), AS[:10])
        do_issue(tk, 'start')
        for j in range(10):
            d = OUT + 16 * j
            mfma32(e, d, AS[j], OF + 4 * t.a, None if first_ever else d)
        do_issue(tk, 'end')

    def outproj_final(ts, tk):
        sl_ = ts[0].sl
        for ss in range(4):
            dsr128(e, OF + 4 * ss, ofA[ss], 0)
        tl = sorted(ts, key=lambda t: t.a)
        sv = 14
        V(e, f"v_lshlrev_b32 v{sv}, 4, v0", [sv], [0])
        e.salu(f"s_mul_i32 s{S_T2}, s{S_W}, {20*1024}")
        sets = [AS[0:4], AS[4:8], AS[8:12]]
        def reads(j):
            for a in range(4):
                wo_reads(tl[a], [j], [sets[j % 3][a]])
        def store(j):
            d = OUT + 16 * j
            for o in range(2):
                b = d + 8 * o
                for i in range(4):
                    cvtpk(e, b + i, b + 2 * i, b + 2 * i + 1)
                e.salu(f"s_add_u32 s{S_T3}, s{S_T2}, {(2*j+o)*1024}")
                e.I(f"buffer_store_dwordx4 {vr(b,4)}, v{sv}, s[{SRD_P}:{SRD_P+3}], s{S_T3} offen{cfg.st_flags}", 'vstore', r=R(b, 4) + [sv])
        reads(0); reads(1)
        for j in range(10):
            if j + 2 < 10:
                reads(j + 2)
            d = OUT + 16 * j
            for a in range(4):
                mfma32(e, d, sets[j % 3][a], OF + 4 * a, d)
            if j >= 2:
                store(j - 2)
        store(8); store(9)

    for tk in range(0, S['nticks']):
        if tk > 0:
            e.comment(f"---- A tick {tk}")
            e.barrier()
            if tk in consA:
                qproj2(consA[tk], tk)
            elif tk == S['tQ0']:
                qfin(cfg.Q0B)
                if cfg.h_pol is not None:
                    calc_dK(e, dreg['K'], t0, t1); calc_dV(e, dreg['V'], t0, t1)
                do_issue(tk); setup_out1()
            elif tk == S['tQ1']:
                qfin(cfg.Q1B)
                do_issue(tk)
            elif tk == S['tQ1'] + 1:
                setup_out2()
                do_issue(tk)
                assert tk not in woc
            elif tk in woc:
                lst_ = woc[tk]
                if len(lst_) == 1:
                    outproj(lst_[0], tk)
                else:
                    do_issue(tk)
                    if cfg.prof:
                        e.raw("    v_lshlrev_b32 v14, 2, v0")
                        e.raw("    v_add_u32 v14, 65536, v14")
                        e.raw(f"    s_lshr_b32 s84, s{S_W1024}, 1")
                        e.raw("    v_add_u32 v14, s84, v14")
                        if cfg.h_pol is not None: e.raw("    v_mov_b32 v92, v95")
                        e.raw("    ds_write_b32 v14, v91 offset:0")
                        e.raw("    ds_write_b32 v14, v92 offset:256")
                        e.raw("    s_waitcnt lgkmcnt(0)")
                    outproj_final(lst_, tk)
                    if cfg.prof:
                        e.raw("    s_waitcnt lgkmcnt(0)")
                        e.lgkm = []
                        e.raw("    v_lshlrev_b32 v15, 2, v0")
                        e.raw("    v_add_u32 v15, 65536, v15")
                        e.raw(f"    s_lshr_b32 s84, s{S_W1024}, 1")
                        e.raw("    v_add_u32 v15, s84, v15")
                        e.raw("    s_waitcnt vmcnt(0)")
                        e.vm = []
                        e.raw("    ds_read_b32 v91, v15 offset:0")
                        e.raw("    ds_read_b32 v92, v15 offset:256")
                        e.raw("    s_waitcnt lgkmcnt(0)")
            else:
                do_issue(tk)
        if tk == 0: stamp(e, cfg, 3)
        if tk < S['nticks'] - 1: lstamp2(e, cfg, 0, 0, tk, S)
        for t in needA.get(tk + 1, []):
            e.wait_tile(t)
        if tk < S['nticks'] - 1: lstamp2(e, cfg, 0, 1, tk, S)
        if tk == 0: stamp(e, cfg, 4)
    if cfg.prof:
        e.raw("    s_memtime s[80:81]")
        e.raw("    s_waitcnt vmcnt(0)")
        e.raw("    s_memtime s[86:87]")
        e.raw("    s_memrealtime s[10:11]")
        e.raw("    s_getreg_b32 s12, hwreg(HW_REG_XCC_ID)")
        e.raw("    s_waitcnt lgkmcnt(0)")
        e.raw(f"    s_lshl_b32 s84, s{S_WG}, 3")
        e.raw(f"    s_add_u32 s84, s84, s{S_WAVE}")
        e.raw(f"    s_lshl_b32 s84, s84, 10")
        e.raw(f"    s_add_u32 s84, s84, {64<<20}")
        e.raw(f"    s_add_u32 s88, s{S_PTR+14}, s84")
        e.raw(f"    s_addc_u32 s89, s{S_PTR+15}, 0")
        e.raw(f"    s_and_b32 s89, s89, 0xffff")
        e.raw(f"    s_mov_b32 s90, 1024")
        e.raw(f"    s_mov_b32 s91, 0x20000")
        e.raw(f"    v_writelane_b32 v91, s82, 0")
        e.raw(f"    v_writelane_b32 v91, s80, 1")
        e.raw(f"    v_writelane_b32 v91, s86, 2")
        e.raw(f"    v_writelane_b32 v91, s8, 8")
        e.raw(f"    v_writelane_b32 v91, s10, 9")
        e.raw(f"    v_writelane_b32 v91, s12, 10")
        for n in range(5):
            e.raw(f"    v_writelane_b32 v91, s{STAMPS[n]}, {3+n}")
        e.raw(f"    v_lshlrev_b32 v28, 2, v0")
        e.raw(f"    buffer_store_dword v91, v28, s[88:91], 0 offen offset:256")
        e.raw(f"    buffer_store_dword v92, v28, s[88:91], 0 offen offset:512")
    if cfg.inred:
        e.raw("    s_waitcnt vmcnt(0)")
        e.raw("    s_barrier")
        e.raw("    s_barrier")
        e.raw(f"    s_cmp_eq_u32 s{S_W}, 0")
        e.raw("    s_cbranch_scc0 L_exit")
        e.raw("    s_mov_b32 s56, 4")
        e.raw("    s_branch L_RED")
        e.nbar += 2
    else:
        e.raw("    s_endpgm")
    return e

def gen_red(cfg):
    L = []
    A = lambda t: L.append("    " + t)
    L.append("L_RED:")
    A(f"s_mul_i32 s57, s{S_HP}, 5")
    A("s_add_u32 s57, s57, s56")
    A(f"s_mul_i32 s58, s{S_B}, {16*81920}")
    A(f"s_add_u32 s32, s{S_PTR+14}, s58")
    A(f"s_addc_u32 s33, s{S_PTR+15}, 0")
    A("s_and_b32 s33, s33, 0xffff")
    A(f"s_mov_b32 s34, {16*81920}")
    A("s_mov_b32 s35, 0x20000")
    A("s_lshl_b32 s59, s57, 10")
    A("v_lshlrev_b32 v2, 4, v0")
    A("v_add_u32 v2, s59, v2")
    for h in range(16):
        A(f"s_mov_b32 s{60+h}, {h*81920}")
    for h in range(16):
        A(f"buffer_load_dwordx4 v[{8+4*h}:{11+4*h}], v2, s[32:35], s{60+h} offen sc1")
    A("s_mul_hi_u32 s40, s57, 214748365")
    A("s_mul_i32 s41, s40, 20")
    A("s_sub_u32 s41, s57, s41")
    A("s_and_b32 s42, s40, 1")
    A("s_lshr_b32 s43, s40, 1")
    A("s_mul_i32 s43, s43, 320")
    A("s_lshl_b32 s41, s41, 4")
    A("s_add_u32 s43, s43, s41")
    A("s_lshl_b32 s42, s42, 5")
    A(f"s_lshl_b32 s44, s{S_B}, 6")
    A("s_add_u32 s42, s42, s44")
    A("s_mul_i32 s42, s42, 1280")
    A("s_lshl_b32 s43, s43, 1")
    A("s_add_u32 s42, s42, s43")
    A("v_and_b32 v3, 31, v0")
    A("v_mul_u32_u24 v3, 1280, v3")
    A("v_lshrrev_b32 v4, 5, v0")
    A("v_lshlrev_b32 v4, 4, v4")
    A("v_add_u32 v3, v3, v4")
    A(f"s_mov_b32 s44, s{S_PTR+10}")
    A(f"s_and_b32 s45, s{S_PTR+11}, 0xffff")
    A(f"s_mov_b32 s46, {16*64*640*2}")
    A("s_mov_b32 s47, 0x20000")
    for h in range(16):
        A(f"s_waitcnt vmcnt({15-h})")
        for i in range(4):
            src = 8 + 4 * h + i
            if h == 0:
                A(f"v_lshlrev_b32 v{72+2*i}, 16, v{src}")
                A(f"v_and_b32 v{73+2*i}, 0xffff0000, v{src}")
            else:
                A(f"v_lshlrev_b32 v5, 16, v{src}")
                A(f"v_and_b32 v6, 0xffff0000, v{src}")
                A(f"v_add_f32 v{72+2*i}, v{72+2*i}, v5")
                A(f"v_add_f32 v{73+2*i}, v{73+2*i}, v6")
    for i in range(4):
        A(f"v_cvt_pk_bf16_f32 v{80+i}, v{72+2*i}, v{73+2*i}")
    A("buffer_store_dwordx4 v[80:83], v3, s[44:47], s42 offen")
    A("s_endpgm")
    return L

def generate(cfg, fn):
    S = build_schedule(cfg)
    P = prologue(cfg); A = gen_A(cfg, S); B = gen_B(cfg, S)
    assert A.nbar == B.nbar, (A.nbar, B.nbar)
    L = []
    if cfg.inred:
        L.append(f"; @launch grid=(256,1,1) block=(512,1,1) lds=163840")
    else:
        L.append(f"; @launch kernel={KN} grid=(256,1,1) block=(512,1,1) lds=163840")
        L.append(f"; @launch kernel={KN2} grid=(320,1,1) block=(256,1,1) lds=0")
    L.append('.amdgcn_target "amdgcn-amd-amdhsa--gfx950"')
    L.append(".text")
    L.append(f".globl {KN}")
    L.append(".p2align 8")
    L.append(f".type {KN},@function")
    L.append(f"{KN}:")
    L += P.lines + A.lines + B.lines
    if cfg.inred:
        L += gen_red(cfg)
    L.append("L_exit:")
    L.append("    s_endpgm")
    if not cfg.inred:
        L += gen_reduce()
    L.append('.section .rodata,"a"')
    L.append(".p2align 6")
    L += kd(KN, 256)
    if not cfg.inred:
        L.append(".p2align 6")
        L += kd(KN2, 88)
    open(fn, "w").write("\n".join(L) + "\n")
    print("ticks", S['nticks'], "A instr", A.ninstr, A.stats, "B instr", B.ninstr, B.stats, file=sys.stderr)
    return S

if __name__ == "__main__":
    cfg = Cfg()
    cfg.prof_lds = 72 * 1024 if False else 79 * 1024
    cfg.prof_from = 12
    cfg.prof_t = {0: (14, 15), 1: (28, 29)}
    cfg.final_addr = [136 * 1024, 0, 20 * 1024, 40 * 1024]
    if "--prof" in sys.argv: cfg.prof = True
    for a in sys.argv[2:]:
        if "=" in a:
            k, v = a.split("=", 1)
            setattr(cfg, k, eval(v))
    S = generate(cfg, sys.argv[1] if len(sys.argv) > 1 else "k4.s")
    if "-v" in sys.argv:
        for t in S['allt']:
            print(t.name, hex(t.addr), "issue", t.issue, "by", t.by, "consume", t.consume)
```

```python
import sys, struct
from emit import Em, vr, sr, R
import gen as G
from gen import (Tile, V, calc_dK, calc_dWQ, calc_dX, calc_dV, calc_dWO, mfma16, mfma32, dsr128, dsrtr, dsw64, cvtpk, f32, kd,
                 gen_reduce, KN, KN2, QO, stamp, lstamp, STAMPS, PROF_LDS, dma_tile,
                 S_WG, S_WAVE, S_W, S_B, S_HP, S_ROT, S_PTR, SRD_K, SRD_V, SRD_WQ, SRD_X, SRD_WO, SRD_P,
                 S_W3072, S_W1024, S_W2048, S_W5120, S_WQCOL, S_C, S_T0, S_T1, S_T2, S_T3, S_KT, S_W6144, S_DH12, S_W64)

class Cfg:
    nt_kv = True
    prof = False
    rot = True
    touch = False
    w0_slots = 6
    xbase = 80 * 1024
    x_issue = [0, 0, 0, 1, 1, 1, 1, 2, 2, 2]
    w0_issue = None
    kpre = 6
    W1 = 0
    WSZ = 81920
    OB = 80 * 1024
    Q0B = 0
    Q1B = 56 * 1024
    HB = 88 * 1024
    HSZ = 72 * 1024
    touch_wq1 = 3
    touch_wo_lead = 5
    early_lead = 1
    x_cons = [1, 2, 2, 3, 3, 3, 3, 3, 3, 3]
    x_iss = [0, 0, 0, 1, 1, 1, 1, 1, 1, 2]
    x_ord = [0, 3, 4, 2, 3, 4, 5, 6, 7, 0]
    w0_iss = [0, 0, 1, 1, 2, 2, 2, 2]
    w0_ord = [1, 2, 0, 1, 1, 2, 3, 4]
    kpre_ticks = [8, 8, 9, 9, 11, 11]
    x_all = True
    kpre_by = 'B'
    w0_first = 6
    pf_wq = True
    pf_dst1 = staticmethod(lambda SB, i: SB + 8 * i + 4)
    pf_ticks = [0] * 14
    exp_ahead = True
    skipA = ()
    skipB = ()
    skiptile = ()
    k_lead = [[9, 9], [9, 9]]
    v_lead = [9, 9]
    inred = False
    st_flags = ''
    spin_max = 200000
    b_pos = 0
    fineB = 21
    fineA = 15
    final_addr = None
    wo_rot = False
    wo_g = 'and3'
    pair_rot = False
    a_end_until = 0
    wq1_earliest = 0
    a_delay = 0
    x_ring = None
    pf_first = 0
    h_ord = None
    w_end = False
    smem_pf = False
    smem_first = 15
    smem_per = 3
    touch2 = None
    touch2_stride = 64
    touch2_tick = 0
    touch2_pos = 3
    tlb = ''
    tlb_reg = 228
    tlb_tick = 1
    pf_wq_trim = False
    h_pol = None
    h_from = 11
    nt_pf = ''
    nt_wq = ''
    nt_x = ''
    nt_wo = ''
    wq1_lead = 99

def build_schedule(cfg):
    T0 = 1
    HB, HSZ, W1 = cfg.HB, cfg.HSZ, cfg.W1
    X = []
    for j in range(10):
        xa = cfg.xbase + j * 8192 if cfg.x_ring is None else cfg.x_ring[0] + (j % cfg.x_ring[1]) * 8192
        t = Tile('x', f"x_{j}", xa, 8192, j=j)
        t.consume = [cfg.x_cons[j]]; t.by = 'B'; t.earliest = cfg.x_iss[j]; t.order = cfg.x_ord[j]
        X.append(t)
    W0 = []
    for i in range(20):
        t = Tile('w0', f"w0_{i}", (i % cfg.w0_slots) * 12288, 12288, hd=0, i=i)
        t.consume = [T0 + i // 2]; t.by = 'B'
        t.earliest = cfg.w0_iss[i] if i < len(cfg.w0_iss) else 1
        t.order = cfg.w0_ord[i] if i < len(cfg.w0_ord) else 50 + i
        W0.append(t)
    tQ0 = T0 + 10
    tK0 = tQ0 + 1
    H = []
    pos = 0
    tk = tK0
    info = {}
    for hd in range(2):
        info[('k', hd)] = tk
        for j in range(16):
            assert pos + 12288 <= HSZ
            t = Tile('k', f"k{hd}_{j}", HB + pos, 12288, hd=hd, j=j)
            pos = (pos + 12288) % HSZ
            t.consume = [tk + j // 2]; t.by = 'B'; t.earliest = max(0, t.consume[0] - cfg.k_lead[hd][j % 2])
            H.append(t)
        tk += 8
        info[('v', hd)] = tk
        for sl in range(3):
            for j in range(8):
                assert pos + 8192 <= HSZ
                t = Tile('v', f"v{hd}_{sl}_{j}", HB + pos, 8192, hd=hd, sl=sl, j=j)
                pos = (pos + 8192) % HSZ
                t.consume = [tk + j // 2]; t.by = 'B'; t.earliest = max(0, t.consume[0] - cfg.v_lead[j % 2])
                H.append(t)
            tk += 4
    for n, t in enumerate(H[:cfg.kpre]):
        t.by = cfg.kpre_by; t.earliest = cfg.kpre_ticks[n]
    tEnd = tk
    W1t = []
    tq1 = tK0 + cfg.a_delay
    nq1 = cfg.WSZ // 12288
    for i in range(20):
        t = Tile('wq1', f"wq1_{i}", W1 + ((i + 2) % nq1) * 12288, 12288, hd=1, i=i)
        t.consume = [tq1 + i // 2]; t.by = 'A'; t.earliest = max(cfg.wq1_earliest, t.consume[0] - cfg.wq1_lead)
        W1t.append(t)
    tQ1 = tq1 + 10
    v0 = info[('v', 0)]
    assert cfg.a_delay <= 2
    WO = []
    slot = 0
    nwo = cfg.WSZ // 20480
    for hd in range(2):
        vstart = info[('v', hd)]
        for sl in range(3):
            tO = vstart + 4 * sl + 3
            for a in range(4):
                final = (hd == 1 and sl == 2)
                t = Tile('wo', f"wo{hd}_{sl}_{a}", None, 20480, hd=hd, sl=sl, a=a)
                if final:
                    t.addr = cfg.final_addr[a]
                    t.consume = [tO + 1]
                else:
                    t.addr = W1 + (slot % nwo) * 20480
                    slot += 1
                    t.consume = [tO + 1 + a + (cfg.a_delay if hd == 0 else 0)]
                t.by = 'A'
                t.earliest = tQ0 + 1
                WO.append(t)
    nticks = tEnd + 1
    free_at = [0] * 160
    PQ = []
    q0 = Tile('q', 'Q0', cfg.Q0B, 24576); q0.fixed = tQ0; q0.consume = [tQ0 + 1]; q0.by = None; PQ.append(q0)
    q1 = Tile('q', 'Q1', cfg.Q1B, 24576); q1.fixed = tQ1; q1.consume = [tQ1 + 1]; q1.by = None; PQ.append(q1)
    ob = Tile('q', 'OB', cfg.OB, 8192); ob.fixed = v0 + 3; ob.consume = [tEnd]; ob.by = None; PQ.append(ob)
    streams = [X, W0, H, W1t, WO, PQ]
    def okey(t):
        first = t.fixed if t.kind == 'q' else t.consume[0]
        return (first, t.kind, getattr(t, 'i', 0), getattr(t, 'sl', 0), getattr(t, 'j', 0), getattr(t, 'a', 0))
    allt = sorted([t for s_ in streams for t in s_], key=okey)
    last_issue = {}
    for t in allt:
        lo = t.addr // 1024; hi = (t.addr + t.size) // 1024
        e = max(free_at[lo:hi])
        if t.kind == 'q':
            assert e <= t.fixed, (t, e, t.fixed)
            t.issue = t.fixed
        else:
            key = t.kind if t.kind in ('x', 'w0', 'wq1', 'wo') else 'h'
            e = max(e, last_issue.get(key, 0), t.earliest)
            t.issue = e
            last_issue[key] = e
            assert t.issue < t.consume[0], (t, t.issue, t.consume)
        for k in range(lo, hi):
            free_at[k] = t.consume[-1] + 1
    for a in allt:
        for b in allt:
            if a is b: continue
            if a.addr < b.addr + b.size and b.addr < a.addr + a.size:
                assert a.consume[-1] < b.issue or b.consume[-1] < a.issue, ("overlap", a, a.issue, a.consume, b, b.issue, b.consume)
    allt = [t for t in allt if t.kind != 'q']
    if cfg.h_pol is not None:
        for t in H:
            if t.issue >= cfg.h_from and cfg.h_pol(t): t.by = 'A'
            if cfg.h_ord is not None and t.by == 'A': t.order = cfg.h_ord
    return dict(nticks=nticks, X=X, W0=W0, H=H, W1t=W1t, WO=WO, tQ0=tQ0, tQ1=tQ1, info=info, tEnd=tEnd, allt=allt)

def srd(e, d, p, offs, size):
    if offs is None:
        e.salu(f"s_mov_b32 s{d}, s{p}")
        e.salu(f"s_and_b32 s{d+1}, s{p+1}, 0xffff")
    else:
        e.salu(f"s_add_u32 s{d}, s{p}, s{offs}")
        e.salu(f"s_addc_u32 s{d+1}, s{p+1}, 0")
        e.salu(f"s_and_b32 s{d+1}, s{d+1}, 0xffff")
    e.salu(f"s_mov_b32 s{d+2}, {size}")
    e.salu(f"s_mov_b32 s{d+3}, 0x20000")

S_OKV = 56; S_OP = 57; S_OX = 58; S_OWO = 59
def build_srds(e, cfg, first):
    e.raw("    s_waitcnt lgkmcnt(0)")
    stamp(e, cfg, 0)
    lst = {
        'WQ': lambda: srd(e, SRD_WQ, S_PTR + 6, None, 640 * 12288),
        'X': lambda: srd(e, SRD_X, S_PTR + 0, S_OX, 81920),
        'K': lambda: srd(e, SRD_K, S_PTR + 2, S_OKV, 393216),
        'V': lambda: srd(e, SRD_V, S_PTR + 4, S_OKV, 393216),
        'WO': lambda: srd(e, SRD_WO, S_PTR + 8, S_OWO, 2 * 192 * 1280),
        'P': lambda: srd(e, SRD_P, S_PTR + 14, S_OP, 81920),
    }
    lst[first]()
    return [k for k in lst if k != first], lst

def prologue(cfg):
    e = Em('P')
    e.salu(f"s_cmp_ge_u32 s{S_WG}, 256")
    e.raw("    s_cbranch_scc1 L_exit")
    e.raw(f"    s_load_dwordx16 s[{S_PTR}:{S_PTR+15}], s[0:1], 0")
    if cfg.prof:
        e.raw("    s_memtime s[82:83]")
        e.raw("    s_memrealtime s[8:9]")
    e.valu("v_lshrrev_b32 v1, 6, v0", w=[1], r=[0])
    e.I(f"v_readfirstlane_b32 s{S_WAVE}, v1", 'readlane', w=[f's{S_WAVE}'], r=[1])
    e.valu("v_and_b32 v0, 63, v0", w=[0], r=[0])
    e.salu(f"s_and_b32 s{S_T0}, s{S_WG}, 7")
    e.salu(f"s_lshr_b32 s{S_T1}, s{S_WG}, 3")
    e.salu(f"s_lshr_b32 s{S_T2}, s{S_T1}, 4")
    e.salu(f"s_lshl_b32 s{S_HP}, s{S_T0}, 1")
    e.salu(f"s_add_u32 s{S_HP}, s{S_HP}, s{S_T2}")
    e.salu(f"s_and_b32 s{S_B}, s{S_T1}, 15")
    e.I(f"s_and_b32 s{S_W}, s{S_WAVE}, 3", 'salu', r=[f's{S_WAVE}'])
    e.salu(f"s_mul_i32 s{S_ROT}, s{S_B}, 5")
    e.salu(f"s_lshr_b32 s{S_ROT}, s{S_ROT}, 3")
    e.salu(f"s_lshl_b32 s{S_ROT}, s{S_ROT}, 1")
    if cfg.pair_rot:
        e.salu(f"s_mul_i32 s{S_T2}, s{S_T2}, 10")
        e.salu(f"s_add_u32 s{S_ROT}, s{S_ROT}, s{S_T2}")
        e.salu(f"s_sub_u32 s{S_T2}, s{S_ROT}, 20")
        e.salu(f"s_cmp_ge_u32 s{S_ROT}, 20")
        e.salu(f"s_cselect_b32 s{S_ROT}, s{S_T2}, s{S_ROT}")
    if cfg.wo_g == 'and3':
        e.salu(f"s_and_b32 s13, s{S_B}, 3")
    else:
        e.salu(f"s_lshr_b32 s13, s{S_B}, 2")
    e.salu(f"s_mul_i32 s{S_W3072}, s{S_W}, 3072")
    e.salu(f"s_lshl_b32 s{S_W1024}, s{S_W}, 10")
    e.salu(f"s_lshl_b32 s{S_W2048}, s{S_W}, 11")
    e.salu(f"s_mul_i32 s{S_W5120}, s{S_W}, 5120")
    e.salu(f"s_mul_i32 s{S_W6144}, s{S_W}, 6144")
    e.salu(f"s_lshl_b32 s{S_W64}, s{S_W}, 6")
    e.salu(f"s_mul_i32 s{S_WQCOL}, s{S_HP}, 768")
    e.salu(f"s_lshr_b32 s{S_DH12}, s{S_W}, 1")
    e.salu(f"s_mul_i32 s{S_DH12}, s{S_DH12}, 12")
    e.salu(f"s_mov_b32 s{S_C}, {f32((192 ** -0.5) * 1.4426950408889634):#x}")
    e.salu(f"s_lshl_b32 s{S_T0}, s{S_B}, 4")
    e.salu(f"s_add_u32 s{S_T0}, s{S_T0}, s{S_HP}")
    e.salu(f"s_mul_i32 s{S_OKV}, s{S_T0}, 393216")
    e.salu(f"s_mul_i32 s{S_OP}, s{S_T0}, 81920")
    e.salu(f"s_mul_i32 s{S_OX}, s{S_B}, 81920")
    e.salu(f"s_mul_i32 s{S_OWO}, s{S_HP}, {2*192*1280}")
    e.salu(f"s_cmp_ge_u32 s{S_WAVE}, 4")
    e.raw("    s_cbranch_scc1 L_B")
    return e

def plan(S, who):
    issue = {}; need = {}
    for t in S['allt']:
        if t.by == who:
            issue.setdefault(t.issue, []).append(t)
            need.setdefault(t.consume[0], []).append(t)
    for k in issue:
        issue[k].sort(key=lambda t: getattr(t, 'order', 100))
    return issue, need

class Fine:
    def __init__(s, e, cfg, reg, tick):
        s.e, s.cfg, s.reg, s.tick, s.n, s.cur = e, cfg, reg, tick, 0, -1
    def __call__(s, label=""):
        if s.cfg.prof and s.cur == s.tick and s.n < 12:
            s.e.raw("    s_memtime s[96:97]")
            s.e.raw("    s_waitcnt lgkmcnt(0)")
            s.e.lgkm = []
            s.e.raw(f"    v_writelane_b32 v{s.reg}, s96, {s.n}")
            print("fine", s.reg, s.n, label, file=sys.stderr)
            s.n += 1

def gen_B(cfg, S):
    e = Em('B')
    e.skip = cfg.skipB; e.skiptile = cfg.skiptile
    dreg = dict(K=[1, 2, 3], WQ=[4, 5, 6], V=[8, 9])
    kA = [10, 11]; vA = [12, 13, 14, 15]; oA = [16, 17, 18, 19]; TT = [20, 21, 22, 23]; TU = [7, 26 + 0, 30, 31]
    vm, vmc, vinvl, t0, t1, t2 = 24, 25, 26, 27, 28, 29
    ONES = 32; LACC = 36; OACC = 40; QF = 56; FR = 80; SB = 128
    qt = [27, 28]
    fine = Fine(e, cfg, 29, cfg.fineB)
    e.label("L_B")
    dreg['X'] = [20, 21]
    calc_dX(e, dreg['X'], t0, t1)
    calc_dWQ(e, dreg['WQ'], t0, t1, t2)
    rest, lst = build_srds(e, cfg, 'X')
    lst['WQ'](); rest.remove('WQ')
    issue, needB = plan(S, 'B')
    cons = {}
    for t in S['H']:
        cons.setdefault(t.consume[0], []).append(t)
    pfitems = []
    PFA = 7
    def mk_wo(hd, i, reg):
        def f():
            e.salu(f"s_mul_i32 s{S_T0}, s{S_B}, 15360")
            e.salu(f"s_add_u32 s{S_T0}, s{S_T0}, s{S_W1024}")
            e.salu(f"s_add_u32 s{S_T1}, s{S_T0}, {hd*245760 + i*4096}")
            e.I(f"buffer_load_dwordx4 {vr(reg, 4)}, v{PFA}, s[{SRD_WO}:{SRD_WO+3}], s{S_T1} offen{cfg.nt_pf}", 'vload', w=R(reg, 4), r=[PFA])
        return f
    def mk_wq(rb, p, reg):
        def f():
            e.salu(f"s_mul_i32 s{S_T0}, s{S_B}, {40*12288}")
            e.salu(f"s_add_u32 s{S_T0}, s{S_T0}, s{S_WQCOL}")
            e.salu(f"s_add_u32 s{S_T0}, s{S_T0}, {384 + rb*12288}")
            off = f" offset:{1024*p}" if p else ""
            if rb == 8 and cfg.pf_wq_trim:
                e.raw(f"    s_cmp_eq_u32 s{S_W}, 3")
                e.raw(f"    s_cbranch_scc0 L_pfskip{p}")
                e.raw(f"    buffer_load_dwordx4 {vr(reg, 4)}, v{dreg['WQ'][p]}, s[{SRD_WQ}:{SRD_WQ+3}], s{S_T0} offen{off}{cfg.nt_pf}")
                e.raw(f"L_pfskip{p}:")
                return
            e.I(f"buffer_load_dwordx4 {vr(reg, 4)}, v{dreg['WQ'][p]}, s[{SRD_WQ}:{SRD_WQ+3}], s{S_T0} offen{off}{cfg.nt_pf}", 'vload', w=R(reg, 4), r=[dreg['WQ'][p]])
        return f
    wq_items = [mk_wq(rb, p, SB + 12 * (rb // 8) + 4 * p) for rb in (0, 8) for p in range(3)]
    wo_items = [mk_wo(hd, i, (OACC + 4 * i) if hd == 0 else cfg.pf_dst1(SB, i)) for hd in range(2) for i in range(4)]
    allitems = (wq_items if cfg.pf_wq else []) + wo_items
    pfplan = {}
    for n, it in enumerate(allitems):
        pfplan.setdefault(cfg.pf_ticks[min(n, len(cfg.pf_ticks) - 1)], []).append(it)
    def tlb_touch():
        tg = {'K': (SRD_K, 16, ' nt'), 'V': (SRD_V, 16, ' nt'), 'P': (SRD_P, 12, ' nt')}
        for n, k in enumerate(cfg.tlb):
            srd_, sh, fl = tg[k]
            e.raw(f"    s_cmp_eq_u32 s{S_W}, {n}")
            e.raw(f"    s_cbranch_scc0 L_tlb{n}")
            e.raw(f"    v_lshlrev_b32 v{cfg.tlb_reg}, {sh}, v0")
            e.raw(f"    buffer_load_dword v{cfg.tlb_reg+1}, v{cfg.tlb_reg}, s[{srd_}:{srd_+3}], 0 offen{fl}")
            e.raw(f"L_tlb{n}:")
    def touch2_setup():
        st = cfg.touch2_stride
        ta, tb, tc, td = SB + 104, SB + 105, SB + 106, SB + 107
        nwo = 15360 // st; per_row = 384 // st; nwq = 40 * per_row
        V(e, f"v_add_u32 v{ta}, s{S_W64}, v0", [ta], [0])
        V(e, f"v_mov_b32 v{td}, 0x7fffff00", [td])
        e.salu(f"s_mul_i32 s{S_T0}, s{S_B}, 15360")
        V(e, f"v_mul_u32_u24 v{tb}, {st}, v{ta}", [tb], [ta])
        V(e, f"v_add_u32 v{tb}, s{S_T0}, v{tb}", [tb], [tb])
        V(e, f"v_cmp_gt_u32 vcc, {nwo}, v{ta}", ['vcc'], [ta])
        e.valu(f"v_cndmask_b32 v{tb}, v{td}, v{tb}, vcc", w=[tb], r=[td, tb, 'vcc'])
        mul, sh = {6: (171, 10), 3: (171, 9)}[per_row]
        V(e, f"v_mul_u32_u24 v{tc}, {mul}, v{ta}", [tc], [ta])
        V(e, f"v_lshrrev_b32 v{tc}, {sh}, v{tc}", [tc], [tc])
        V(e, f"v_mul_u32_u24 v{SB+108}, {per_row}, v{tc}", [SB+108], [tc])
        V(e, f"v_sub_u32 v{SB+108}, v{ta}, v{SB+108}", [SB+108], [ta, SB+108])
        V(e, f"v_mul_u32_u24 v{SB+108}, {st}, v{SB+108}", [SB+108], [SB+108])
        V(e, f"v_mul_u32_u24 v{tc}, 12288, v{tc}", [tc], [tc])
        V(e, f"v_add_u32 v{tc}, v{tc}, v{SB+108}", [tc], [tc, SB+108])
        e.salu(f"s_mul_i32 s{S_T0}, s{S_B}, {40*12288}")
        e.salu(f"s_add_u32 s{S_T0}, s{S_T0}, s{S_WQCOL}")
        e.salu(f"s_add_u32 s{S_T0}, s{S_T0}, 384")
        V(e, f"v_add_u32 v{tc}, s{S_T0}, v{tc}", [tc], [tc])
        V(e, f"v_cmp_gt_u32 vcc, {nwq}, v{ta}", ['vcc'], [ta])
        e.valu(f"v_cndmask_b32 v{tc}, v{td}, v{tc}, vcc", w=[tc], r=[td, tc, 'vcc'])
    def touch2_issue():
        tb, tc = SB + 105, SB + 106
        if 'q' in cfg.touch2:
            e.I(f"buffer_load_dword v{SB+110}, v{tc}, s[{SRD_WQ}:{SRD_WQ+3}], 0 offen", 'vload', w=[SB+110], r=[tc])
        if 'o' in cfg.touch2:
            e.salu(f"s_mov_b32 s{S_T1}, 245760")
            e.I(f"buffer_load_dword v{SB+111}, v{tb}, s[{SRD_WO}:{SRD_WO+3}], 0 offen", 'vload', w=[SB+111], r=[tb])
            e.I(f"buffer_load_dword v{SB+112}, v{tb}, s[{SRD_WO}:{SRD_WO+3}], s{S_T1} offen", 'vload', w=[SB+112], r=[tb])
    def do_issue(tk):
        for n, t in enumerate(issue.get(tk, [])):
            if tk == 0 and cfg.touch2 and cfg.touch2_tick == 0 and n == cfg.touch2_pos:
                lst['WO'](); rest.remove('WO')
                touch2_setup(); touch2_issue()
            dma_tile(e, t, cfg, dreg)
        if tk > 0:
            for it in pfplan.get(tk, []): it()
        if tk > 0 and cfg.touch2 and cfg.touch2_tick == tk:
            touch2_setup(); touch2_issue()
        if cfg.tlb and tk == cfg.tlb_tick and tk > 0: tlb_touch()
        if tk > 0 and cfg.smem_pf:
            for _ in range(cfg.smem_per if tk < 10 else 99):
                if smem_list:
                    d, o = smem_list.pop(0); e.raw(f"    s_load_dword s95, s[{d}:{d+1}], {o}")
    stamp(e, cfg, 1)
    if cfg.pf_first:
        lst['WO'](); rest.remove('WO')
        V(e, f"v_lshlrev_b32 v{PFA}, 4, v0", [PFA], [0])
        p0 = pfplan.get(0, [])
        for it in p0[:cfg.pf_first]: it()
        pfplan[0] = p0[cfg.pf_first:]
    do_issue(0)
    stamp(e, cfg, 2)
    for k in rest: lst[k]()
    V(e, f"v_lshlrev_b32 v{PFA}, 4, v0", [PFA], [0])
    for it in pfplan.get(0, []): it()
    smem_list = []
    if cfg.smem_pf:
        def sbase(d, woff, const):
            e.salu(f"s_mul_i32 s{S_T0}, s{S_B}, 15360")
            e.salu(f"s_add_u32 s{S_T0}, s{S_T0}, s{S_OWO}")
            e.salu(f"s_mul_i32 s{S_T1}, s{S_W}, {woff}")
            e.salu(f"s_add_u32 s{S_T0}, s{S_T0}, s{S_T1}")
            e.salu(f"s_add_u32 s{S_T0}, s{S_T0}, {const}")
            e.salu(f"s_add_u32 s{d}, s{S_PTR+8}, s{S_T0}")
            e.salu(f"s_addc_u32 s{d+1}, s{S_PTR+9}, 0")
        sbase(14, 3840, 0); sbase(98, 1920, 245760)
        smem_list = [(14, i * 128) for i in range(30)] + [(98, i * 128) for i in range(15)]
        for _ in range(cfg.smem_first):
            d, o = smem_list.pop(0); e.raw(f"    s_load_dword s95, s[{d}:{d+1}], {o}")
    if cfg.tlb and cfg.tlb_tick == 0: tlb_touch()
    calc_dK(e, dreg['K'], t0, t1)
    calc_dV(e, dreg['V'], t0, t1)
    V(e, f"v_and_b32 v{t0}, 15, v0", [t0], [0])
    V(e, f"v_lshrrev_b32 v{t1}, 1, v{t0}", [t1], [t0])
    V(e, f"v_lshrrev_b32 v{t2}, 4, v0", [t2], [0])
    V(e, f"v_xor_b32 v{t2}, v{t2}, v{t1}", [t2], [t1, t2])
    V(e, f"v_lshlrev_b32 v{t2}, 4, v{t2}", [t2], [t2])
    V(e, f"v_mul_u32_u24 v{kA[0]}, 384, v{t0}", [kA[0]], [t0])
    V(e, f"v_add_u32 v{kA[0]}, v{kA[0]}, v{t2}", [kA[0]], [kA[0], t2])
    V(e, f"v_xor_b32 v{t2}, 64, v{t2}", [t2], [t2])
    V(e, f"v_mul_u32_u24 v{kA[1]}, 384, v{t0}", [kA[1]], [t0])
    V(e, f"v_add_u32 v{kA[1]}, v{kA[1]}, v{t2}", [kA[1]], [kA[1], t2])
    V(e, f"v_lshlrev_b32 v{t2}, 7, v{t0}", [t2], [t0])
    V(e, f"v_add_u32 v{t2}, s{S_W2048}, v{t2}", [t2], [t2])
    V(e, f"v_add_u32 v{t2}, {cfg.OB}, v{t2}", [t2], [t2])
    V(e, f"v_lshrrev_b32 v{vm}, 4, v0", [vm], [0])
    V(e, f"v_and_b32 v{vmc}, 1, v{vm}", [vmc], [vm])
    V(e, f"v_lshlrev_b32 v{vmc}, 3, v{vmc}", [vmc], [vmc])
    V(e, f"v_add_u32 v{t2}, v{t2}, v{vmc}", [t2], [t2, vmc])
    V(e, f"v_lshrrev_b32 v{vm}, 1, v{vm}", [vm], [vm])
    for dt in range(4):
        V(e, f"v_add_u32 v{vmc}, {2*dt}, v{vm}", [vmc], [vm])
        V(e, f"v_xor_b32 v{vmc}, v{vmc}, v{t1}", [vmc], [vmc, t1])
        V(e, f"v_lshlrev_b32 v{vmc}, 4, v{vmc}", [vmc], [vmc])
        V(e, f"v_add_u32 v{oA[dt]}, v{t2}, v{vmc}", [oA[dt]], [t2, vmc])
    V(e, f"v_lshrrev_b32 v{t0}, 2, v0", [t0], [0])
    V(e, f"v_and_b32 v{t1}, 6, v{t0}", [t1], [t0])
    V(e, f"v_lshlrev_b32 v{t0}, 7, v{t0}", [t0], [t0])
    V(e, f"v_and_b32 v{t2}, 3, v0", [t2], [0])
    V(e, f"v_lshlrev_b32 v{t2}, 3, v{t2}", [t2], [t2])
    V(e, f"v_add_u32 v{t0}, v{t0}, v{t2}", [t0], [t0, t2])
    for dt in range(4):
        V(e, f"v_xor_b32 v{t2}, {2*dt}, v{t1}", [t2], [t1])
        V(e, f"v_lshlrev_b32 v{t2}, 4, v{t2}", [t2], [t2])
        V(e, f"v_add_u32 v{vA[dt]}, v{t0}, v{t2}", [vA[dt]], [t0, t2])
    for i in range(4):
        V(e, f"v_mov_b32 v{ONES+i}, 0x3f803f80", [ONES + i])

    def load_qfrags(qb):
        V(e, f"v_add_u32 v{qt[0]}, s{S_W6144}, v{kA[0]}", [qt[0]], [kA[0]])
        V(e, f"v_add_u32 v{qt[1]}, s{S_W6144}, v{kA[1]}", [qt[1]], [kA[1]])
        if qb:
            V(e, f"v_add_u32 v{qt[0]}, {qb}, v{qt[0]}", [qt[0]], [qt[0]])
            V(e, f"v_add_u32 v{qt[1]}, {qb}, v{qt[1]}", [qt[1]], [qt[1]])
        for s in range(6):
            dsr128(e, QF + 4 * s, qt[s % 2], (s // 2) * 128)

    def maxtile(jt):
        b = SB + 8 * jt
        if jt == 0:
            e.valu(f"v_max3_f32 v{vm}, v{b}, v{b+1}, v{b+2}", w=[vm], r=[b, b + 1, b + 2])
            e.valu(f"v_max3_f32 v{vm}, v{vm}, v{b+3}, v{b+4}", w=[vm], r=[vm, b + 3, b + 4])
            e.valu(f"v_max3_f32 v{vm}, v{vm}, v{b+5}, v{b+6}", w=[vm], r=[vm, b + 5, b + 6])
            e.valu(f"v_max_f32 v{vm}, v{vm}, v{b+7}", w=[vm], r=[vm, b + 7])
        else:
            for i in range(4):
                e.valu(f"v_max3_f32 v{vm}, v{vm}, v{b+2*i}, v{b+2*i+1}", w=[vm], r=[vm, b + 2 * i, b + 2 * i + 1])

    def maxlist(jt):
        b = SB + 8 * jt
        out = []
        if jt == 0:
            out.append(lambda: e.valu(f"v_max3_f32 v{vm}, v{b}, v{b+1}, v{b+2}", w=[vm], r=[b, b + 1, b + 2]))
            out.append(lambda: e.valu(f"v_max3_f32 v{vm}, v{vm}, v{b+3}, v{b+4}", w=[vm], r=[vm, b + 3, b + 4]))
            out.append(lambda: e.valu(f"v_max3_f32 v{vm}, v{vm}, v{b+5}, v{b+6}", w=[vm], r=[vm, b + 5, b + 6]))
            out.append(lambda: e.valu(f"v_max_f32 v{vm}, v{vm}, v{b+7}", w=[vm], r=[vm, b + 7]))
        else:
            for i in range(4):
                out.append(lambda i=i: e.valu(f"v_max3_f32 v{vm}, v{vm}, v{b+2*i}, v{b+2*i+1}", w=[vm], r=[vm, b + 2 * i, b + 2 * i + 1]))
        return out

    def qk2(ta, tb, tk):
        if ta.j == 0 and ta.hd == 0:
            load_qfrags(cfg.Q0B)
        for n, t in enumerate((ta, tb)):
            V(e, f"v_add_u32 v{TT[2*n]}, {t.addr}, v{kA[0]}", [TT[2*n]], [kA[0]])
            V(e, f"v_add_u32 v{TT[2*n+1]}, {t.addr}, v{kA[1]}", [TT[2*n+1]], [kA[1]])
        pairs = [(n, tp, s_) for n in range(2) for s_ in range(6) for tp in range(2)]
        def rd(i):
            n, tp, s_ = pairs[i]
            dsr128(e, FR + 4 * (i % 12), TT[2 * n + s_ % 2], tp * 6144 + (s_ // 2) * 128)
        def mm(i):
            n, tp, s_ = pairs[i]
            t = (ta, tb)[n]
            d = SB + 4 * (2 * t.j + tp)
            mfma16(e, d, FR + 4 * (i % 12), QF + 4 * s_, None if s_ == 0 else d)
        for i in range(12): rd(i)
        if cfg.b_pos == 0: do_issue(tk)
        mx = []
        if ta.j > 0:
            mx = maxlist(ta.j - 2) + maxlist(ta.j - 1)
        for i in range(24):
            mm(i)
            if i + 12 < 24: rd(i + 12)
            if i < len(mx): mx[i]()
            if cfg.b_pos == 1 and i == 5: do_issue(tk)
            if cfg.b_pos == 2 and i == 11: do_issue(tk)
        if cfg.b_pos == 3: do_issue(tk)

    def softmax_fin():
        maxtile(14); maxtile(15)
        V(e, f"v_mov_b32 v{t0}, v{vm}", [t0], [vm])
        e.I(f"v_permlane32_swap_b32 v{t0}, v{vm}", 'permlane', w=[t0, vm], r=[t0, vm])
        V(e, f"v_max_f32 v{vm}, v{vm}, v{t0}", [vm], [vm, t0])
        V(e, f"v_mov_b32 v{t0}, v{vm}", [t0], [vm])
        e.I(f"v_permlane16_swap_b32 v{t0}, v{vm}", 'permlane', w=[t0, vm], r=[t0, vm])
        V(e, f"v_max_f32 v{vm}, v{vm}, v{t0}", [vm], [vm, t0])
        V(e, f"v_mul_f32 v{vmc}, s{S_C}, v{vm}", [vmc], [vm])

    def expstep(sp):
        b = SB + 8 * sp
        for i in range(8):
            e.valu(f"v_fma_f32 v{b+i}, v{b+i}, s{S_C}, -v{vmc}", w=[b + i], r=[b + i, vmc])
        for i in range(8):
            e.I(f"v_exp_f32 v{b+i}, v{b+i}", 'trans', w=[b + i], r=[b + i])
        for i in range(4):
            cvtpk(e, b + i, b + 2 * i, b + 2 * i + 1)

    def explist(sp):
        b = SB + 8 * sp
        out = []
        for i in range(8):
            out.append(lambda i=i: e.valu(f"v_fma_f32 v{b+i}, v{b+i}, s{S_C}, -v{vmc}", w=[b + i], r=[b + i, vmc]))
        for i in range(8):
            out.append(lambda i=i: e.I(f"v_exp_f32 v{b+i}, v{b+i}", 'trans', w=[b + i], r=[b + i]))
        for i in range(4):
            out.append(lambda i=i: cvtpk(e, b + i, b + 2 * i, b + 2 * i + 1))
        return out

    def pv2(ta, tb, tk):
        sl = ta.sl
        last = (tb.j == 7)
        if tk == S['tQ1'] + 1:
            load_qfrags(cfg.Q1B)
        AR = [TT, [4, 5, 6, 7]]
        for n, t in enumerate((ta, tb)):
            for dt in range(4):
                V(e, f"v_add_u32 v{AR[n][dt]}, {t.addr}, v{vA[dt]}", [AR[n][dt]], [vA[dt]])
        pairs = [(q, dt) for q in range(4) for dt in range(4)]
        def rd(i):
            q, dt = pairs[i]
            n, ks = q // 2, q % 2
            for h in range(2):
                dsrtr(e, FR + 4 * (i % 12) + 2 * h, AR[n][dt], ks * 4096 + h * 2048)
        def mm(i):
            q, dt = pairs[i]
            P = SB + 8 * (2 * ta.j + q)
            first = (ta.j == 0 and q == 0)
            mfma16(e, OACC + 4 * dt, FR + 4 * (i % 12), P, None if first else OACC + 4 * dt)
            if sl == 0 and dt == 3:
                mfma16(e, LACC, ONES, P, None if first else LACC)
        for i in range(12): rd(i)
        if cfg.b_pos == 0: do_issue(tk)
        if sl == 0:
            if ta.j == 0:
                softmax_fin_deferred()
                for f in explist(0): f()
            elif not cfg.exp_ahead:
                for f in explist(2 * ta.j): f()
        for q in range(4):
            nxt = []
            if sl == 0:
                sp_next = 2 * ta.j + q + 1
                if q < 3 or (cfg.exp_ahead and sp_next < 16):
                    nxt = explist(sp_next)
            for dt in range(4):
                i = 4 * q + dt
                mm(i)
                if i + 12 < 16: rd(i + 12)
                for f in nxt[5 * dt:5 * dt + 5]: f()
            if cfg.b_pos == q + 1: do_issue(tk)
        if last:
            if sl == 0:
                e.I(f"v_rcp_f32 v{vinvl}, v{LACC}", 'trans', w=[vinvl], r=[LACC])
            for dt in range(4):
                o = OACC + 4 * dt
                for i in range(4):
                    V(e, f"v_mul_f32 v{o+i}, v{o+i}, v{vinvl}", [o + i], [o + i, vinvl])
                cvtpk(e, o, o, o + 1)
                cvtpk(e, o + 1, o + 2, o + 3)
                dsw64(e, oA[dt], o, 0)

    def softmax_fin_deferred():
        maxtile(14); maxtile(15)
        u = 27
        V(e, f"v_mov_b32 v{u}, v{vm}", [u], [vm])
        e.I(f"v_permlane32_swap_b32 v{u}, v{vm}", 'permlane', w=[u, vm], r=[u, vm])
        V(e, f"v_max_f32 v{vm}, v{vm}, v{u}", [vm], [vm, u])
        V(e, f"v_mov_b32 v{u}, v{vm}", [u], [vm])
        e.I(f"v_permlane16_swap_b32 v{u}, v{vm}", 'permlane', w=[u, vm], r=[u, vm])
        V(e, f"v_max_f32 v{vm}, v{vm}, v{u}", [vm], [vm, u])
        V(e, f"v_mul_f32 v{vmc}, s{S_C}, v{vm}", [vmc], [vm])

    for tk in range(0, S['nticks']):
        if tk > 0:
            e.comment(f"---- B tick {tk}")
            if cfg.prof:
                e.raw("    s_memtime s[80:81]")
                e.raw("    s_waitcnt lgkmcnt(0)")
                e.lgkm = []
            e.barrier()
            if cfg.prof:
                e.raw(f"    v_writelane_b32 v31, s80, {tk}")
            ts = cons.get(tk)
            fine.cur = tk
            if ts is None:
                do_issue(tk)
            elif ts[0].kind == 'k':
                qk2(ts[0], ts[1], tk)
            else:
                pv2(ts[0], ts[1], tk)
        if tk == 0: stamp(e, cfg, 3)
        lstamp2(e, cfg, 1, 0, tk, S)
        for t in needB.get(tk + 1, []):
            e.wait_tile(t)
        lstamp2(e, cfg, 1, 1, tk, S)
        if tk == 0: stamp(e, cfg, 4)
    if cfg.prof:
        e.raw("    s_memtime s[80:81]")
        e.raw("    s_waitcnt lgkmcnt(0)")
        e.raw(f"    v_writelane_b32 v31, s80, 63")
        e.raw(f"    v_writelane_b32 v31, s82, 0")
        for n in range(5):
            e.raw(f"    v_writelane_b32 v31, s{STAMPS[n]}, {56+n}")
        e.raw(f"    s_lshl_b32 s84, s{S_WG}, 3")
        e.raw(f"    s_add_u32 s84, s84, s{S_WAVE}")
        e.raw(f"    s_lshl_b32 s84, s84, 10")
        e.raw(f"    s_add_u32 s84, s84, {64<<20}")
        e.raw(f"    s_add_u32 s88, s{S_PTR+14}, s84")
        e.raw(f"    s_addc_u32 s89, s{S_PTR+15}, 0")
        e.raw(f"    s_and_b32 s89, s89, 0xffff")
        e.raw(f"    s_mov_b32 s90, 1024")
        e.raw(f"    s_mov_b32 s91, 0x20000")
        e.raw(f"    v_lshlrev_b32 v28, 2, v0")
        e.raw(f"    buffer_store_dword v31, v28, s[88:91], 0 offen")
        e.raw(f"    buffer_store_dword v29, v28, s[88:91], 0 offen offset:256")
        e.raw(f"    buffer_store_dword v30, v28, s[88:91], 0 offen offset:512")
    if cfg.inred:
        e.raw("    s_barrier")
        e.raw(f"    s_cmp_eq_u32 s{S_W}, 0")
        e.raw("    s_cbranch_scc0 L_Bwait")
        e.raw(f"    s_lshl_b32 s56, s{S_B}, 4")
        e.raw(f"    s_add_u32 s58, s{S_PTR+12}, s56")
        e.raw(f"    s_addc_u32 s59, s{S_PTR+13}, 0")
        e.raw("    v_mov_b32 v2, 0")
        e.raw("    v_mov_b32 v3, 1")
        e.raw("    s_mov_b64 s[60:61], exec")
        e.raw("    s_mov_b64 exec, 1")
        e.raw("    global_atomic_add v2, v3, s[58:59]")
        e.raw("    s_mov_b32 s62, 0")
        e.raw("L_poll:")
        e.raw("    global_load_dword v4, v2, s[58:59] sc1")
        e.raw("    s_waitcnt vmcnt(0)")
        e.raw("    v_readfirstlane_b32 s63, v4")
        e.raw("    s_add_u32 s62, s62, 1")
        e.raw("    s_nop 2")
        e.raw("    s_cmp_ge_u32 s63, 16")
        e.raw("    s_cbranch_scc1 L_polldone")
        e.raw(f"    s_cmp_ge_u32 s62, {cfg.spin_max}")
        e.raw("    s_cbranch_scc1 L_polldone")
        e.raw("    s_sleep 1")
        e.raw("    s_branch L_poll")
        e.raw("L_polldone:")
        e.raw("    s_mov_b64 exec, s[60:61]")
        e.raw("L_Bwait:")
        e.raw("    s_barrier")
        e.raw(f"    s_mov_b32 s56, s{S_W}")
        e.raw("    s_branch L_RED")
        e.nbar += 2
    else:
        e.raw("    s_endpgm")
    return e

def lstamp2(e, cfg, grp, kind, tk, S):
    if not cfg.prof or tk > 62 or tk < cfg.prof_from: return
    if cfg.h_pol is not None and grp == 0 and kind == 0: return
    e.raw("    s_memtime s[96:97]")
    e.raw("    s_waitcnt lgkmcnt(0)")
    e.lgkm = []
    reg = {(0, 0): 91, (0, 1): 92, (1, 0): 29, (1, 1): 30}[(grp, kind)]
    if cfg.h_pol is not None and grp == 0:
        reg = 95
    e.raw(f"    v_writelane_b32 v{reg}, s96, {tk}")

def gen_A(cfg, S):
    e = Em('A')
    e.skip = cfg.skipA; e.skiptile = cfg.skiptile
    e.label("L_A")
    dreg = dict(K=[90, 91, 92], V=[93, 94], WQ=[4, 5, 6], X=[88, 89])
    wA = [7, 8, 9]; xA = [10, 11, 90, 91]; t0, t1, t2, t3 = 12, 13, 14, 15
    QACC = 32; XR = 96
    FS = [16, 20, 24, 28, 80, 84]
    rest, lst = build_srds(e, cfg, 'WQ')
    issue, needA = plan(S, 'A')
    touches = {}
    if cfg.touch:
        touches.setdefault(cfg.touch_wq1, []).append(('wq1',))
        for t in S['WO']:
            if t.a == 0:
                touches.setdefault(max(cfg.touch_wq1 + 1, t.issue - cfg.touch_wo_lead), []).append(('wo', t.hd, t.sl))
    def do_issue(tk, part='all'):
        for t in issue.get(tk, []):
            early = (t.consume[0] - t.issue) <= cfg.early_lead and tk > cfg.a_end_until
            if cfg.w_end and t.kind in ('wo', 'wq1'): early = False
            if part == 'all' or (part == 'start') == early:
                dma_tile(e, t, cfg, dreg)
        if part == 'start': return
        for tc in touches.get(tk, []):
            if tc[0] == 'wq1':
                e.salu(f"s_mul_i32 s{S_T0}, s{S_B}, {40*12288}")
                e.salu(f"s_add_u32 s{S_T0}, s{S_T0}, s{S_WQCOL}")
                e.salu(f"s_add_u32 s{S_T0}, s{S_T0}, 384")
                e.I(f"buffer_load_dword v93, v94, s[{SRD_WQ}:{SRD_WQ+3}], s{S_T0} offen", 'vload', w=[93], r=[94])
            else:
                e.salu(f"s_mul_i32 s{S_T0}, s{S_B}, {40*128}")
                e.salu(f"s_add_u32 s{S_T0}, s{S_T0}, {(tc[1]*192 + 64*tc[2])*1280}")
                e.I(f"buffer_load_dword v93, v95, s[{SRD_WO}:{SRD_WO+3}], s{S_T0} offen", 'vload', w=[93], r=[95])
    stamp(e, cfg, 1)
    do_issue(0)
    stamp(e, cfg, 2)
    for k in rest: lst[k]()
    if cfg.smem_pf:
        e.salu(f"s_mul_i32 s{S_T0}, s{S_B}, 15360")
        e.salu(f"s_add_u32 s{S_T0}, s{S_T0}, s{S_OWO}")
        e.salu(f"s_mul_i32 s{S_T1}, s{S_W}, 1920")
        e.salu(f"s_add_u32 s{S_T0}, s{S_T0}, s{S_T1}")
        e.salu(f"s_add_u32 s{S_T0}, s{S_T0}, {245760 + 7680}")
        e.salu(f"s_add_u32 s14, s{S_PTR+8}, s{S_T0}")
        e.salu(f"s_addc_u32 s15, s{S_PTR+9}, 0")
        for i in range(15):
            e.raw(f"    s_load_dword s95, s[14:15], {i*128}")
    if cfg.touch:
        V(e, f"v_add_u32 v{t0}, s{S_W64}, v0", [t0], [0])
        V(e, f"v_mul_u32_u24 v{t1}, 171, v{t0}", [t1], [t0])
        V(e, f"v_lshrrev_b32 v{t1}, 9, v{t1}", [t1], [t1])
        V(e, f"v_mul_u32_u24 v{t2}, 3, v{t1}", [t2], [t1])
        V(e, f"v_sub_u32 v{t2}, v{t0}, v{t2}", [t2], [t0, t2])
        V(e, f"v_lshlrev_b32 v{t2}, 7, v{t2}", [t2], [t2])
        e.salu(f"s_mov_b32 s{S_T1}, 12288")
        V(e, f"v_mul_lo_u32 v{t1}, v{t1}, s{S_T1}", [t1], [t1])
        V(e, f"v_add_u32 v{t1}, v{t1}, v{t2}", [t1], [t1, t2])
        V(e, f"v_cmp_gt_u32 vcc, 120, v{t0}", ['vcc'], [t0])
        V(e, f"v_mov_b32 v{t2}, 0x7fffffff", [t2])
        e.valu(f"v_cndmask_b32 v94, v{t2}, v{t1}, vcc", w=[94], r=[t1, t2, 'vcc'])
        V(e, f"v_lshlrev_b32 v{t1}, 7, v{t0}", [t1], [t0])
        V(e, f"v_cmp_gt_u32 vcc, 40, v{t0}", ['vcc'], [t0])
        e.valu(f"v_cndmask_b32 v95, v{t2}, v{t1}, vcc", w=[95], r=[t1, t2, 'vcc'])
    calc_dWQ(e, dreg['WQ'], t0, t1, t2)
    V(e, f"v_lshrrev_b32 v{t0}, 5, v0", [t0], [0])
    V(e, f"v_lshlrev_b32 v{t0}, 3, v{t0}", [t0], [t0])
    V(e, f"v_bfe_u32 v{t1}, v0, 2, 2", [t1], [0])
    V(e, f"v_add_u32 v{t0}, v{t0}, v{t1}", [t0], [t0, t1])
    V(e, f"v_mul_u32_u24 v{t0}, 384, v{t0}", [t0], [t0])
    V(e, f"v_and_b32 v{t2}, 1, v0", [t2], [0])
    V(e, f"v_lshlrev_b32 v{t2}, 3, v{t2}", [t2], [t2])
    V(e, f"v_add_u32 v{t0}, v{t0}, v{t2}", [t0], [t0, t2])
    V(e, f"v_and_b32 v{t1}, 2, v{t1}", [t1], [t1])
    V(e, f"v_lshlrev_b32 v{t1}, 1, v{t1}", [t1], [t1])
    V(e, f"v_bfe_u32 v{t2}, v0, 4, 1", [t2], [0])
    V(e, f"v_lshlrev_b32 v{t2}, 1, v{t2}", [t2], [t2])
    V(e, f"v_bfe_u32 v{t3}, v0, 1, 1", [t3], [0])
    V(e, f"v_add_u32 v{t2}, v{t2}, v{t3}", [t2], [t2, t3])
    V(e, f"v_add_u32 v{t2}, s{S_DH12}, v{t2}", [t2], [t2])
    for j in range(3):
        V(e, f"v_add_u32 v{t3}, {4*j}, v{t2}", [t3], [t2])
        V(e, f"v_xor_b32 v{t3}, v{t3}, v{t1}", [t3], [t3, t1])
        V(e, f"v_lshlrev_b32 v{t3}, 4, v{t3}", [t3], [t3])
        V(e, f"v_add_u32 v{wA[j]}, v{t0}, v{t3}", [wA[j]], [t0, t3])
    e.salu(f"s_and_b32 s{S_T0}, s{S_W}, 1")
    e.salu(f"s_lshl_b32 s{S_T1}, s{S_T0}, 5")
    V(e, f"v_and_b32 v{t0}, 31, v0", [t0], [0])
    V(e, f"v_add_u32 v{t0}, s{S_T1}, v{t0}", [t0], [t0])
    V(e, f"v_bfe_u32 v{t1}, v{t0}, 1, 3", [t1], [t0])
    V(e, f"v_lshrrev_b32 v{t2}, 5, v0", [t2], [0])
    V(e, f"v_lshlrev_b32 v{t0}, 7, v{t0}", [t0], [t0])
    V(e, f"v_add_u32 v{t0}, {cfg.xbase}, v{t0}", [t0], [t0])
    for m in range(4):
        V(e, f"v_add_u32 v{t3}, {2*m}, v{t2}", [t3], [t2])
        V(e, f"v_xor_b32 v{t3}, v{t3}, v{t1}", [t3], [t3, t1])
        V(e, f"v_lshlrev_b32 v{t3}, 4, v{t3}", [t3], [t3])
        V(e, f"v_add_u32 v{xA[m]}, v{t0}, v{t3}", [xA[m]], [t0, t3])

    consA = {}
    for t in S['W0'] + S['W1t']:
        consA.setdefault(t.consume[0], []).append(t)
    woc = {}
    for t in S['WO']:
        woc.setdefault(t.consume[0], []).append(t)

    st = {'wB': False}
    wBr = [t0, t1, t2]
    def qproj2(ts, tk):
        regs = []
        for n, t in enumerate(ts):
            if t.addr + 12288 > 65536:
                if not st['wB']:
                    for j in range(3):
                        V(e, f"v_add_u32 v{wBr[j]}, 32768, v{wA[j]}", [wBr[j]], [wA[j]])
                    st['wB'] = True
                regs.append((wBr, t.addr - 32768))
            else:
                regs.append((wA, t.addr))
        def reads(q):
            n, s = q // 2, q % 2
            t = ts[n]
            if t.hd == 0:
                m = q
                xo = (t.i // 2) * 8192
                if xo >= 65536:
                    V(e, f"v_add_u32 v{t3}, 65536, v{xA[m]}", [t3], [xA[m]])
                    dsr128(e, XR + 4 * (2 * t.i + s), t3, xo - 65536)
                else:
                    dsr128(e, XR + 4 * (2 * t.i + s), xA[m], xo)
            wr, wb = regs[n]
            for j in range(3):
                for h in range(2):
                    dsrtr(e, FS[3 * (q % 2) + j] + 2 * h, wr[j], wb + s * 16 * 384 + h * 4 * 384)
        def mm(q):
            n, s = q // 2, q % 2
            t = ts[n]
            for j in range(3):
                d = QACC + 16 * j
                mfma32(e, d, FS[3 * (q % 2) + j], XR + 4 * (2 * t.i + s), None if (t.i == 0 and s == 0) else d)
        def rdx_abs(blk, m):
            xo = S['X'][blk].addr - cfg.xbase
            dst = XR + 4 * (4 * blk + m)
            if xo >= 65536:
                V(e, f"v_add_u32 v{t3}, 65536, v{xA[m]}", [t3], [xA[m]])
                dsr128(e, dst, t3, xo - 65536)
            else:
                dsr128(e, dst, xA[m], xo)
        def rdx(q):
            pass
        def rdw(q, j):
            n, s_ = q // 2, q % 2
            wr, wb = regs[n]
            for h in range(2):
                dsrtr(e, FS[3 * (q % 2) + j] + 2 * h, wr[j], wb + s_ * 16 * 384 + h * 4 * 384)
        def mm1(q, j):
            n, s_ = q // 2, q % 2
            t = ts[n]
            d = QACC + 16 * j
            mfma32(e, d, FS[3 * (q % 2) + j], XR + 4 * (2 * t.i + s_), None if (t.i == 0 and s_ == 0) else d)
        extra = []
        if ts[0].hd == 0:
            blks = [t.j for t in S['X'] if t.consume[0] == tk]
            cur = ts[0].i // 2
            if cur in blks:
                for m in range(4): rdx_abs(cur, m)
            extra = [(blk, m) for blk in blks if blk != cur for m in range(4)]
        for j in range(3): rdw(0, j)
        for j in range(3): rdw(1, j)
        do_issue(tk, 'start')
        for q in range(4):
            for j in range(3):
                mm1(q, j)
                if q + 2 < 4: rdw(q + 2, j)
                for _ in range(3):
                    if extra: rdx_abs(*extra.pop(0))
        do_issue(tk, 'end')

    def qfin(qb):
        st['wB'] = False
        e.salu(f"s_and_b32 s{S_T0}, s{S_W}, 1")
        e.salu(f"s_lshl_b32 s{S_T1}, s{S_T0}, 5")
        V(e, f"v_and_b32 v{t0}, 31, v0", [t0], [0])
        V(e, f"v_add_u32 v{t0}, s{S_T1}, v{t0}", [t0], [t0])
        V(e, f"v_bfe_u32 v{t1}, v{t0}, 1, 3", [t1], [t0])
        V(e, f"v_mul_u32_u24 v{t0}, 384, v{t0}", [t0], [t0])
        V(e, f"v_lshrrev_b32 v{t2}, 5, v0", [t2], [0])
        V(e, f"v_lshlrev_b32 v{t2}, 3, v{t2}", [t2], [t2])
        V(e, f"v_add_u32 v{t0}, v{t0}, v{t2}", [t0], [t0, t2])
        if qb:
            V(e, f"v_add_u32 v{t0}, {qb}, v{t0}", [t0], [t0])
        for j in range(3):
            for g in range(4):
                a = QACC + 16 * j + 4 * g
                cvtpk(e, a, a, a + 1)
                cvtpk(e, a + 1, a + 2, a + 3)
                e.salu(f"s_add_u32 s{S_T0}, s{S_DH12}, {4*j+g}")
                tt = t2 if g % 2 == 0 else t3
                V(e, f"v_xor_b32 v{tt}, s{S_T0}, v{t1}", [tt], [t1])
                V(e, f"v_lshl_add_u32 v{tt}, v{tt}, 4, v{t0}", [tt], [tt, t0])
                dsw64(e, tt, a, 0)

    dWO = [1, 2, 3, 88, 89]; woA = [6, 7, 8, 9]; ofA = [10, 11, 12, 13]
    OF = 32
    AS = [48, 52, 56, 60, 64, 68, 72, 76, 80, 84, 88, 92]
    OUT = XR
    def setup_out1():
        calc_dWO(e, dWO, 15, 90)
        dreg['WO'] = dWO
    def setup_out2():
        a0, a1, a2, a3 = 20, 21, 22, 23
        V(e, f"v_lshrrev_b32 v{a0}, 5, v0", [a0], [0])
        V(e, f"v_lshlrev_b32 v{a0}, 3, v{a0}", [a0], [a0])
        V(e, f"v_bfe_u32 v{a1}, v0, 2, 2", [a1], [0])
        V(e, f"v_add_u32 v{a0}, v{a0}, v{a1}", [a0], [a0, a1])
        V(e, f"v_mul_u32_u24 v{a0}, 1280, v{a0}", [a0], [a0])
        V(e, f"v_bfe_u32 v{a2}, v0, 1, 1", [a2], [0])
        V(e, f"v_lshlrev_b32 v{a2}, 3, v{a2}", [a2], [a2])
        V(e, f"v_add_u32 v{a0}, v{a0}, v{a2}", [a0], [a0, a2])
        V(e, f"v_bfe_u32 v{a2}, v0, 4, 1", [a2], [0])
        V(e, f"v_lshlrev_b32 v{a2}, 1, v{a2}", [a2], [a2])
        V(e, f"v_and_b32 v{a3}, 1, v0", [a3], [0])
        V(e, f"v_add_u32 v{a2}, v{a2}, v{a3}", [a2], [a2, a3])
        V(e, f"v_lshl_add_u32 v{a0}, v{a2}, 4, v{a0}", [a0], [a2, a0])
        e.salu(f"s_lshr_b32 s{S_T0}, s{S_W}, 1")
        e.salu(f"s_mul_i32 s{S_T0}, s{S_T0}, 10")
        for j in range(4):
            e.salu(f"s_add_u32 s{S_T1}, s{S_T0}, {j}")
            V(e, f"v_xor_b32 v{a2}, s{S_T1}, v{a1}", [a2], [a1])
            V(e, f"v_lshl_add_u32 v{woA[j]}, v{a2}, 6, v{a0}", [woA[j]], [a2, a0])
        e.salu(f"s_and_b32 s{S_T0}, s{S_W}, 1")
        e.salu(f"s_lshl_b32 s{S_T1}, s{S_T0}, 5")
        V(e, f"v_and_b32 v{a0}, 31, v0", [a0], [0])
        V(e, f"v_add_u32 v{a0}, s{S_T1}, v{a0}", [a0], [a0])
        V(e, f"v_bfe_u32 v{a1}, v{a0}, 1, 3", [a1], [a0])
        V(e, f"v_lshlrev_b32 v{a0}, 7, v{a0}", [a0], [a0])
        V(e, f"v_add_u32 v{a0}, {cfg.OB}, v{a0}", [a0], [a0])
        V(e, f"v_lshrrev_b32 v{a2}, 5, v0", [a2], [0])
        for ss in range(4):
            if cfg.wo_rot:
                e.salu(f"s_add_u32 s{S_T0}, s13, {ss}")
                e.salu(f"s_and_b32 s{S_T0}, s{S_T0}, 3")
                e.salu(f"s_lshl_b32 s{S_T0}, s{S_T0}, 1")
                V(e, f"v_add_u32 v{a3}, s{S_T0}, v{a2}", [a3], [a2])
            else:
                V(e, f"v_add_u32 v{a3}, {2*ss}, v{a2}", [a3], [a2])
            V(e, f"v_xor_b32 v{a3}, v{a3}, v{a1}", [a3], [a3, a1])
            V(e, f"v_lshl_add_u32 v{ofA[ss]}, v{a3}, 4, v{a0}", [ofA[ss]], [a3, a0])

    wost = {}
    def wo_reads(t, js, slots):
        if t.addr + 20480 <= 65536:
            regs, base = woA, t.addr
        else:
            key = t.addr
            if key not in wost:
                sets_ = [[16, 17, 18, 19], [20, 21, 22, 23], [24, 25, 26, 27], [28, 29, 30, 31]]
                idx = wost.get('n', 0)
                regs = sets_[idx % 4]
                for k2 in [k for k, v in wost.items() if k != 'n' and v is regs]:
                    del wost[k2]
                wost['n'] = idx + 1
                for j in range(4):
                    V(e, f"v_add_u32 v{regs[j]}, {t.addr}, v{woA[j]}", [regs[j]], [woA[j]])
                wost[key] = regs
            regs, base = wost[key], 0
        for j, sl in zip(js, slots):
            areg = regs[j % 4]
            for h in range(2):
                dsrtr(e, sl + 2 * h, areg, base + h * 4 * 1280 + (j // 4) * 256)

    def outproj(t, tk):
        first_ever = (t.hd == 0 and t.sl == 0 and t.a == 0)
        if t.a == 0:
            for ss in range(4):
                dsr128(e, OF + 4 * ss, ofA[ss], 0)
        wo_reads(t, list(range(10)), AS[:10])
        do_issue(tk, 'start')
        for j in range(10):
            d = OUT + 16 * j
            mfma32(e, d, AS[j], OF + 4 * t.a, None if first_ever else d)
        do_issue(tk, 'end')

    def outproj_final(ts, tk):
        sl_ = ts[0].sl
        for ss in range(4):
            dsr128(e, OF + 4 * ss, ofA[ss], 0)
        tl = sorted(ts, key=lambda t: t.a)
        sv = 14
        V(e, f"v_lshlrev_b32 v{sv}, 4, v0", [sv], [0])
        e.salu(f"s_mul_i32 s{S_T2}, s{S_W}, {20*1024}")
        sets = [AS[0:4], AS[4:8], AS[8:12]]
        def reads(j):
            for a in range(4):
                wo_reads(tl[a], [j], [sets[j % 3][a]])
        def store(j):
            d = OUT + 16 * j
            for o in range(2):
                b = d + 8 * o
                for i in range(4):
                    cvtpk(e, b + i, b + 2 * i, b + 2 * i + 1)
                e.salu(f"s_add_u32 s{S_T3}, s{S_T2}, {(2*j+o)*1024}")
                e.I(f"buffer_store_dwordx4 {vr(b,4)}, v{sv}, s[{SRD_P}:{SRD_P+3}], s{S_T3} offen{cfg.st_flags}", 'vstore', r=R(b, 4) + [sv])
        reads(0); reads(1)
        for j in range(10):
            if j + 2 < 10:
                reads(j + 2)
            d = OUT + 16 * j
            for a in range(4):
                mfma32(e, d, sets[j % 3][a], OF + 4 * a, d)
            if j >= 2:
                store(j - 2)
        store(8); store(9)

    for tk in range(0, S['nticks']):
        if tk > 0:
            e.comment(f"---- A tick {tk}")
            e.barrier()
            if tk in consA:
                qproj2(consA[tk], tk)
            elif tk == S['tQ0']:
                qfin(cfg.Q0B)
                if cfg.h_pol is not None:
                    calc_dK(e, dreg['K'], t0, t1); calc_dV(e, dreg['V'], t0, t1)
                do_issue(tk); setup_out1()
            elif tk == S['tQ1']:
                qfin(cfg.Q1B)
                do_issue(tk)
            elif tk == S['tQ1'] + 1:
                setup_out2()
                do_issue(tk)
                assert tk not in woc
            elif tk in woc:
                lst_ = woc[tk]
                if len(lst_) == 1:
                    outproj(lst_[0], tk)
                else:
                    do_issue(tk)
                    if cfg.prof:
                        e.raw("    v_lshlrev_b32 v14, 2, v0")
                        e.raw("    v_add_u32 v14, 65536, v14")
                        e.raw(f"    s_lshr_b32 s84, s{S_W1024}, 1")
                        e.raw("    v_add_u32 v14, s84, v14")
                        if cfg.h_pol is not None: e.raw("    v_mov_b32 v92, v95")
                        e.raw("    ds_write_b32 v14, v91 offset:0")
                        e.raw("    ds_write_b32 v14, v92 offset:256")
                        e.raw("    s_waitcnt lgkmcnt(0)")
                    outproj_final(lst_, tk)
                    if cfg.prof:
                        e.raw("    s_waitcnt lgkmcnt(0)")
                        e.lgkm = []
                        e.raw("    v_lshlrev_b32 v15, 2, v0")
                        e.raw("    v_add_u32 v15, 65536, v15")
                        e.raw(f"    s_lshr_b32 s84, s{S_W1024}, 1")
                        e.raw("    v_add_u32 v15, s84, v15")
                        e.raw("    s_waitcnt vmcnt(0)")
                        e.vm = []
                        e.raw("    ds_read_b32 v91, v15 offset:0")
                        e.raw("    ds_read_b32 v92, v15 offset:256")
                        e.raw("    s_waitcnt lgkmcnt(0)")
            else:
                do_issue(tk)
        if tk == 0: stamp(e, cfg, 3)
        if tk < S['nticks'] - 1: lstamp2(e, cfg, 0, 0, tk, S)
        for t in needA.get(tk + 1, []):
            e.wait_tile(t)
        if tk < S['nticks'] - 1: lstamp2(e, cfg, 0, 1, tk, S)
        if tk == 0: stamp(e, cfg, 4)
    if cfg.prof:
        e.raw("    s_memtime s[80:81]")
        e.raw("    s_waitcnt vmcnt(0)")
        e.raw("    s_memtime s[86:87]")
        e.raw("    s_memrealtime s[10:11]")
        e.raw("    s_getreg_b32 s12, hwreg(HW_REG_XCC_ID)")
        e.raw("    s_waitcnt lgkmcnt(0)")
        e.raw(f"    s_lshl_b32 s84, s{S_WG}, 3")
        e.raw(f"    s_add_u32 s84, s84, s{S_WAVE}")
        e.raw(f"    s_lshl_b32 s84, s84, 10")
        e.raw(f"    s_add_u32 s84, s84, {64<<20}")
        e.raw(f"    s_add_u32 s88, s{S_PTR+14}, s84")
        e.raw(f"    s_addc_u32 s89, s{S_PTR+15}, 0")
        e.raw(f"    s_and_b32 s89, s89, 0xffff")
        e.raw(f"    s_mov_b32 s90, 1024")
        e.raw(f"    s_mov_b32 s91, 0x20000")
        e.raw(f"    v_writelane_b32 v91, s82, 0")
        e.raw(f"    v_writelane_b32 v91, s80, 1")
        e.raw(f"    v_writelane_b32 v91, s86, 2")
        e.raw(f"    v_writelane_b32 v91, s8, 8")
        e.raw(f"    v_writelane_b32 v91, s10, 9")
        e.raw(f"    v_writelane_b32 v91, s12, 10")
        for n in range(5):
            e.raw(f"    v_writelane_b32 v91, s{STAMPS[n]}, {3+n}")
        e.raw(f"    v_lshlrev_b32 v28, 2, v0")
        e.raw(f"    buffer_store_dword v91, v28, s[88:91], 0 offen offset:256")
        e.raw(f"    buffer_store_dword v92, v28, s[88:91], 0 offen offset:512")
    if cfg.inred:
        e.raw("    s_waitcnt vmcnt(0)")
        e.raw("    s_barrier")
        e.raw("    s_barrier")
        e.raw(f"    s_cmp_eq_u32 s{S_W}, 0")
        e.raw("    s_cbranch_scc0 L_exit")
        e.raw("    s_mov_b32 s56, 4")
        e.raw("    s_branch L_RED")
        e.nbar += 2
    else:
        e.raw("    s_endpgm")
    return e

def gen_red(cfg):
    L = []
    A = lambda t: L.append("    " + t)
    L.append("L_RED:")
    A(f"s_mul_i32 s57, s{S_HP}, 5")
    A("s_add_u32 s57, s57, s56")
    A(f"s_mul_i32 s58, s{S_B}, {16*81920}")
    A(f"s_add_u32 s32, s{S_PTR+14}, s58")
    A(f"s_addc_u32 s33, s{S_PTR+15}, 0")
    A("s_and_b32 s33, s33, 0xffff")
    A(f"s_mov_b32 s34, {16*81920}")
    A("s_mov_b32 s35, 0x20000")
    A("s_lshl_b32 s59, s57, 10")
    A("v_lshlrev_b32 v2, 4, v0")
    A("v_add_u32 v2, s59, v2")
    for h in range(16):
        A(f"s_mov_b32 s{60+h}, {h*81920}")
    for h in range(16):
        A(f"buffer_load_dwordx4 v[{8+4*h}:{11+4*h}], v2, s[32:35], s{60+h} offen sc1")
    A("s_mul_hi_u32 s40, s57, 214748365")
    A("s_mul_i32 s41, s40, 20")
    A("s_sub_u32 s41, s57, s41")
    A("s_and_b32 s42, s40, 1")
    A("s_lshr_b32 s43, s40, 1")
    A("s_mul_i32 s43, s43, 320")
    A("s_lshl_b32 s41, s41, 4")
    A("s_add_u32 s43, s43, s41")
    A("s_lshl_b32 s42, s42, 5")
    A(f"s_lshl_b32 s44, s{S_B}, 6")
    A("s_add_u32 s42, s42, s44")
    A("s_mul_i32 s42, s42, 1280")
    A("s_lshl_b32 s43, s43, 1")
    A("s_add_u32 s42, s42, s43")
    A("v_and_b32 v3, 31, v0")
    A("v_mul_u32_u24 v3, 1280, v3")
    A("v_lshrrev_b32 v4, 5, v0")
    A("v_lshlrev_b32 v4, 4, v4")
    A("v_add_u32 v3, v3, v4")
    A(f"s_mov_b32 s44, s{S_PTR+10}")
    A(f"s_and_b32 s45, s{S_PTR+11}, 0xffff")
    A(f"s_mov_b32 s46, {16*64*640*2}")
    A("s_mov_b32 s47, 0x20000")
    for h in range(16):
        A(f"s_waitcnt vmcnt({15-h})")
        for i in range(4):
            src = 8 + 4 * h + i
            if h == 0:
                A(f"v_lshlrev_b32 v{72+2*i}, 16, v{src}")
                A(f"v_and_b32 v{73+2*i}, 0xffff0000, v{src}")
            else:
                A(f"v_lshlrev_b32 v5, 16, v{src}")
                A(f"v_and_b32 v6, 0xffff0000, v{src}")
                A(f"v_add_f32 v{72+2*i}, v{72+2*i}, v5")
                A(f"v_add_f32 v{73+2*i}, v{73+2*i}, v6")
    for i in range(4):
        A(f"v_cvt_pk_bf16_f32 v{80+i}, v{72+2*i}, v{73+2*i}")
    A("buffer_store_dwordx4 v[80:83], v3, s[44:47], s42 offen")
    A("s_endpgm")
    return L

def generate(cfg, fn):
    S = build_schedule(cfg)
    P = prologue(cfg); A = gen_A(cfg, S); B = gen_B(cfg, S)
    assert A.nbar == B.nbar, (A.nbar, B.nbar)
    L = []
    if cfg.inred:
        L.append(f"; @launch grid=(256,1,1) block=(512,1,1) lds=163840")
    else:
        L.append(f"; @launch kernel={KN} grid=(256,1,1) block=(512,1,1) lds=163840")
        L.append(f"; @launch kernel={KN2} grid=(320,1,1) block=(256,1,1) lds=0")
    L.append('.amdgcn_target "amdgcn-amd-amdhsa--gfx950"')
    L.append(".text")
    L.append(f".globl {KN}")
    L.append(".p2align 8")
    L.append(f".type {KN},@function")
    L.append(f"{KN}:")
    L += P.lines + A.lines + B.lines
    if cfg.inred:
        L += gen_red(cfg)
    L.append("L_exit:")
    L.append("    s_endpgm")
    if not cfg.inred:
        L += gen_reduce()
    L.append('.section .rodata,"a"')
    L.append(".p2align 6")
    L += kd(KN, 256)
    if not cfg.inred:
        L.append(".p2align 6")
        L += kd(KN2, 88)
    open(fn, "w").write("\n".join(L) + "\n")
    print("ticks", S['nticks'], "A instr", A.ninstr, A.stats, "B instr", B.ninstr, B.stats, file=sys.stderr)
    return S

if __name__ == "__main__":
    cfg = Cfg()
    cfg.prof_lds = 72 * 1024 if False else 79 * 1024
    cfg.prof_from = 12
    cfg.prof_t = {0: (14, 15), 1: (28, 29)}
    cfg.final_addr = [136 * 1024, 0, 20 * 1024, 40 * 1024]
    if "--prof" in sys.argv: cfg.prof = True
    for a in sys.argv[2:]:
        if "=" in a:
            k, v = a.split("=", 1)
            setattr(cfg, k, eval(v))
    S = generate(cfg, sys.argv[1] if len(sys.argv) > 1 else "k4.s")
    if "-v" in sys.argv:
        for t in S['allt']:
            print(t.name, hex(t.addr), "issue", t.issue, "by", t.by, "consume", t.consume)
```

```python
import sys, struct
from emit import Em, vr, sr, R

KN = "standalone__gqa_block_cached__near_ridge_kernel"
KN2 = "gqa_reduce_kernel"

def f32(x):
    return struct.unpack("<I", struct.pack("<f", x))[0]

class Cfg:
    dbg = None
    nt_kv = True
    w0_slots = 5
    w0_first = 2
    w0_lead = 4
    x_slots = 3
    xbase = 64 * 1024
    x_issue = [0, 0, 0, 3, 5, 7, 9, 11, 13, 15]
    kpre = 6
    kpre_ticks = [2, 4, 6, 8, 10, 12, 14, 16]
    W1 = 24576
    WSZ = 65536
    HB = 88 * 1024
    HSZ = 72 * 1024
    k_lead = 99
    v_lead = 99
    wo_lead = 99
    final_addr = [136 * 1024, 64 * 1024, 88 * 1024, 24 * 1024]
    rot = True
    touch_wq1 = 8
    touch_wo_lead = 10
    touch = True
    prof = False

QO = 0

S_WG = 2; S_WAVE = 3; S_W = 4; S_B = 5; S_HP = 6; S_ROT = 7
S_PTR = 16
SRD_K = 32; SRD_V = 36; SRD_WQ = 40; SRD_X = 44; SRD_WO = 48; SRD_P = 52
S_W3072 = 60; S_W1024 = 61; S_W2048 = 62; S_W5120 = 63; S_WQCOL = 64; S_C = 65
S_T0 = 66; S_T1 = 67; S_T2 = 68; S_T3 = 69; S_KT = 70; S_W6144 = 71; S_DH12 = 72; S_W64 = 73

class Tile:
    def __init__(s, kind, name, addr, size, **kw):
        s.kind = kind; s.name = name; s.addr = addr; s.size = size
        s.consume = []
        s.issue = None; s.by = None
        s.__dict__.update(kw)
    def __repr__(s): return s.name

def build_schedule(cfg):
    T0 = 1
    HB, HSZ, W1 = cfg.HB, cfg.HSZ, cfg.W1
    X = []
    for j in range(10):
        t = Tile('x', f"x_{j}", cfg.xbase + (j % cfg.x_slots) * 8192, 8192, j=j)
        t.consume = [T0 + 2 * j, T0 + 2 * j + 1]; t.by = 'A'
        t.earliest = cfg.x_issue[j]
        X.append(t)
    W0 = []
    for i in range(20):
        t = Tile('w0', f"w0_{i}", (i % cfg.w0_slots) * 12288, 12288, hd=0, i=i)
        t.consume = [T0 + i]; t.by = 'B'
        t.earliest = max(1, T0 + i - cfg.w0_lead) if i >= cfg.w0_first else 0
        W0.append(t)
    tQ0 = T0 + 20
    tK0 = tQ0 + 1
    H = []
    pos = 0
    tk = tK0
    info = {}
    for hd in range(2):
        info[('k', hd)] = tk
        for j in range(16):
            assert pos + 12288 <= HSZ
            t = Tile('k', f"k{hd}_{j}", HB + pos, 12288, hd=hd, j=j)
            pos = (pos + 12288) % HSZ
            t.consume = [tk]; tk += 1; t.by = 'B'
            t.earliest = max(0, t.consume[0] - cfg.k_lead)
            H.append(t)
        info[('v', hd)] = tk
        for sl in range(3):
            for j in range(8):
                assert pos + 8192 <= HSZ
                t = Tile('v', f"v{hd}_{sl}_{j}", HB + pos, 8192, hd=hd, sl=sl, j=j)
                pos = (pos + 8192) % HSZ
                t.consume = [tk]; tk += 1; t.by = 'B'
                t.earliest = max(0, t.consume[0] - cfg.v_lead)
                H.append(t)
    for n, t in enumerate(H[:cfg.kpre]):
        t.by = 'A'
        t.earliest = cfg.kpre_ticks[n]
    tEnd = tk
    W1t = []
    tq1 = tK0 + 2
    nq1 = cfg.WSZ // 12288
    for i in range(20):
        t = Tile('wq1', f"wq1_{i}", W1 + (i % nq1) * 12288, 12288, hd=1, i=i)
        t.consume = [tq1 + i]; t.by = 'A'
        t.earliest = 0
        W1t.append(t)
    tQ1 = tq1 + 20
    v0 = info[('v', 0)]
    assert tQ1 < v0 + 7, (tQ1, v0)
    WO = []
    slot = 0
    nwo = cfg.WSZ // 20480
    for hd in range(2):
        vstart = info[('v', hd)]
        for sl in range(3):
            tO = vstart + 8 * sl + 7
            for a in range(4):
                final = (hd == 1 and sl == 2)
                if final:
                    addr = cfg.final_addr[a]
                    t = Tile('wo', f"wo{hd}_{sl}_{a}", addr, 20480, hd=hd, sl=sl, a=a)
                    t.consume = [tO + 1]
                else:
                    t = Tile('wo', f"wo{hd}_{sl}_{a}", W1 + (slot % nwo) * 20480, 20480, hd=hd, sl=sl, a=a)
                    slot += 1
                    t.consume = [tO + 1 + 2 * a, tO + 2 + 2 * a]
                t.by = 'A'
                t.earliest = max(tQ1, t.consume[0] - cfg.wo_lead)
                WO.append(t)
    nticks = tEnd + 1
    free_at = [0] * 160
    streams = [X, W0, H, W1t, WO]
    allt = sorted([t for s in streams for t in s], key=lambda t: (t.consume[0], t.name))
    last_issue = {}
    for t in allt:
        lo = t.addr // 1024; hi = (t.addr + t.size) // 1024
        e = max(free_at[lo:hi])
        key = t.kind if t.kind in ('x', 'w0', 'wq1', 'wo') else 'h'
        if not getattr(t, 'noorder', False):
            e = max(e, last_issue.get(key, 0))
        e = max(e, t.earliest)
        t.issue = e
        last_issue[key] = e
        assert t.issue < t.consume[0], (t, t.issue, t.consume)
        for k in range(lo, hi):
            free_at[k] = t.consume[-1] + 1
        if t.kind not in ('w0',) and lo < 24:
            raise Exception("overlaps QO " + t.name)
    for t in W0:
        if t.addr < 24576:
            assert t.consume[-1] < tQ0
    return dict(nticks=nticks, X=X, W0=W0, H=H, W1t=W1t, WO=WO, tQ0=tQ0, tQ1=tQ1, info=info, tEnd=tEnd, allt=allt)

def dma_tile(e, t, cfg, dreg):
    nt = getattr(cfg, "kv_flags", " nt") if cfg.nt_kv else ""
    if t.kind == 'k':
        e.salu(f"s_add_u32 m0, s{S_W3072}, {t.addr}", w=['m0'])
        e.salu(f"s_mov_b32 s{S_T0}, {t.hd*196608 + t.j*12288}", w=[f's{S_T0}'])
        for p in range(3):
            off = f" offset:{1024*p}" if p else ""
            e.I(f"buffer_load_dwordx4 v{dreg['K'][p]}, s[{SRD_K}:{SRD_K+3}], s{S_T0} offen{off}{nt} lds", 'dma', r=[dreg['K'][p], 'm0'], tag=t)
    elif t.kind == 'v':
        e.salu(f"s_add_u32 m0, s{S_W2048}, {t.addr}", w=['m0'])
        if getattr(cfg, 'v_rot', False):
            e.salu(f"s_add_u32 s{S_T0}, s{(14, 15, 98)[t.sl]}, {t.hd*196608 + t.j*64*384}", w=[f's{S_T0}'])
        else:
            e.salu(f"s_mov_b32 s{S_T0}, {t.hd*196608 + t.j*64*384 + t.sl*128}", w=[f's{S_T0}'])
        for p in range(2):
            off = f" offset:{1024*p}" if p else ""
            e.I(f"buffer_load_dwordx4 v{dreg['V'][p]}, s[{SRD_V}:{SRD_V+3}], s{S_T0} offen{off}{nt} lds", 'dma', r=[dreg['V'][p], 'm0'], tag=t)
    elif t.kind in ('w0', 'wq1'):
        if cfg.rot:
            e.salu(f"s_add_u32 s{S_KT}, s{S_ROT}, {t.i}")
            e.salu(f"s_sub_u32 s{S_T1}, s{S_KT}, 20")
            e.salu(f"s_cmp_ge_u32 s{S_KT}, 20")
            e.salu(f"s_cselect_b32 s{S_KT}, s{S_T1}, s{S_KT}")
            e.salu(f"s_mul_i32 s{S_T0}, s{S_KT}, {32*12288}")
            e.salu(f"s_add_u32 s{S_T0}, s{S_T0}, s{S_WQCOL}")
            if t.hd:
                e.salu(f"s_add_u32 s{S_T0}, s{S_T0}, 384")
        else:
            e.salu(f"s_add_u32 s{S_T0}, s{S_WQCOL}, {t.i*32*12288 + t.hd*384}")
        e.salu(f"s_add_u32 m0, s{S_W3072}, {t.addr}", w=['m0'])
        for p in range(3):
            off = f" offset:{1024*p}" if p else ""
            e.I(f"buffer_load_dwordx4 v{dreg['WQ'][p]}, s[{SRD_WQ}:{SRD_WQ+3}], s{S_T0} offen{off}{getattr(cfg,'nt_wq','')} lds", 'dma', r=[dreg['WQ'][p], 'm0'], tag=t)
    elif t.kind == 'x':
        if cfg.rot:
            e.salu(f"s_add_u32 s{S_KT}, s{S_ROT}, {2*t.j}")
            e.salu(f"s_sub_u32 s{S_T1}, s{S_KT}, 20")
            e.salu(f"s_cmp_ge_u32 s{S_KT}, 20")
            e.salu(f"s_cselect_b32 s{S_KT}, s{S_T1}, s{S_KT}")
            e.salu(f"s_lshl_b32 s{S_T0}, s{S_KT}, 6")
        else:
            e.salu(f"s_mov_b32 s{S_T0}, {t.j*128}")
        e.salu(f"s_add_u32 m0, s{S_W2048}, {t.addr}", w=['m0'])
        for p in range(2):
            off = f" offset:{1024*p}" if p else ""
            e.I(f"buffer_load_dwordx4 v{dreg['X'][p]}, s[{SRD_X}:{SRD_X+3}], s{S_T0} offen{off}{getattr(cfg,'nt_x','')} lds", 'dma', r=[dreg['X'][p], 'm0'], tag=t)
    elif t.kind == 'wo':
        e.salu(f"s_add_u32 m0, s{S_W5120}, {t.addr}", w=['m0'])
        if getattr(cfg, 'wo_rot', False):
            e.salu(f"s_add_u32 s{S_T0}, s13, {t.a}")
            e.salu(f"s_and_b32 s{S_T0}, s{S_T0}, 3")
            e.salu(f"s_mul_i32 s{S_T0}, s{S_T0}, 20480")
            if getattr(cfg, 'v_rot', False):
                e.salu(f"s_mul_i32 s{S_T1}, s{(14, 15, 98)[t.sl]}, 640")
                e.salu(f"s_add_u32 s{S_T0}, s{S_T0}, s{S_T1}")
                if t.hd: e.salu(f"s_add_u32 s{S_T0}, s{S_T0}, {t.hd*192*1280}")
            else:
                e.salu(f"s_add_u32 s{S_T0}, s{S_T0}, {(t.hd*192 + 64*t.sl)*1280}")
        else:
            e.salu(f"s_mov_b32 s{S_T0}, {(t.hd*192 + 64*t.sl + 16*t.a)*1280}")
        for p in range(4):
            off = f" offset:{1024*p}" if p else ""
            e.I(f"buffer_load_dwordx4 v{dreg['WO'][p]}, s[{SRD_WO}:{SRD_WO+3}], s{S_T0} offen{off}{getattr(cfg,'nt_wo','')} lds", 'dma', r=[dreg['WO'][p], 'm0'], tag=t)
        e.salu(f"s_add_u32 m0, s{S_W5120}, {t.addr + 4096}", w=['m0'])
        e.I(f"buffer_load_dwordx4 v{dreg['WO'][4]}, s[{SRD_WO}:{SRD_WO+3}], s{S_T0} offen{getattr(cfg,'nt_wo','')} lds", 'dma', r=[dreg['WO'][4], 'm0'], tag=t)

def V(e, text, w, r=()):
    e.valu(text, w=list(w), r=list(r))

def calc_dK(e, dst, t0, t1):
    e.salu(f"s_lshl_b32 s{S_T0}, s{S_W}, 2")
    for p in range(3):
        V(e, f"v_add_u32 v{t0}, {64*p}, v0", [t0], [0])
        V(e, f"v_mul_u32_u24 v{t0}, 171, v{t0}", [t0], [t0])
        V(e, f"v_lshrrev_b32 v{t0}, 13, v{t0}", [t0], [t0])
        V(e, f"v_add_u32 v{t0}, s{S_T0}, v{t0}", [t0], [t0])
        V(e, f"v_and_b32 v{t0}, 7, v{t0}", [t0], [t0])
        V(e, f"v_xor_b32 v{t0}, v{t0}, v0", [t0], [t0, 0])
        V(e, f"v_lshlrev_b32 v{t0}, 4, v{t0}", [t0], [t0])
        V(e, f"v_add_u32 v{dst[p]}, s{S_W3072}, v{t0}", [dst[p]], [t0])

def calc_dWQ(e, dst, t0, t1, t2):
    e.salu(f"s_mul_i32 s{S_T0}, s{S_W}, {8*12288}")
    e.salu(f"s_mov_b32 s{S_T1}, 12288")
    for p in range(3):
        V(e, f"v_add_u32 v{t0}, {64*p}, v0", [t0], [0])
        V(e, f"v_mul_u32_u24 v{t1}, 171, v{t0}", [t1], [t0])
        V(e, f"v_lshrrev_b32 v{t1}, 12, v{t1}", [t1], [t1])
        V(e, f"v_mul_u32_u24 v{t2}, 24, v{t1}", [t2], [t1])
        V(e, f"v_sub_u32 v{t0}, v{t0}, v{t2}", [t0], [t0, t2])
        V(e, f"v_and_b32 v{t2}, 2, v{t1}", [t2], [t1])
        V(e, f"v_lshlrev_b32 v{t2}, 1, v{t2}", [t2], [t2])
        V(e, f"v_xor_b32 v{t0}, v{t0}, v{t2}", [t0], [t0, t2])
        V(e, f"v_lshlrev_b32 v{t0}, 4, v{t0}", [t0], [t0])
        V(e, f"v_mul_lo_u32 v{t1}, v{t1}, s{S_T1}", [t1], [t1])
        V(e, f"v_add_u32 v{t0}, v{t0}, v{t1}", [t0], [t0, t1])
        V(e, f"v_add_u32 v{t0}, s{S_T0}, v{t0}", [t0], [t0])
        if p:
            V(e, f"v_subrev_u32 v{dst[p]}, {1024*p}, v{t0}", [dst[p]], [t0])
        else:
            V(e, f"v_mov_b32 v{dst[p]}, v{t0}", [dst[p]], [t0])

def calc_dX(e, dst, t0, t1):
    e.salu(f"s_mul_i32 s{S_T0}, s{S_W}, {16*1280}")
    for p in range(2):
        V(e, f"v_lshrrev_b32 v{t0}, 3, v0", [t0], [0])
        V(e, f"v_lshrrev_b32 v{t1}, 4, v0", [t1], [0])
        if p:
            V(e, f"v_add_u32 v{t1}, 4, v{t1}", [t1], [t1])
        V(e, f"v_xor_b32 v{t1}, v{t1}, v0", [t1], [t1, 0])
        V(e, f"v_and_b32 v{t1}, 7, v{t1}", [t1], [t1])
        V(e, f"v_lshlrev_b32 v{t1}, 4, v{t1}", [t1], [t1])
        V(e, f"v_mul_u32_u24 v{t0}, 1280, v{t0}", [t0], [t0])
        V(e, f"v_add_u32 v{t0}, v{t0}, v{t1}", [t0], [t0, t1])
        if p:
            V(e, f"v_add_u32 v{t0}, {8*1280 - 1024}, v{t0}", [t0], [t0])
        V(e, f"v_add_u32 v{dst[p]}, s{S_T0}, v{t0}", [dst[p]], [t0])

def calc_dV(e, dst, t0, t1):
    e.salu(f"s_mul_i32 s{S_T0}, s{S_W}, {16*384}")
    V(e, f"v_lshrrev_b32 v{t0}, 3, v0", [t0], [0])
    V(e, f"v_and_b32 v{t1}, 6, v{t0}", [t1], [t0])
    V(e, f"v_xor_b32 v{t1}, v{t1}, v0", [t1], [t1, 0])
    V(e, f"v_and_b32 v{t1}, 7, v{t1}", [t1], [t1])
    V(e, f"v_lshlrev_b32 v{t1}, 4, v{t1}", [t1], [t1])
    V(e, f"v_mul_u32_u24 v{t0}, 384, v{t0}", [t0], [t0])
    V(e, f"v_add_u32 v{t0}, v{t0}, v{t1}", [t0], [t0, t1])
    V(e, f"v_add_u32 v{dst[0]}, s{S_T0}, v{t0}", [dst[0]], [t0])
    V(e, f"v_add_u32 v{dst[1]}, {8*384 - 1024}, v{dst[0]}", [dst[1]], [dst[0]])

def calc_dWO(e, dst, t0, t1):
    e.salu(f"s_mul_i32 s{S_T0}, s{S_W}, 320")
    for p in range(5):
        V(e, f"v_add_u32 v{t0}, {64*p}, v0", [t0], [0])
        V(e, f"v_add_u32 v{t0}, s{S_T0}, v{t0}", [t0], [t0])
        V(e, f"v_mul_u32_u24 v{t0}, 3277, v{t0}", [t0], [t0])
        V(e, f"v_lshrrev_b32 v{t0}, 18, v{t0}", [t0], [t0])
        V(e, f"v_and_b32 v{t0}, 3, v{t0}", [t0], [t0])
        V(e, f"v_lshlrev_b32 v{t0}, 2, v{t0}", [t0], [t0])
        V(e, f"v_xor_b32 v{t0}, v{t0}, v0", [t0], [t0, 0])
        V(e, f"v_lshlrev_b32 v{t0}, 4, v{t0}", [t0], [t0])
        V(e, f"v_add_u32 v{dst[p]}, s{S_W5120}, v{t0}", [dst[p]], [t0])
        if p == 4:
            V(e, f"v_add_u32 v{dst[p]}, 4096, v{dst[p]}", [dst[p]], [dst[p]])

def mfma16(e, d, a, b, c):
    cs = "0" if c is None else vr(c, 4)
    e.I(f"v_mfma_f32_16x16x32_bf16 {vr(d,4)}, {vr(a,4)}, {vr(b,4)}, {cs}", 'mfma4', w=R(d, 4), r=R(a, 4) + R(b, 4), srcc=([] if c is None else R(c, 4)))
def mfma32(e, d, a, b, c):
    cs = "0" if c is None else vr(c, 16)
    e.I(f"v_mfma_f32_32x32x16_bf16 {vr(d,16)}, {vr(a,4)}, {vr(b,4)}, {cs}", 'mfma8', w=R(d, 16), r=R(a, 4) + R(b, 4), srcc=([] if c is None else R(c, 16)))
def dsr128(e, d, a, off):
    assert 0 <= off < 65536, off
    e.I(f"ds_read_b128 {vr(d,4)}, v{a} offset:{off}", 'ds_read', w=R(d, 4), r=[a])
def dsrtr(e, d, a, off):
    assert 0 <= off < 65536, off
    e.I(f"ds_read_b64_tr_b16 {vr(d,2)}, v{a} offset:{off}", 'ds_read', w=R(d, 2), r=[a])
def dsw64(e, a, d, off):
    assert 0 <= off < 65536, off
    e.I(f"ds_write_b64 v{a}, {vr(d,2)} offset:{off}", 'ds_write', r=[a, d, d + 1])
def cvtpk(e, d, a, b):
    e.valu(f"v_cvt_pk_bf16_f32 v{d}, v{a}, v{b}", w=[d], r=[a, b])

def gen_B(cfg, S):
    e = Em('B')
    dreg = dict(K=[1, 2, 3], WQ=[4, 5, 6], V=[8, 9])
    kA = [10, 11]; vA = [12, 13, 14, 15]; oA = [16, 17, 18, 19]; TT = [20, 21, 22, 23]
    vm, vmc, vinvl, t0, t1, t2 = 24, 25, 26, 27, 28, 29
    ONES = 32; LACC = 36; OACC = 40; QF = 56; FR = 80; SB = 128
    e.label("L_B")
    calc_dWQ(e, dreg['WQ'], t0, t1, t2)
    issue = {}
    for t in S['allt']:
        if t.by == 'B':
            issue.setdefault(t.issue, []).append(t)
    cons = {}
    for t in S['H']:
        cons[t.consume[0]] = t
    needB = {}
    for t in S['allt']:
        if t.by == 'B':
            needB.setdefault(t.consume[0], []).append(t)
    def do_issue(tk):
        for t in issue.get(tk, []):
            dma_tile(e, t, cfg, dreg)
    stamp(e, cfg, 1)
    do_issue(0)
    stamp(e, cfg, 2)
    calc_dK(e, dreg['K'], t0, t1)
    calc_dV(e, dreg['V'], t0, t1)
    V(e, f"v_and_b32 v{t0}, 15, v0", [t0], [0])
    V(e, f"v_lshrrev_b32 v{t1}, 1, v{t0}", [t1], [t0])
    V(e, f"v_lshrrev_b32 v{t2}, 4, v0", [t2], [0])
    V(e, f"v_xor_b32 v{t2}, v{t2}, v{t1}", [t2], [t1, t2])
    V(e, f"v_lshlrev_b32 v{t2}, 4, v{t2}", [t2], [t2])
    V(e, f"v_mul_u32_u24 v{kA[0]}, 384, v{t0}", [kA[0]], [t0])
    V(e, f"v_add_u32 v{kA[0]}, v{kA[0]}, v{t2}", [kA[0]], [kA[0], t2])
    V(e, f"v_xor_b32 v{t2}, 64, v{t2}", [t2], [t2])
    V(e, f"v_mul_u32_u24 v{kA[1]}, 384, v{t0}", [kA[1]], [t0])
    V(e, f"v_add_u32 v{kA[1]}, v{kA[1]}, v{t2}", [kA[1]], [kA[1], t2])
    V(e, f"v_mul_u32_u24 v{t2}, 384, v{t0}", [t2], [t0])
    V(e, f"v_add_u32 v{t2}, s{S_W6144}, v{t2}", [t2], [t2])
    V(e, f"v_lshrrev_b32 v{vm}, 4, v0", [vm], [0])
    V(e, f"v_and_b32 v{vmc}, 1, v{vm}", [vmc], [vm])
    V(e, f"v_lshlrev_b32 v{vmc}, 3, v{vmc}", [vmc], [vmc])
    V(e, f"v_add_u32 v{t2}, v{t2}, v{vmc}", [t2], [t2, vmc])
    V(e, f"v_lshrrev_b32 v{vm}, 1, v{vm}", [vm], [vm])
    for dt in range(4):
        V(e, f"v_add_u32 v{vmc}, {2*dt}, v{vm}", [vmc], [vm])
        V(e, f"v_xor_b32 v{vmc}, v{vmc}, v{t1}", [vmc], [vmc, t1])
        V(e, f"v_lshlrev_b32 v{vmc}, 4, v{vmc}", [vmc], [vmc])
        V(e, f"v_add_u32 v{oA[dt]}, v{t2}, v{vmc}", [oA[dt]], [t2, vmc])
    V(e, f"v_lshrrev_b32 v{t0}, 2, v0", [t0], [0])
    V(e, f"v_and_b32 v{t1}, 6, v{t0}", [t1], [t0])
    V(e, f"v_lshlrev_b32 v{t0}, 7, v{t0}", [t0], [t0])
    V(e, f"v_and_b32 v{t2}, 3, v0", [t2], [0])
    V(e, f"v_lshlrev_b32 v{t2}, 3, v{t2}", [t2], [t2])
    V(e, f"v_add_u32 v{t0}, v{t0}, v{t2}", [t0], [t0, t2])
    for dt in range(4):
        V(e, f"v_xor_b32 v{t2}, {2*dt}, v{t1}", [t2], [t1])
        V(e, f"v_lshlrev_b32 v{t2}, 4, v{t2}", [t2], [t2])
        V(e, f"v_add_u32 v{vA[dt]}, v{t0}, v{t2}", [vA[dt]], [t0, t2])
    for i in range(4):
        V(e, f"v_mov_b32 v{ONES+i}, 0x3f803f80", [ONES + i])

    def load_qfrags():
        V(e, f"v_add_u32 v{TT[0]}, s{S_W6144}, v{kA[0]}", [TT[0]], [kA[0]])
        V(e, f"v_add_u32 v{TT[1]}, s{S_W6144}, v{kA[1]}", [TT[1]], [kA[1]])
        for s in range(6):
            dsr128(e, QF + 4 * s, TT[s % 2], QO + (s // 2) * 128)

    def maxtile(jt):
        b = SB + 8 * jt
        if jt == 0:
            e.valu(f"v_max3_f32 v{vm}, v{b}, v{b+1}, v{b+2}", w=[vm], r=[b, b + 1, b + 2])
            e.valu(f"v_max3_f32 v{vm}, v{vm}, v{b+3}, v{b+4}", w=[vm], r=[vm, b + 3, b + 4])
            e.valu(f"v_max3_f32 v{vm}, v{vm}, v{b+5}, v{b+6}", w=[vm], r=[vm, b + 5, b + 6])
            e.valu(f"v_max_f32 v{vm}, v{vm}, v{b+7}", w=[vm], r=[vm, b + 7])
        else:
            for i in range(4):
                e.valu(f"v_max3_f32 v{vm}, v{vm}, v{b+2*i}, v{b+2*i+1}", w=[vm], r=[vm, b + 2 * i, b + 2 * i + 1])

    def qk(t, tk):
        win = t.addr
        rel = 0
        if t.j == 0:
            load_qfrags() if t.hd == 0 else None
        V(e, f"v_add_u32 v{TT[2]}, {win}, v{kA[0]}", [TT[2]], [kA[0]])
        V(e, f"v_add_u32 v{TT[3]}, {win}, v{kA[1]}", [TT[3]], [kA[1]])
        for tp in range(2):
            for s in range(6):
                dsr128(e, FR + 4 * (6 * tp + s), TT[2 + s % 2], rel + tp * 6144 + (s // 2) * 128)
        do_issue(tk)
        if t.j > 0:
            maxtile(t.j - 1)
        for tp in range(2):
            d = SB + 4 * (2 * t.j + tp)
            for s in range(6):
                mfma16(e, d, FR + 4 * (6 * tp + s), QF + 4 * s, None if s == 0 else d)

    def softmax_fin():
        maxtile(15)
        V(e, f"v_mov_b32 v{t0}, v{vm}", [t0], [vm])
        e.I(f"v_permlane32_swap_b32 v{t0}, v{vm}", 'permlane', w=[t0, vm], r=[t0, vm])
        V(e, f"v_max_f32 v{vm}, v{vm}, v{t0}", [vm], [vm, t0])
        V(e, f"v_mov_b32 v{t0}, v{vm}", [t0], [vm])
        e.I(f"v_permlane16_swap_b32 v{t0}, v{vm}", 'permlane', w=[t0, vm], r=[t0, vm])
        V(e, f"v_max_f32 v{vm}, v{vm}, v{t0}", [vm], [vm, t0])
        V(e, f"v_mul_f32 v{vmc}, s{S_C}, v{vm}", [vmc], [vm])

    def expstep(sp):
        b = SB + 8 * sp
        for i in range(8):
            e.valu(f"v_fma_f32 v{b+i}, v{b+i}, s{S_C}, -v{vmc}", w=[b + i], r=[b + i, vmc])
        for i in range(8):
            e.I(f"v_exp_f32 v{b+i}, v{b+i}", 'trans', w=[b + i], r=[b + i])
        for i in range(4):
            cvtpk(e, b + i, b + 2 * i, b + 2 * i + 1)

    def pv(t, tk):
        win = t.addr
        rel = 0
        if t.sl == 0 and t.j == 0:
            softmax_fin()
        if t.sl == 0 and t.j == 7 and t.hd == 0:
            load_qfrags()
        for dt in range(4):
            V(e, f"v_add_u32 v{TT[dt]}, {win}, v{vA[dt]}", [TT[dt]], [vA[dt]])
        for ks in range(2):
            for dt in range(4):
                for h in range(2):
                    dsrtr(e, FR + 16 * ks + 4 * dt + 2 * h, TT[dt], rel + ks * 4096 + h * 2048)
        do_issue(tk)
        if t.sl == 0:
            expstep(2 * t.j); expstep(2 * t.j + 1)
        for ks in range(2):
            sp = 2 * t.j + ks
            P = SB + 8 * sp
            first = (t.j == 0 and ks == 0)
            if t.sl == 0:
                mfma16(e, LACC, ONES, P, None if first else LACC)
            for dt in range(4):
                mfma16(e, OACC + 4 * dt, FR + 16 * ks + 4 * dt, P, None if first else OACC + 4 * dt)
        if t.j == 7:
            if t.sl == 0:
                e.I(f"v_rcp_f32 v{vinvl}, v{LACC}", 'trans', w=[vinvl], r=[LACC])
            for dt in range(4):
                o = OACC + 4 * dt
                for i in range(4):
                    V(e, f"v_mul_f32 v{o+i}, v{o+i}, v{vinvl}", [o + i], [o + i, vinvl])
                cvtpk(e, o, o, o + 1)
                cvtpk(e, o + 1, o + 2, o + 3)
                dsw64(e, oA[dt], o, QO + 128 * t.sl)

    for tk in range(0, S['nticks']):
        if tk > 0:
            e.comment(f"---- B tick {tk}")
            if cfg.prof:
                e.raw("    s_memtime s[80:81]")
                e.raw("    s_waitcnt lgkmcnt(0)")
                e.lgkm = []
            e.barrier()
            if cfg.prof:
                e.raw(f"    v_writelane_b32 v{30 + tk // 64}, s80, {tk % 64}")
            t = cons.get(tk)
            if t is None:
                do_issue(tk)
            elif t.kind == 'k':
                qk(t, tk)
            else:
                pv(t, tk)
        if tk == 0: stamp(e, cfg, 3)
        lstamp(e, cfg, 1, 0, tk, 28, 29)
        for t in needB.get(tk + 1, []):
            e.wait_tile(t)
        lstamp(e, cfg, 1, 1, tk, 28, 29)
        if tk == 0: stamp(e, cfg, 4)
    if cfg.prof:
        e.raw("    s_memtime s[80:81]")
        e.raw("    s_waitcnt lgkmcnt(0)")
        e.raw(f"    v_writelane_b32 v31, s80, 63")
        e.raw(f"    v_writelane_b32 v30, s82, 0")
        for n in range(5):
            e.raw(f"    v_writelane_b32 v31, s{STAMPS[n]}, {48+n}")
        e.raw(f"    s_cmp_eq_u32 s{S_W}, 0")
        e.raw("    s_cbranch_scc0 L_Bdone")
        e.raw(f"    s_lshl_b32 s84, s{S_WG}, 9")
        e.raw(f"    s_add_u32 s84, s84, {64<<20}")
        e.raw(f"    s_add_u32 s88, s{S_PTR+14}, s84")
        e.raw(f"    s_addc_u32 s89, s{S_PTR+15}, 0")
        e.raw(f"    s_and_b32 s89, s89, 0xffff")
        e.raw(f"    s_mov_b32 s90, 512")
        e.raw(f"    s_mov_b32 s91, 0x20000")
        e.raw(f"    v_lshlrev_b32 v29, 2, v0")
        e.raw(f"    buffer_store_dword v30, v29, s[88:91], 0 offen")
        e.raw(f"    buffer_store_dword v31, v29, s[88:91], 0 offen offset:256")
        e.raw(f"    s_lshl_b32 s84, s{S_WG}, 11")
        e.raw(f"    s_add_u32 s84, s84, {(64<<20) + (1<<18)}")
        e.raw(f"    s_add_u32 s88, s{S_PTR+14}, s84")
        e.raw(f"    s_addc_u32 s89, s{S_PTR+15}, 0")
        e.raw(f"    s_and_b32 s89, s89, 0xffff")
        e.raw(f"    s_mov_b32 s90, 2048")
        e.raw(f"    v_lshlrev_b32 v28, 4, v0")
        e.raw(f"    v_add_u32 v27, {PROF_LDS}, v28")
        e.raw(f"    ds_read_b128 v[80:83], v27")
        e.raw(f"    ds_read_b128 v[84:87], v27 offset:1024")
        e.raw(f"    s_waitcnt lgkmcnt(0)")
        e.raw(f"    buffer_store_dwordx4 v[80:83], v28, s[88:91], 0 offen")
        e.raw(f"    buffer_store_dwordx4 v[84:87], v28, s[88:91], 0 offen offset:1024")
        e.raw("L_Bdone:")
    e.raw("    s_endpgm")
    return e

def gen_A(cfg, S):
    e = Em('A')
    e.label("L_A")
    dreg = dict(K=[1, 2, 3], WQ=[4, 5, 6], X=[88, 89])
    wA = [7, 8, 9]; xA = [10, 11, 90, 91]; t0, t1, t2, t3 = 12, 13, 14, 15
    QACC = 32; XR = 96
    FS = [16, 20, 24, 28, 80, 84, 88, 92]
    calc_dX(e, dreg['X'], t0, t1)
    issue = {}
    for t in S['allt']:
        if t.by == 'A':
            issue.setdefault(t.issue, []).append(t)
    needA = {}
    for t in S['allt']:
        if t.by == 'A':
            needA.setdefault(t.consume[0], []).append(t)
    touches = {}
    if cfg.touch:
        touches.setdefault(cfg.touch_wq1, []).append(('wq1',))
        for t in S['WO']:
            if t.a == 0:
                touches.setdefault(max(cfg.touch_wq1 + 1, t.issue - cfg.touch_wo_lead), []).append(('wo', t.hd, t.sl))
    def do_issue(tk):
        for t in issue.get(tk, []):
            dma_tile(e, t, cfg, dreg)
        for tc in touches.get(tk, []):
            if tc[0] == 'wq1':
                e.salu(f"s_mul_i32 s{S_T0}, s{S_B}, {40*12288}")
                e.salu(f"s_add_u32 s{S_T0}, s{S_T0}, s{S_WQCOL}")
                e.salu(f"s_add_u32 s{S_T0}, s{S_T0}, 384")
                e.I(f"buffer_load_dword v92, v94, s[{SRD_WQ}:{SRD_WQ+3}], s{S_T0} offen", 'vload', w=[92], r=[94])
            else:
                e.salu(f"s_mul_i32 s{S_T0}, s{S_B}, {40*128}")
                e.salu(f"s_add_u32 s{S_T0}, s{S_T0}, {(tc[1]*192 + 64*tc[2])*1280}")
                e.I(f"buffer_load_dword v93, v95, s[{SRD_WO}:{SRD_WO+3}], s{S_T0} offen", 'vload', w=[93], r=[95])
    stamp(e, cfg, 1)
    do_issue(0)
    stamp(e, cfg, 2)
    if cfg.touch:
        V(e, f"v_add_u32 v{t0}, s{S_W64}, v0", [t0], [0])
        V(e, f"v_mul_u32_u24 v{t1}, 171, v{t0}", [t1], [t0])
        V(e, f"v_lshrrev_b32 v{t1}, 9, v{t1}", [t1], [t1])
        V(e, f"v_mul_u32_u24 v{t2}, 3, v{t1}", [t2], [t1])
        V(e, f"v_sub_u32 v{t2}, v{t0}, v{t2}", [t2], [t0, t2])
        V(e, f"v_lshlrev_b32 v{t2}, 7, v{t2}", [t2], [t2])
        e.salu(f"s_mov_b32 s{S_T1}, 12288")
        V(e, f"v_mul_lo_u32 v{t1}, v{t1}, s{S_T1}", [t1], [t1])
        V(e, f"v_add_u32 v{t1}, v{t1}, v{t2}", [t1], [t1, t2])
        V(e, f"v_cmp_gt_u32 vcc, 120, v{t0}", ['vcc'], [t0])
        V(e, f"v_mov_b32 v{t2}, 0x7fffffff", [t2])
        e.valu(f"v_cndmask_b32 v94, v{t2}, v{t1}, vcc", w=[94], r=[t1, t2, 'vcc'])
        V(e, f"v_lshlrev_b32 v{t1}, 7, v{t0}", [t1], [t0])
        V(e, f"v_cmp_gt_u32 vcc, 40, v{t0}", ['vcc'], [t0])
        e.valu(f"v_cndmask_b32 v95, v{t2}, v{t1}, vcc", w=[95], r=[t1, t2, 'vcc'])
    calc_dK(e, dreg['K'], t0, t1)
    calc_dWQ(e, dreg['WQ'], t0, t1, t2)
    V(e, f"v_lshrrev_b32 v{t0}, 5, v0", [t0], [0])
    V(e, f"v_lshlrev_b32 v{t0}, 3, v{t0}", [t0], [t0])
    V(e, f"v_bfe_u32 v{t1}, v0, 2, 2", [t1], [0])
    V(e, f"v_add_u32 v{t0}, v{t0}, v{t1}", [t0], [t0, t1])
    V(e, f"v_mul_u32_u24 v{t0}, 384, v{t0}", [t0], [t0])
    V(e, f"v_and_b32 v{t2}, 1, v0", [t2], [0])
    V(e, f"v_lshlrev_b32 v{t2}, 3, v{t2}", [t2], [t2])
    V(e, f"v_add_u32 v{t0}, v{t0}, v{t2}", [t0], [t0, t2])
    V(e, f"v_and_b32 v{t1}, 2, v{t1}", [t1], [t1])
    V(e, f"v_lshlrev_b32 v{t1}, 1, v{t1}", [t1], [t1])
    V(e, f"v_bfe_u32 v{t2}, v0, 4, 1", [t2], [0])
    V(e, f"v_lshlrev_b32 v{t2}, 1, v{t2}", [t2], [t2])
    V(e, f"v_bfe_u32 v{t3}, v0, 1, 1", [t3], [0])
    V(e, f"v_add_u32 v{t2}, v{t2}, v{t3}", [t2], [t2, t3])
    V(e, f"v_add_u32 v{t2}, s{S_DH12}, v{t2}", [t2], [t2])
    for j in range(3):
        V(e, f"v_add_u32 v{t3}, {4*j}, v{t2}", [t3], [t2])
        V(e, f"v_xor_b32 v{t3}, v{t3}, v{t1}", [t3], [t3, t1])
        V(e, f"v_lshlrev_b32 v{t3}, 4, v{t3}", [t3], [t3])
        V(e, f"v_add_u32 v{wA[j]}, v{t0}, v{t3}", [wA[j]], [t0, t3])
    e.salu(f"s_and_b32 s{S_T0}, s{S_W}, 1")
    e.salu(f"s_lshl_b32 s{S_T1}, s{S_T0}, 5")
    V(e, f"v_and_b32 v{t0}, 31, v0", [t0], [0])
    V(e, f"v_add_u32 v{t0}, s{S_T1}, v{t0}", [t0], [t0])
    V(e, f"v_bfe_u32 v{t1}, v{t0}, 1, 3", [t1], [t0])
    V(e, f"v_lshrrev_b32 v{t2}, 5, v0", [t2], [0])
    V(e, f"v_lshlrev_b32 v{t0}, 7, v{t0}", [t0], [t0])
    V(e, f"v_add_u32 v{t0}, {cfg.xbase}, v{t0}", [t0], [t0])
    for m in range(4):
        V(e, f"v_add_u32 v{t3}, {2*m}, v{t2}", [t3], [t2])
        V(e, f"v_xor_b32 v{t3}, v{t3}, v{t1}", [t3], [t3, t1])
        V(e, f"v_lshlrev_b32 v{t3}, 4, v{t3}", [t3], [t3])
        V(e, f"v_add_u32 v{xA[m]}, v{t0}, v{t3}", [xA[m]], [t0, t3])

    consA = {}
    for t in S['W0'] + S['W1t']:
        consA[t.consume[0]] = ('q', t)
    for t in S['WO']:
        for n, c in enumerate(t.consume):
            consA.setdefault(c, []) if False else None
    woc = {}
    for t in S['WO']:
        for n, c in enumerate(t.consume):
            woc.setdefault(c, []).append((t, n))

    def qproj(t, tk):
        i = t.i
        for s in range(2):
            if t.hd == 0:
                m = 2 * (i % 2) + s
                xo = ((i // 2) % cfg.x_slots) * 8192
                if xo >= 65536:
                    V(e, f"v_add_u32 v{t3}, 65536, v{xA[m]}", [t3], [xA[m]])
                    dsr128(e, XR + 4 * (2 * i + s), t3, xo - 65536)
                else:
                    dsr128(e, XR + 4 * (2 * i + s), xA[m], xo)
            if t.addr + 12288 > 65536:
                if s == 0:
                    for j in range(3):
                        V(e, f"v_add_u32 v{[t0,t1,t2][j]}, {t.addr}, v{wA[j]}", [[t0,t1,t2][j]], [wA[j]])
                wr, wb = [t0, t1, t2], 0
            else:
                wr, wb = wA, t.addr
            for j in range(3):
                for h in range(2):
                    dsrtr(e, FS[3 * s + j] + 2 * h, wr[j], wb + s * 16 * 384 + h * 4 * 384)
        do_issue(tk)
        for s in range(2):
            for j in range(3):
                d = QACC + 16 * j
                mfma32(e, d, FS[3 * s + j], XR + 4 * (2 * i + s), None if (i == 0 and s == 0) else d)

    def qfin():
        e.salu(f"s_and_b32 s{S_T0}, s{S_W}, 1")
        e.salu(f"s_lshl_b32 s{S_T1}, s{S_T0}, 5")
        V(e, f"v_and_b32 v{t0}, 31, v0", [t0], [0])
        V(e, f"v_add_u32 v{t0}, s{S_T1}, v{t0}", [t0], [t0])
        V(e, f"v_bfe_u32 v{t1}, v{t0}, 1, 3", [t1], [t0])
        V(e, f"v_mul_u32_u24 v{t0}, 384, v{t0}", [t0], [t0])
        V(e, f"v_lshrrev_b32 v{t2}, 5, v0", [t2], [0])
        V(e, f"v_lshlrev_b32 v{t2}, 3, v{t2}", [t2], [t2])
        V(e, f"v_add_u32 v{t0}, v{t0}, v{t2}", [t0], [t0, t2])
        for j in range(3):
            for g in range(4):
                a = QACC + 16 * j + 4 * g
                cvtpk(e, a, a, a + 1)
                cvtpk(e, a + 1, a + 2, a + 3)
                e.salu(f"s_add_u32 s{S_T0}, s{S_DH12}, {4*j+g}")
                tt = t2 if g % 2 == 0 else t3
                V(e, f"v_xor_b32 v{tt}, s{S_T0}, v{t1}", [tt], [t1])
                V(e, f"v_lshl_add_u32 v{tt}, v{tt}, 4, v{t0}", [tt], [tt, t0])
                dsw64(e, tt, a, QO)

    dWO = [1, 2, 3, 4, 5]; woA = [6, 7, 8, 9]; ofA = [10, 11, 12, 13]; woH = [16, 17, 18, 19]
    OF = 32
    AS = [48, 52, 56, 60, 64, 68, 72, 76, 80, 84, 88, 92]
    OUT = XR
    def setup_out():
        calc_dWO(e, dWO, t0 + 2, t3 + 0) if False else None
        u0, u1 = 14, 15
        calc_dWO(e, dWO, u0, u1)
        dreg['WO'] = dWO
        a0, a1, a2, a3 = 20, 21, 22, 23
        V(e, f"v_lshrrev_b32 v{a0}, 5, v0", [a0], [0])
        V(e, f"v_lshlrev_b32 v{a0}, 3, v{a0}", [a0], [a0])
        V(e, f"v_bfe_u32 v{a1}, v0, 2, 2", [a1], [0])
        V(e, f"v_add_u32 v{a0}, v{a0}, v{a1}", [a0], [a0, a1])
        V(e, f"v_mul_u32_u24 v{a0}, 1280, v{a0}", [a0], [a0])
        V(e, f"v_bfe_u32 v{a2}, v0, 1, 1", [a2], [0])
        V(e, f"v_lshlrev_b32 v{a2}, 3, v{a2}", [a2], [a2])
        V(e, f"v_add_u32 v{a0}, v{a0}, v{a2}", [a0], [a0, a2])
        V(e, f"v_bfe_u32 v{a2}, v0, 4, 1", [a2], [0])
        V(e, f"v_lshlrev_b32 v{a2}, 1, v{a2}", [a2], [a2])
        V(e, f"v_and_b32 v{a3}, 1, v0", [a3], [0])
        V(e, f"v_add_u32 v{a2}, v{a2}, v{a3}", [a2], [a2, a3])
        V(e, f"v_lshl_add_u32 v{a0}, v{a2}, 4, v{a0}", [a0], [a2, a0])
        e.salu(f"s_lshr_b32 s{S_T0}, s{S_W}, 1")
        e.salu(f"s_mul_i32 s{S_T0}, s{S_T0}, 10")
        for j in range(4):
            e.salu(f"s_add_u32 s{S_T1}, s{S_T0}, {j}")
            V(e, f"v_xor_b32 v{a2}, s{S_T1}, v{a1}", [a2], [a1])
            V(e, f"v_lshl_add_u32 v{woA[j]}, v{a2}, 6, v{a0}", [woA[j]], [a2, a0])
        e.salu(f"s_and_b32 s{S_T0}, s{S_W}, 1")
        e.salu(f"s_lshl_b32 s{S_T1}, s{S_T0}, 5")
        V(e, f"v_and_b32 v{a0}, 31, v0", [a0], [0])
        V(e, f"v_add_u32 v{a0}, s{S_T1}, v{a0}", [a0], [a0])
        V(e, f"v_bfe_u32 v{a1}, v{a0}, 1, 3", [a1], [a0])
        V(e, f"v_mul_u32_u24 v{a0}, 384, v{a0}", [a0], [a0])
        V(e, f"v_lshrrev_b32 v{a2}, 5, v0", [a2], [0])
        for ss in range(4):
            V(e, f"v_add_u32 v{a3}, {2*ss}, v{a2}", [a3], [a2])
            V(e, f"v_xor_b32 v{a3}, v{a3}, v{a1}", [a3], [a3, a1])
            V(e, f"v_lshl_add_u32 v{ofA[ss]}, v{a3}, 4, v{a0}", [ofA[ss]], [a3, a0])

    wost = {}
    def wo_reads(t, js, slots):
        if t.addr + 20480 <= 65536:
            regs, base = woA, t.addr
        else:
            key = t.addr
            if key not in wost:
                sets_ = [[16, 17, 18, 19], [20, 21, 22, 23], [24, 25, 26, 27], [28, 29, 30, 31]]
                idx = wost.get('n', 0)
                regs = sets_[idx % 4]
                for k2 in [k for k, v in wost.items() if k != 'n' and v is regs]:
                    del wost[k2]
                wost['n'] = idx + 1
                for j in range(4):
                    V(e, f"v_add_u32 v{regs[j]}, {t.addr}, v{woA[j]}", [regs[j]], [woA[j]])
                wost[key] = regs
            regs, base = wost[key], 0
        for j, sl in zip(js, slots):
            areg = regs[j % 4]
            for h in range(2):
                dsrtr(e, sl + 2 * h, areg, base + h * 4 * 1280 + (j // 4) * 256)

    def outproj_half(t, n, tk):
        first_ever = (t.hd == 0 and t.sl == 0 and t.a == 0)
        if t.a == 0 and n == 0:
            for ss in range(4):
                dsr128(e, OF + 4 * ss, ofA[ss], QO + 128 * t.sl)
        js = list(range(5 * n, 5 * n + 5))
        slots = AS[:5]
        wo_reads(t, js, slots)
        do_issue(tk)
        for j, sl in zip(js, slots):
            d = OUT + 16 * j
            mfma32(e, d, sl, OF + 4 * t.a, None if first_ever else d)

    def outproj_final(ts, tk):
        sl_ = ts[0][0].sl
        for ss in range(4):
            dsr128(e, OF + 4 * ss, ofA[ss], QO + 128 * sl_)
        tl = sorted([t for t, n in ts], key=lambda t: t.a)
        sv = 14
        V(e, f"v_lshlrev_b32 v{sv}, 4, v0", [sv], [0])
        e.salu(f"s_mul_i32 s{S_T2}, s{S_W}, {20*1024}")
        sets = [AS[0:4], AS[4:8], AS[8:12]]
        def reads(j):
            for a in range(4):
                wo_reads(tl[a], [j], [sets[j % 3][a]])
        def store(j):
            d = OUT + 16 * j
            for o in range(2):
                b = d + 8 * o
                for i in range(4):
                    cvtpk(e, b + i, b + 2 * i, b + 2 * i + 1)
                e.salu(f"s_add_u32 s{S_T3}, s{S_T2}, {(2*j+o)*1024}")
                e.I(f"buffer_store_dwordx4 {vr(b,4)}, v{sv}, s[{SRD_P}:{SRD_P+3}], s{S_T3} offen", 'vstore', r=R(b, 4) + [sv])
        reads(0); reads(1)
        for j in range(10):
            if j + 2 < 10:
                reads(j + 2)
            d = OUT + 16 * j
            for a in range(4):
                mfma32(e, d, sets[j % 3][a], OF + 4 * a, d)
            if j >= 2:
                store(j - 2)
        store(8); store(9)

    did_setup = False
    for tk in range(0, S['nticks']):
        if tk > 0:
            e.comment(f"---- A tick {tk}")
            e.barrier()
            if tk == S['tQ1'] + 1:
                pass
            if tk in consA:
                qproj(consA[tk][1], tk)
            elif tk == S['tQ0']:
                qfin(); do_issue(tk)
            elif tk == S['tQ1']:
                qfin()
                setup_out(); did_setup = True
                do_issue(tk)
            elif tk in woc:
                lst = woc[tk]
                if len(lst) == 1:
                    outproj_half(lst[0][0], lst[0][1], tk)
                else:
                    do_issue(tk)
                    outproj_final(lst, tk)
            else:
                do_issue(tk)
        if tk == 0: stamp(e, cfg, 3)
        if tk < S['nticks'] - 1: lstamp(e, cfg, 0, 0, tk, 14, 15)
        for t in needA.get(tk + 1, []):
            e.wait_tile(t)
        if tk < S['nticks'] - 1: lstamp(e, cfg, 0, 1, tk, 14, 15)
        if tk == 0: stamp(e, cfg, 4)
    if cfg.prof:
        e.raw("    s_memtime s[80:81]")
        e.raw("    s_waitcnt vmcnt(0)")
        e.raw("    s_memtime s[86:87]")
        e.raw("    s_waitcnt lgkmcnt(0)")
        e.raw(f"    s_cmp_eq_u32 s{S_W}, 0")
        e.raw("    s_cbranch_scc0 L_Adone")
        e.raw(f"    s_lshl_b32 s84, s{S_WG}, 9")
        e.raw(f"    s_add_u32 s84, s84, {(64<<20) + (1<<17)}")
        e.raw(f"    s_add_u32 s88, s{S_PTR+14}, s84")
        e.raw(f"    s_addc_u32 s89, s{S_PTR+15}, 0")
        e.raw(f"    s_and_b32 s89, s89, 0xffff")
        e.raw(f"    s_mov_b32 s90, 512")
        e.raw(f"    s_mov_b32 s91, 0x20000")
        e.raw(f"    v_mov_b32 v28, s82")
        e.raw(f"    v_mov_b32 v29, s80")
        e.raw(f"    v_mov_b32 v30, s86")
        e.raw(f"    v_mov_b32 v27, 0")
        e.raw(f"    buffer_store_dwordx3 v[28:30], v27, s[88:91], 0 offen")
        for n in range(5):
            e.raw(f"    v_mov_b32 v28, s{STAMPS[n]}")
            e.raw(f"    buffer_store_dword v28, v27, s[88:91], 0 offen offset:{16+4*n}")
        e.raw("L_Adone:")
    e.raw("    s_endpgm")
    return e

STAMPS = [74, 75, 76, 77, 78, 79, 92, 93, 94, 95]
def stamp(e, cfg, n):
    if cfg.prof:
        e.raw("    s_memtime s[96:97]")
        e.raw("    s_waitcnt lgkmcnt(0)")
        e.lgkm = []
        e.raw(f"    s_mov_b32 s{STAMPS[n]}, s96")

PROF_LDS = 84 * 1024
def lstamp(e, cfg, grp, kind, tk, ta, tb):
    if cfg.prof and tk >= 21:
        e.raw("    s_memtime s[96:97]")
        e.raw("    s_waitcnt lgkmcnt(0)")
        e.lgkm = []
        e.raw(f"    v_mov_b32 v{ta}, s96")
        e.raw(f"    v_mov_b32 v{tb}, {PROF_LDS}")
        e.I(f"ds_write_b32 v{tb}, v{ta} offset:{(grp*2+kind)*512 + tk*4}", 'ds_write', r=[ta, tb])

def prologue(cfg):
    e = Em('P')
    e.salu(f"s_cmp_ge_u32 s{S_WG}, 256")
    e.raw("    s_cbranch_scc1 L_exit")
    e.raw(f"    s_load_dwordx16 s[{S_PTR}:{S_PTR+15}], s[0:1], 0")
    if cfg.prof:
        e.raw("    s_memtime s[82:83]")
    e.valu("v_lshrrev_b32 v1, 6, v0", w=[1], r=[0])
    e.I(f"v_readfirstlane_b32 s{S_WAVE}, v1", 'readlane', w=[f's{S_WAVE}'], r=[1])
    e.valu("v_and_b32 v0, 63, v0", w=[0], r=[0])
    e.I(f"s_and_b32 s{S_W}, s{S_WAVE}, 3", 'salu', r=[f's{S_WAVE}'])
    e.salu(f"s_and_b32 s{S_T0}, s{S_WG}, 7")
    e.salu(f"s_lshr_b32 s{S_T1}, s{S_WG}, 3")
    e.salu(f"s_lshr_b32 s{S_T2}, s{S_T1}, 4")
    e.salu(f"s_lshl_b32 s{S_HP}, s{S_T0}, 1")
    e.salu(f"s_add_u32 s{S_HP}, s{S_HP}, s{S_T2}")
    e.salu(f"s_and_b32 s{S_B}, s{S_T1}, 15")
    e.salu(f"s_mul_i32 s{S_ROT}, s{S_B}, 5")
    e.salu(f"s_lshr_b32 s{S_ROT}, s{S_ROT}, 3")
    e.salu(f"s_lshl_b32 s{S_ROT}, s{S_ROT}, 1")
    e.salu(f"s_mul_i32 s{S_W3072}, s{S_W}, 3072")
    e.salu(f"s_lshl_b32 s{S_W1024}, s{S_W}, 10")
    e.salu(f"s_lshl_b32 s{S_W2048}, s{S_W}, 11")
    e.salu(f"s_mul_i32 s{S_W5120}, s{S_W}, 5120")
    e.salu(f"s_mul_i32 s{S_W6144}, s{S_W}, 6144")
    e.salu(f"s_lshl_b32 s{S_W64}, s{S_W}, 6")
    e.salu(f"s_mul_i32 s{S_WQCOL}, s{S_HP}, 768")
    e.salu(f"s_lshr_b32 s{S_DH12}, s{S_W}, 1")
    e.salu(f"s_mul_i32 s{S_DH12}, s{S_DH12}, 12")
    e.salu(f"s_mov_b32 s{S_C}, {f32((192 ** -0.5) * 1.4426950408889634):#x}")
    e.salu(f"s_lshl_b32 s{S_T0}, s{S_B}, 4")
    e.salu(f"s_add_u32 s{S_T0}, s{S_T0}, s{S_HP}")
    e.salu(f"s_mul_i32 s{S_T1}, s{S_T0}, 393216")
    e.salu(f"s_mul_i32 s{S_T2}, s{S_T0}, 81920")
    e.salu(f"s_mul_i32 s{S_T3}, s{S_B}, 81920")
    e.salu(f"s_mul_i32 s{S_KT}, s{S_HP}, {2*192*1280}")
    e.raw("    s_waitcnt lgkmcnt(0)")
    stamp(e, cfg, 0)
    def srd(d, p, offs, size):
        if offs is None:
            e.salu(f"s_mov_b32 s{d}, s{p}")
            e.salu(f"s_and_b32 s{d+1}, s{p+1}, 0xffff")
        else:
            e.salu(f"s_add_u32 s{d}, s{p}, s{offs}")
            e.salu(f"s_addc_u32 s{d+1}, s{p+1}, 0")
            e.salu(f"s_and_b32 s{d+1}, s{d+1}, 0xffff")
        e.salu(f"s_mov_b32 s{d+2}, {size}")
        e.salu(f"s_mov_b32 s{d+3}, 0x20000")
    srd(SRD_WQ, S_PTR + 6, None, 640 * 12288)
    srd(SRD_X, S_PTR + 0, S_T3, 81920)
    srd(SRD_K, S_PTR + 2, S_T1, 393216)
    srd(SRD_V, S_PTR + 4, S_T1, 393216)
    srd(SRD_WO, S_PTR + 8, S_KT, 2 * 192 * 1280)
    srd(SRD_P, S_PTR + 14, S_T2, 81920)
    e.salu(f"s_cmp_ge_u32 s{S_WAVE}, 4")
    e.raw("    s_cbranch_scc1 L_B")
    return e

def gen_reduce():
    L = []
    A = L.append
    A(f".globl {KN2}")
    A(".p2align 8")
    A(f".type {KN2},@function")
    A(f"{KN2}:")
    A("    s_cmp_ge_u32 s2, 320")
    A("    s_cbranch_scc1 L_rexit")
    A("    s_load_dwordx2 s[4:5], s[0:1], 40")
    A("    s_load_dwordx2 s[6:7], s[0:1], 56")
    A("    v_lshrrev_b32 v1, 6, v0")
    A("    v_and_b32 v0, 63, v0")
    A("    v_readfirstlane_b32 s8, v1")
    A("    s_lshl_b32 s9, s2, 2")
    A("    s_nop 2")
    A("    s_add_u32 s9, s9, s8")
    A("    s_mul_hi_u32 s10, s9, 53687092")
    A("    s_mul_i32 s11, s10, 80")
    A("    s_sub_u32 s11, s9, s11")
    A("    s_mul_i32 s12, s10, 1310720")
    A("    s_lshl_b32 s13, s11, 10")
    A("    s_add_u32 s12, s12, s13")
    A("    v_lshlrev_b32 v2, 4, v0")
    A("    s_waitcnt lgkmcnt(0)")
    A("    s_add_u32 s16, s6, s12")
    A("    s_addc_u32 s17, s7, 0")
    A("    s_and_b32 s17, s17, 0xffff")
    A("    s_mov_b32 s18, 0x7fffffff" if False else f"    s_mov_b32 s18, {15*81920+1024}")
    A("    s_mov_b32 s19, 0x20000")
    for h in range(16):
        A(f"    s_mov_b32 s{24+h}, {h*81920}")
    for h in range(16):
        A(f"    buffer_load_dwordx4 v[{8+4*h}:{11+4*h}], v2, s[16:19], s{24+h} offen")
    A("    s_mul_hi_u32 s20, s11, 214748365")
    A("    s_mul_i32 s21, s20, 20")
    A("    s_sub_u32 s21, s11, s21")
    A("    s_and_b32 s22, s20, 1")
    A("    s_lshr_b32 s23, s20, 1")
    A("    s_mul_i32 s23, s23, 320")
    A("    s_lshl_b32 s21, s21, 4")
    A("    s_add_u32 s23, s23, s21")
    A("    s_lshl_b32 s22, s22, 5")
    A("    s_lshl_b32 s40, s10, 6")
    A("    s_add_u32 s22, s22, s40")
    A("    s_mul_i32 s22, s22, 1280")
    A("    s_lshl_b32 s23, s23, 1")
    A("    s_add_u32 s22, s22, s23")
    A("    v_and_b32 v3, 31, v0")
    A("    v_mul_u32_u24 v3, 1280, v3")
    A("    v_lshrrev_b32 v4, 5, v0")
    A("    v_lshlrev_b32 v4, 4, v4")
    A("    v_add_u32 v3, v3, v4")
    A("    s_mov_b32 s44, s4")
    A("    s_and_b32 s45, s5, 0xffff")
    A(f"    s_mov_b32 s46, {16*64*640*2}")
    A("    s_mov_b32 s47, 0x20000")
    for h in range(16):
        A(f"    s_waitcnt vmcnt({15-h})")
        for i in range(4):
            src = 8 + 4 * h + i
            if h == 0:
                A(f"    v_lshlrev_b32 v{72+2*i}, 16, v{src}")
                A(f"    v_and_b32 v{73+2*i}, 0xffff0000, v{src}")
            else:
                A(f"    v_lshlrev_b32 v5, 16, v{src}")
                A(f"    v_and_b32 v6, 0xffff0000, v{src}")
                A(f"    v_add_f32 v{72+2*i}, v{72+2*i}, v5")
                A(f"    v_add_f32 v{73+2*i}, v{73+2*i}, v6")
    for i in range(4):
        A(f"    v_cvt_pk_bf16_f32 v{80+i}, v{72+2*i}, v{73+2*i}")
    A("    buffer_store_dwordx4 v[80:83], v3, s[44:47], s22 offen")
    A("L_rexit:")
    A("    s_endpgm")
    return L

def kd(name, vgpr, sgpr=100):
    return [f".amdhsa_kernel {name}", f"  .amdhsa_next_free_vgpr {vgpr}", f"  .amdhsa_next_free_sgpr {sgpr}",
            f"  .amdhsa_accum_offset {vgpr}", "  .amdhsa_group_segment_fixed_size 0", "  .amdhsa_kernarg_size 64",
            "  .amdhsa_user_sgpr_count 2", "  .amdhsa_user_sgpr_kernarg_segment_ptr 1", "  .amdhsa_system_sgpr_workgroup_id_x 1",
            "  .amdhsa_float_denorm_mode_32 3", ".end_amdhsa_kernel"]

def generate(cfg, fn):
    S = build_schedule(cfg)
    P = prologue(cfg); A = gen_A(cfg, S); B = gen_B(cfg, S)
    assert A.nbar == B.nbar, (A.nbar, B.nbar)
    L = []
    L.append(f"; @launch kernel={KN} grid=(256,1,1) block=(512,1,1) lds=163840")
    L.append(f"; @launch kernel={KN2} grid=(320,1,1) block=(256,1,1) lds=0")
    L.append('.amdgcn_target "amdgcn-amd-amdhsa--gfx950"')
    L.append(".text")
    L.append(f".globl {KN}")
    L.append(".p2align 8")
    L.append(f".type {KN},@function")
    L.append(f"{KN}:")
    L += P.lines + A.lines + B.lines
    L.append("L_exit:")
    L.append("    s_endpgm")
    L += gen_reduce()
    L.append('.section .rodata,"a"')
    L.append(".p2align 6")
    L += kd(KN, 256)
    L.append(".p2align 6")
    L += kd(KN2, 88)
    open(fn, "w").write("\n".join(L) + "\n")
    print("ticks", S['nticks'], "A instr", A.ninstr, A.stats, "B instr", B.ninstr, B.stats, file=sys.stderr)
    return S

if __name__ == "__main__":
    cfg = Cfg()
    if "--prof" in sys.argv: cfg.prof = True
    for a in sys.argv[2:]:
        if "=" in a:
            k, v = a.split("=", 1)
            setattr(cfg, k, eval(v))
    S = generate(cfg, sys.argv[1] if len(sys.argv) > 1 else "k1.s")
    if "-v" in sys.argv:
        for t in S['allt']:
            print(t.name, hex(t.addr), "issue", t.issue, "by", t.by, "consume", t.consume)
```

```python
import sys, struct
from emit import Em, vr, sr, R
import gen as G
from gen import (Tile, V, calc_dK, calc_dWQ, calc_dX, calc_dV, calc_dWO, mfma16, mfma32, dsr128, dsrtr, dsw64, cvtpk, f32, kd,
                 gen_reduce, KN, KN2, QO, stamp, lstamp, STAMPS, PROF_LDS, dma_tile,
                 S_WG, S_WAVE, S_W, S_B, S_HP, S_ROT, S_PTR, SRD_K, SRD_V, SRD_WQ, SRD_X, SRD_WO, SRD_P,
                 S_W3072, S_W1024, S_W2048, S_W5120, S_WQCOL, S_C, S_T0, S_T1, S_T2, S_T3, S_KT, S_W6144, S_DH12, S_W64)

class Cfg:
    nt_kv = True
    prof = False
    rot = True
    touch = False
    w0_slots = 6
    xbase = 80 * 1024
    x_issue = [0, 0, 0, 1, 1, 1, 1, 2, 2, 2]
    w0_issue = None
    kpre = 6
    W1 = 0
    WSZ = 81920
    OB = 80 * 1024
    Q0B = 0
    Q1B = 56 * 1024
    HB = 88 * 1024
    HSZ = 72 * 1024
    touch_wq1 = 3
    touch_wo_lead = 5
    early_lead = 1
    x_cons = [1, 2, 2, 3, 3, 3, 3, 3, 3, 3]
    x_iss = [0, 0, 0, 1, 1, 1, 1, 1, 1, 2]
    x_ord = [0, 3, 4, 2, 3, 4, 5, 6, 7, 0]
    w0_iss = [0, 0, 1, 1, 2, 2, 2, 2]
    w0_ord = [1, 2, 0, 1, 1, 2, 3, 4]
    kpre_ticks = [8, 8, 9, 9, 11, 11]
    x_all = True
    kpre_by = 'B'
    w0_first = 6
    pf_wq = True
    pf_dst1 = staticmethod(lambda SB, i: SB + 8 * i + 4)
    pf_ticks = [0] * 14
    exp_ahead = True
    skipA = ()
    skipB = ()
    skiptile = ()
    k_lead = [[9, 9], [9, 9]]
    v_lead = [9, 9]
    inred = False
    st_flags = ''
    spin_max = 200000
    b_pos = 0
    fineB = 21
    fineA = 15
    final_addr = None
    wo_rot = False
    wo_g = 'and3'
    pair_rot = False
    a_end_until = 0
    wq1_earliest = 0
    a_delay = 0
    x_slots = None
    v_rot = False
    x_ring = None
    pf_first = 0
    h_ord = None
    w_end = False
    smem_pf = False
    smem_first = 15
    smem_per = 3
    touch2 = None
    touch2_stride = 64
    touch2_tick = 0
    touch2_pos = 3
    tlb = ''
    tlb_reg = 228
    tlb_tick = 1
    pf_wq_trim = False
    h_pol = None
    h_from = 11
    nt_pf = ''
    nt_wq = ''
    nt_x = ''
    nt_wo = ''
    wq1_lead = 99

def build_schedule(cfg):
    T0 = 1
    HB, HSZ, W1 = cfg.HB, cfg.HSZ, cfg.W1
    X = []
    for j in range(10):
        xa = cfg.xbase + j * 8192 if cfg.x_ring is None else cfg.x_ring[0] + (j % cfg.x_ring[1]) * 8192
        if cfg.x_slots: xa = cfg.x_slots[j % len(cfg.x_slots)] * 1024
        t = Tile('x', f"x_{j}", xa, 8192, j=j)
        t.consume = [cfg.x_cons[j]]; t.by = 'B'; t.earliest = cfg.x_iss[j]; t.order = cfg.x_ord[j]
        X.append(t)
    W0 = []
    for i in range(20):
        t = Tile('w0', f"w0_{i}", (i % cfg.w0_slots) * 12288, 12288, hd=0, i=i)
        t.consume = [T0 + i // 2]; t.by = 'B'
        t.earliest = cfg.w0_iss[i] if i < len(cfg.w0_iss) else 1
        t.order = cfg.w0_ord[i] if i < len(cfg.w0_ord) else 50 + i
        W0.append(t)
    tQ0 = T0 + 10
    tK0 = tQ0 + 1
    H = []
    pos = 0
    tk = tK0
    info = {}
    for hd in range(2):
        info[('k', hd)] = tk
        for j in range(16):
            assert pos + 12288 <= HSZ
            t = Tile('k', f"k{hd}_{j}", HB + pos, 12288, hd=hd, j=j)
            pos = (pos + 12288) % HSZ
            t.consume = [tk + j // 2]; t.by = 'B'; t.earliest = max(0, t.consume[0] - cfg.k_lead[hd][j % 2])
            H.append(t)
        tk += 8
        info[('v', hd)] = tk
        for sl in range(3):
            for j in range(8):
                assert pos + 8192 <= HSZ
                t = Tile('v', f"v{hd}_{sl}_{j}", HB + pos, 8192, hd=hd, sl=sl, j=j)
                pos = (pos + 8192) % HSZ
                t.consume = [tk + j // 2]; t.by = 'B'; t.earliest = max(0, t.consume[0] - cfg.v_lead[j % 2])
                H.append(t)
            tk += 4
    for n, t in enumerate(H[:cfg.kpre]):
        t.by = cfg.kpre_by; t.earliest = cfg.kpre_ticks[n]
    tEnd = tk
    W1t = []
    tq1 = tK0 + cfg.a_delay
    nq1 = cfg.WSZ // 12288
    for i in range(20):
        t = Tile('wq1', f"wq1_{i}", W1 + ((i + 2) % nq1) * 12288, 12288, hd=1, i=i)
        t.consume = [tq1 + i // 2]; t.by = 'A'; t.earliest = max(cfg.wq1_earliest, t.consume[0] - cfg.wq1_lead)
        W1t.append(t)
    tQ1 = tq1 + 10
    v0 = info[('v', 0)]
    assert cfg.a_delay <= 2
    WO = []
    slot = 0
    nwo = cfg.WSZ // 20480
    for hd in range(2):
        vstart = info[('v', hd)]
        for sl in range(3):
            tO = vstart + 4 * sl + 3
            for a in range(4):
                final = (hd == 1 and sl == 2)
                t = Tile('wo', f"wo{hd}_{sl}_{a}", None, 20480, hd=hd, sl=sl, a=a)
                if final:
                    t.addr = cfg.final_addr[a]
                    t.consume = [tO + 1]
                else:
                    t.addr = W1 + (slot % nwo) * 20480
                    slot += 1
                    t.consume = [tO + 1 + a + (cfg.a_delay if hd == 0 else 0)]
                t.by = 'A'
                t.earliest = tQ0 + 1
                WO.append(t)
    nticks = tEnd + 1
    free_at = [0] * 160
    PQ = []
    q0 = Tile('q', 'Q0', cfg.Q0B, 24576); q0.fixed = tQ0; q0.consume = [tQ0 + 1]; q0.by = None; PQ.append(q0)
    q1 = Tile('q', 'Q1', cfg.Q1B, 24576); q1.fixed = tQ1; q1.consume = [tQ1 + 1]; q1.by = None; PQ.append(q1)
    ob = Tile('q', 'OB', cfg.OB, 8192); ob.fixed = v0 + 3; ob.consume = [tEnd]; ob.by = None; PQ.append(ob)
    streams = [X, W0, H, W1t, WO, PQ]
    def okey(t):
        first = t.fixed if t.kind == 'q' else t.consume[0]
        return (first, t.kind, getattr(t, 'i', 0), getattr(t, 'sl', 0), getattr(t, 'j', 0), getattr(t, 'a', 0))
    allt = sorted([t for s_ in streams for t in s_], key=okey)
    last_issue = {}
    for t in allt:
        lo = t.addr // 1024; hi = (t.addr + t.size) // 1024
        e = max(free_at[lo:hi])
        if t.kind == 'q':
            assert e <= t.fixed, (t, e, t.fixed)
            t.issue = t.fixed
        else:
            key = t.kind if t.kind in ('x', 'w0', 'wq1', 'wo') else 'h'
            e = max(e, last_issue.get(key, 0), t.earliest)
            t.issue = e
            last_issue[key] = e
            assert t.issue < t.consume[0], (t, t.issue, t.consume)
        for k in range(lo, hi):
            free_at[k] = t.consume[-1] + 1
    for a in allt:
        for b in allt:
            if a is b: continue
            if a.addr < b.addr + b.size and b.addr < a.addr + a.size:
                assert a.consume[-1] < b.issue or b.consume[-1] < a.issue, ("overlap", a, a.issue, a.consume, b, b.issue, b.consume)
    allt = [t for t in allt if t.kind != 'q']
    if cfg.h_pol is not None:
        for t in H:
            if t.issue >= cfg.h_from and cfg.h_pol(t): t.by = 'A'
            if cfg.h_ord is not None and t.by == 'A': t.order = cfg.h_ord
    return dict(nticks=nticks, X=X, W0=W0, H=H, W1t=W1t, WO=WO, tQ0=tQ0, tQ1=tQ1, info=info, tEnd=tEnd, allt=allt)

def srd(e, d, p, offs, size):
    if offs is None:
        e.salu(f"s_mov_b32 s{d}, s{p}")
        e.salu(f"s_and_b32 s{d+1}, s{p+1}, 0xffff")
    else:
        e.salu(f"s_add_u32 s{d}, s{p}, s{offs}")
        e.salu(f"s_addc_u32 s{d+1}, s{p+1}, 0")
        e.salu(f"s_and_b32 s{d+1}, s{d+1}, 0xffff")
    e.salu(f"s_mov_b32 s{d+2}, {size}")
    e.salu(f"s_mov_b32 s{d+3}, 0x20000")

S_OKV = 56; S_OP = 57; S_OX = 58; S_OWO = 59
def build_srds(e, cfg, first):
    e.raw("    s_waitcnt lgkmcnt(0)")
    stamp(e, cfg, 0)
    lst = {
        'WQ': lambda: srd(e, SRD_WQ, S_PTR + 6, None, 640 * 12288),
        'X': lambda: srd(e, SRD_X, S_PTR + 0, S_OX, 81920),
        'K': lambda: srd(e, SRD_K, S_PTR + 2, S_OKV, 393216),
        'V': lambda: srd(e, SRD_V, S_PTR + 4, S_OKV, 393216),
        'WO': lambda: srd(e, SRD_WO, S_PTR + 8, S_OWO, 2 * 192 * 1280),
        'P': lambda: srd(e, SRD_P, S_PTR + 14, S_OP, 81920),
    }
    lst[first]()
    return [k for k in lst if k != first], lst

def prologue(cfg):
    e = Em('P')
    e.salu(f"s_cmp_ge_u32 s{S_WG}, 256")
    e.raw("    s_cbranch_scc1 L_exit")
    e.raw(f"    s_load_dwordx16 s[{S_PTR}:{S_PTR+15}], s[0:1], 0")
    if cfg.prof:
        e.raw("    s_memtime s[82:83]")
        e.raw("    s_memrealtime s[8:9]")
    e.valu("v_lshrrev_b32 v1, 6, v0", w=[1], r=[0])
    e.I(f"v_readfirstlane_b32 s{S_WAVE}, v1", 'readlane', w=[f's{S_WAVE}'], r=[1])
    e.valu("v_and_b32 v0, 63, v0", w=[0], r=[0])
    e.salu(f"s_and_b32 s{S_T0}, s{S_WG}, 7")
    e.salu(f"s_lshr_b32 s{S_T1}, s{S_WG}, 3")
    e.salu(f"s_lshr_b32 s{S_T2}, s{S_T1}, 4")
    e.salu(f"s_lshl_b32 s{S_HP}, s{S_T0}, 1")
    e.salu(f"s_add_u32 s{S_HP}, s{S_HP}, s{S_T2}")
    e.salu(f"s_and_b32 s{S_B}, s{S_T1}, 15")
    e.I(f"s_and_b32 s{S_W}, s{S_WAVE}, 3", 'salu', r=[f's{S_WAVE}'])
    e.salu(f"s_mul_i32 s{S_ROT}, s{S_B}, 5")
    e.salu(f"s_lshr_b32 s{S_ROT}, s{S_ROT}, 3")
    e.salu(f"s_lshl_b32 s{S_ROT}, s{S_ROT}, 1")
    if cfg.pair_rot:
        e.salu(f"s_mul_i32 s{S_T2}, s{S_T2}, 10")
        e.salu(f"s_add_u32 s{S_ROT}, s{S_ROT}, s{S_T2}")
        e.salu(f"s_sub_u32 s{S_T2}, s{S_ROT}, 20")
        e.salu(f"s_cmp_ge_u32 s{S_ROT}, 20")
        e.salu(f"s_cselect_b32 s{S_ROT}, s{S_T2}, s{S_ROT}")
    if cfg.wo_g == 'and3':
        e.salu(f"s_and_b32 s13, s{S_B}, 3")
    else:
        e.salu(f"s_lshr_b32 s13, s{S_B}, 2")
    if cfg.v_rot:
        assert cfg.wo_rot and not cfg.smem_pf and cfg.wo_g == 'and3'
        e.salu(f"s_lshr_b32 s{S_T2}, s{S_B}, 2")
        e.salu(f"s_cmp_eq_u32 s{S_T2}, 3")
        e.salu(f"s_cselect_b32 s{S_T2}, 0, s{S_T2}")
        for k, d in enumerate((14, 15, 98)):
            e.salu(f"s_add_u32 s{S_T3}, s{S_T2}, {k}")
            e.salu(f"s_sub_u32 s{d}, s{S_T3}, 3")
            e.salu(f"s_cmp_ge_u32 s{S_T3}, 3")
            e.salu(f"s_cselect_b32 s{d}, s{d}, s{S_T3}")
            e.salu(f"s_lshl_b32 s{d}, s{d}, 7")
    e.salu(f"s_mul_i32 s{S_W3072}, s{S_W}, 3072")
    e.salu(f"s_lshl_b32 s{S_W1024}, s{S_W}, 10")
    e.salu(f"s_lshl_b32 s{S_W2048}, s{S_W}, 11")
    e.salu(f"s_mul_i32 s{S_W5120}, s{S_W}, 5120")
    e.salu(f"s_mul_i32 s{S_W6144}, s{S_W}, 6144")
    e.salu(f"s_lshl_b32 s{S_W64}, s{S_W}, 6")
    e.salu(f"s_mul_i32 s{S_WQCOL}, s{S_HP}, 768")
    e.salu(f"s_lshr_b32 s{S_DH12}, s{S_W}, 1")
    e.salu(f"s_mul_i32 s{S_DH12}, s{S_DH12}, 12")
    e.salu(f"s_mov_b32 s{S_C}, {f32((192 ** -0.5) * 1.4426950408889634):#x}")
    e.salu(f"s_lshl_b32 s{S_T0}, s{S_B}, 4")
    e.salu(f"s_add_u32 s{S_T0}, s{S_T0}, s{S_HP}")
    e.salu(f"s_mul_i32 s{S_OKV}, s{S_T0}, 393216")
    e.salu(f"s_mul_i32 s{S_OP}, s{S_T0}, 81920")
    e.salu(f"s_mul_i32 s{S_OX}, s{S_B}, 81920")
    e.salu(f"s_mul_i32 s{S_OWO}, s{S_HP}, {2*192*1280}")
    e.salu(f"s_cmp_ge_u32 s{S_WAVE}, 4")
    e.raw("    s_cbranch_scc1 L_B")
    return e

def plan(S, who):
    issue = {}; need = {}
    for t in S['allt']:
        if t.by == who:
            issue.setdefault(t.issue, []).append(t)
            need.setdefault(t.consume[0], []).append(t)
    for k in issue:
        issue[k].sort(key=lambda t: getattr(t, 'order', 100))
    return issue, need

class Fine:
    def __init__(s, e, cfg, reg, tick):
        s.e, s.cfg, s.reg, s.tick, s.n, s.cur = e, cfg, reg, tick, 0, -1
    def __call__(s, label=""):
        if s.cfg.prof and s.cur == s.tick and s.n < 12:
            s.e.raw("    s_memtime s[96:97]")
            s.e.raw("    s_waitcnt lgkmcnt(0)")
            s.e.lgkm = []
            s.e.raw(f"    v_writelane_b32 v{s.reg}, s96, {s.n}")
            print("fine", s.reg, s.n, label, file=sys.stderr)
            s.n += 1

def gen_B(cfg, S):
    e = Em('B')
    e.skip = cfg.skipB; e.skiptile = cfg.skiptile
    dreg = dict(K=[1, 2, 3], WQ=[4, 5, 6], V=[8, 9])
    kA = [10, 11]; vA = [12, 13, 14, 15]; oA = [16, 17, 18, 19]; TT = [20, 21, 22, 23]; TU = [7, 26 + 0, 30, 31]
    vm, vmc, vinvl, t0, t1, t2 = 24, 25, 26, 27, 28, 29
    ONES = 32; LACC = 36; OACC = 40; QF = 56; FR = 80; SB = 128
    qt = [27, 28]
    fine = Fine(e, cfg, 29, cfg.fineB)
    e.label("L_B")
    dreg['X'] = [20, 21]
    calc_dX(e, dreg['X'], t0, t1)
    calc_dWQ(e, dreg['WQ'], t0, t1, t2)
    rest, lst = build_srds(e, cfg, 'X')
    lst['WQ'](); rest.remove('WQ')
    issue, needB = plan(S, 'B')
    cons = {}
    for t in S['H']:
        cons.setdefault(t.consume[0], []).append(t)
    pfitems = []
    PFA = 7
    def mk_wo(hd, i, reg):
        def f():
            e.salu(f"s_mul_i32 s{S_T0}, s{S_B}, 15360")
            e.salu(f"s_add_u32 s{S_T0}, s{S_T0}, s{S_W1024}")
            e.salu(f"s_add_u32 s{S_T1}, s{S_T0}, {hd*245760 + i*4096}")
            e.I(f"buffer_load_dwordx4 {vr(reg, 4)}, v{PFA}, s[{SRD_WO}:{SRD_WO+3}], s{S_T1} offen{cfg.nt_pf}", 'vload', w=R(reg, 4), r=[PFA])
        return f
    def mk_wq(rb, p, reg):
        def f():
            e.salu(f"s_mul_i32 s{S_T0}, s{S_B}, {40*12288}")
            e.salu(f"s_add_u32 s{S_T0}, s{S_T0}, s{S_WQCOL}")
            e.salu(f"s_add_u32 s{S_T0}, s{S_T0}, {384 + rb*12288}")
            off = f" offset:{1024*p}" if p else ""
            if rb == 8 and cfg.pf_wq_trim:
                e.raw(f"    s_cmp_eq_u32 s{S_W}, 3")
                e.raw(f"    s_cbranch_scc0 L_pfskip{p}")
                e.raw(f"    buffer_load_dwordx4 {vr(reg, 4)}, v{dreg['WQ'][p]}, s[{SRD_WQ}:{SRD_WQ+3}], s{S_T0} offen{off}{cfg.nt_pf}")
                e.raw(f"L_pfskip{p}:")
                return
            e.I(f"buffer_load_dwordx4 {vr(reg, 4)}, v{dreg['WQ'][p]}, s[{SRD_WQ}:{SRD_WQ+3}], s{S_T0} offen{off}{cfg.nt_pf}", 'vload', w=R(reg, 4), r=[dreg['WQ'][p]])
        return f
    wq_items = [mk_wq(rb, p, SB + 12 * (rb // 8) + 4 * p) for rb in (0, 8) for p in range(3)]
    wo_items = [mk_wo(hd, i, (OACC + 4 * i) if hd == 0 else cfg.pf_dst1(SB, i)) for hd in range(2) for i in range(4)]
    allitems = (wq_items if cfg.pf_wq else []) + wo_items
    pfplan = {}
    for n, it in enumerate(allitems):
        pfplan.setdefault(cfg.pf_ticks[min(n, len(cfg.pf_ticks) - 1)], []).append(it)
    def tlb_touch():
        tg = {'K': (SRD_K, 16, ' nt'), 'V': (SRD_V, 16, ' nt'), 'P': (SRD_P, 12, ' nt')}
        for n, k in enumerate(cfg.tlb):
            srd_, sh, fl = tg[k]
            e.raw(f"    s_cmp_eq_u32 s{S_W}, {n}")
            e.raw(f"    s_cbranch_scc0 L_tlb{n}")
            e.raw(f"    v_lshlrev_b32 v{cfg.tlb_reg}, {sh}, v0")
            e.raw(f"    buffer_load_dword v{cfg.tlb_reg+1}, v{cfg.tlb_reg}, s[{srd_}:{srd_+3}], 0 offen{fl}")
            e.raw(f"L_tlb{n}:")
    def touch2_setup():
        st = cfg.touch2_stride
        ta, tb, tc, td = SB + 104, SB + 105, SB + 106, SB + 107
        nwo = 15360 // st; per_row = 384 // st; nwq = 40 * per_row
        V(e, f"v_add_u32 v{ta}, s{S_W64}, v0", [ta], [0])
        V(e, f"v_mov_b32 v{td}, 0x7fffff00", [td])
        e.salu(f"s_mul_i32 s{S_T0}, s{S_B}, 15360")
        V(e, f"v_mul_u32_u24 v{tb}, {st}, v{ta}", [tb], [ta])
        V(e, f"v_add_u32 v{tb}, s{S_T0}, v{tb}", [tb], [tb])
        V(e, f"v_cmp_gt_u32 vcc, {nwo}, v{ta}", ['vcc'], [ta])
        e.valu(f"v_cndmask_b32 v{tb}, v{td}, v{tb}, vcc", w=[tb], r=[td, tb, 'vcc'])
        mul, sh = {6: (171, 10), 3: (171, 9)}[per_row]
        V(e, f"v_mul_u32_u24 v{tc}, {mul}, v{ta}", [tc], [ta])
        V(e, f"v_lshrrev_b32 v{tc}, {sh}, v{tc}", [tc], [tc])
        V(e, f"v_mul_u32_u24 v{SB+108}, {per_row}, v{tc}", [SB+108], [tc])
        V(e, f"v_sub_u32 v{SB+108}, v{ta}, v{SB+108}", [SB+108], [ta, SB+108])
        V(e, f"v_mul_u32_u24 v{SB+108}, {st}, v{SB+108}", [SB+108], [SB+108])
        V(e, f"v_mul_u32_u24 v{tc}, 12288, v{tc}", [tc], [tc])
        V(e, f"v_add_u32 v{tc}, v{tc}, v{SB+108}", [tc], [tc, SB+108])
        e.salu(f"s_mul_i32 s{S_T0}, s{S_B}, {40*12288}")
        e.salu(f"s_add_u32 s{S_T0}, s{S_T0}, s{S_WQCOL}")
        e.salu(f"s_add_u32 s{S_T0}, s{S_T0}, 384")
        V(e, f"v_add_u32 v{tc}, s{S_T0}, v{tc}", [tc], [tc])
        V(e, f"v_cmp_gt_u32 vcc, {nwq}, v{ta}", ['vcc'], [ta])
        e.valu(f"v_cndmask_b32 v{tc}, v{td}, v{tc}, vcc", w=[tc], r=[td, tc, 'vcc'])
    def touch2_issue():
        tb, tc = SB + 105, SB + 106
        if 'q' in cfg.touch2:
            e.I(f"buffer_load_dword v{SB+110}, v{tc}, s[{SRD_WQ}:{SRD_WQ+3}], 0 offen", 'vload', w=[SB+110], r=[tc])
        if 'o' in cfg.touch2:
            e.salu(f"s_mov_b32 s{S_T1}, 245760")
            e.I(f"buffer_load_dword v{SB+111}, v{tb}, s[{SRD_WO}:{SRD_WO+3}], 0 offen", 'vload', w=[SB+111], r=[tb])
            e.I(f"buffer_load_dword v{SB+112}, v{tb}, s[{SRD_WO}:{SRD_WO+3}], s{S_T1} offen", 'vload', w=[SB+112], r=[tb])
    def do_issue(tk):
        for n, t in enumerate(issue.get(tk, [])):
            if tk == 0 and cfg.touch2 and cfg.touch2_tick == 0 and n == cfg.touch2_pos:
                lst['WO'](); rest.remove('WO')
                touch2_setup(); touch2_issue()
            dma_tile(e, t, cfg, dreg)
        if tk > 0:
            for it in pfplan.get(tk, []): it()
        if tk > 0 and cfg.touch2 and cfg.touch2_tick == tk:
            touch2_setup(); touch2_issue()
        if cfg.tlb and tk == cfg.tlb_tick and tk > 0: tlb_touch()
        if tk > 0 and cfg.smem_pf:
            for _ in range(cfg.smem_per if tk < 10 else 99):
                if smem_list:
                    d, o = smem_list.pop(0); e.raw(f"    s_load_dword s95, s[{d}:{d+1}], {o}")
    stamp(e, cfg, 1)
    if cfg.pf_first:
        lst['WO'](); rest.remove('WO')
        V(e, f"v_lshlrev_b32 v{PFA}, 4, v0", [PFA], [0])
        p0 = pfplan.get(0, [])
        for it in p0[:cfg.pf_first]: it()
        pfplan[0] = p0[cfg.pf_first:]
    do_issue(0)
    stamp(e, cfg, 2)
    for k in rest: lst[k]()
    V(e, f"v_lshlrev_b32 v{PFA}, 4, v0", [PFA], [0])
    for it in pfplan.get(0, []): it()
    smem_list = []
    if cfg.smem_pf:
        def sbase(d, woff, const):
            e.salu(f"s_mul_i32 s{S_T0}, s{S_B}, 15360")
            e.salu(f"s_add_u32 s{S_T0}, s{S_T0}, s{S_OWO}")
            e.salu(f"s_mul_i32 s{S_T1}, s{S_W}, {woff}")
            e.salu(f"s_add_u32 s{S_T0}, s{S_T0}, s{S_T1}")
            e.salu(f"s_add_u32 s{S_T0}, s{S_T0}, {const}")
            e.salu(f"s_add_u32 s{d}, s{S_PTR+8}, s{S_T0}")
            e.salu(f"s_addc_u32 s{d+1}, s{S_PTR+9}, 0")
        sbase(14, 3840, 0); sbase(98, 1920, 245760)
        smem_list = [(14, i * 128) for i in range(30)] + [(98, i * 128) for i in range(15)]
        for _ in range(cfg.smem_first):
            d, o = smem_list.pop(0); e.raw(f"    s_load_dword s95, s[{d}:{d+1}], {o}")
    if cfg.tlb and cfg.tlb_tick == 0: tlb_touch()
    calc_dK(e, dreg['K'], t0, t1)
    calc_dV(e, dreg['V'], t0, t1)
    V(e, f"v_and_b32 v{t0}, 15, v0", [t0], [0])
    V(e, f"v_lshrrev_b32 v{t1}, 1, v{t0}", [t1], [t0])
    V(e, f"v_lshrrev_b32 v{t2}, 4, v0", [t2], [0])
    V(e, f"v_xor_b32 v{t2}, v{t2}, v{t1}", [t2], [t1, t2])
    V(e, f"v_lshlrev_b32 v{t2}, 4, v{t2}", [t2], [t2])
    V(e, f"v_mul_u32_u24 v{kA[0]}, 384, v{t0}", [kA[0]], [t0])
    V(e, f"v_add_u32 v{kA[0]}, v{kA[0]}, v{t2}", [kA[0]], [kA[0], t2])
    V(e, f"v_xor_b32 v{t2}, 64, v{t2}", [t2], [t2])
    V(e, f"v_mul_u32_u24 v{kA[1]}, 384, v{t0}", [kA[1]], [t0])
    V(e, f"v_add_u32 v{kA[1]}, v{kA[1]}, v{t2}", [kA[1]], [kA[1], t2])
    V(e, f"v_lshlrev_b32 v{t2}, 7, v{t0}", [t2], [t0])
    V(e, f"v_add_u32 v{t2}, s{S_W2048}, v{t2}", [t2], [t2])
    V(e, f"v_add_u32 v{t2}, {cfg.OB}, v{t2}", [t2], [t2])
    V(e, f"v_lshrrev_b32 v{vm}, 4, v0", [vm], [0])
    V(e, f"v_and_b32 v{vmc}, 1, v{vm}", [vmc], [vm])
    V(e, f"v_lshlrev_b32 v{vmc}, 3, v{vmc}", [vmc], [vmc])
    V(e, f"v_add_u32 v{t2}, v{t2}, v{vmc}", [t2], [t2, vmc])
    V(e, f"v_lshrrev_b32 v{vm}, 1, v{vm}", [vm], [vm])
    for dt in range(4):
        V(e, f"v_add_u32 v{vmc}, {2*dt}, v{vm}", [vmc], [vm])
        V(e, f"v_xor_b32 v{vmc}, v{vmc}, v{t1}", [vmc], [vmc, t1])
        V(e, f"v_lshlrev_b32 v{vmc}, 4, v{vmc}", [vmc], [vmc])
        V(e, f"v_add_u32 v{oA[dt]}, v{t2}, v{vmc}", [oA[dt]], [t2, vmc])
    V(e, f"v_lshrrev_b32 v{t0}, 2, v0", [t0], [0])
    V(e, f"v_and_b32 v{t1}, 6, v{t0}", [t1], [t0])
    V(e, f"v_lshlrev_b32 v{t0}, 7, v{t0}", [t0], [t0])
    V(e, f"v_and_b32 v{t2}, 3, v0", [t2], [0])
    V(e, f"v_lshlrev_b32 v{t2}, 3, v{t2}", [t2], [t2])
    V(e, f"v_add_u32 v{t0}, v{t0}, v{t2}", [t0], [t0, t2])
    for dt in range(4):
        V(e, f"v_xor_b32 v{t2}, {2*dt}, v{t1}", [t2], [t1])
        V(e, f"v_lshlrev_b32 v{t2}, 4, v{t2}", [t2], [t2])
        V(e, f"v_add_u32 v{vA[dt]}, v{t0}, v{t2}", [vA[dt]], [t0, t2])
    for i in range(4):
        V(e, f"v_mov_b32 v{ONES+i}, 0x3f803f80", [ONES + i])

    def load_qfrags(qb):
        V(e, f"v_add_u32 v{qt[0]}, s{S_W6144}, v{kA[0]}", [qt[0]], [kA[0]])
        V(e, f"v_add_u32 v{qt[1]}, s{S_W6144}, v{kA[1]}", [qt[1]], [kA[1]])
        if qb:
            V(e, f"v_add_u32 v{qt[0]}, {qb}, v{qt[0]}", [qt[0]], [qt[0]])
            V(e, f"v_add_u32 v{qt[1]}, {qb}, v{qt[1]}", [qt[1]], [qt[1]])
        for s in range(6):
            dsr128(e, QF + 4 * s, qt[s % 2], (s // 2) * 128)

    def maxtile(jt):
        b = SB + 8 * jt
        if jt == 0:
            e.valu(f"v_max3_f32 v{vm}, v{b}, v{b+1}, v{b+2}", w=[vm], r=[b, b + 1, b + 2])
            e.valu(f"v_max3_f32 v{vm}, v{vm}, v{b+3}, v{b+4}", w=[vm], r=[vm, b + 3, b + 4])
            e.valu(f"v_max3_f32 v{vm}, v{vm}, v{b+5}, v{b+6}", w=[vm], r=[vm, b + 5, b + 6])
            e.valu(f"v_max_f32 v{vm}, v{vm}, v{b+7}", w=[vm], r=[vm, b + 7])
        else:
            for i in range(4):
                e.valu(f"v_max3_f32 v{vm}, v{vm}, v{b+2*i}, v{b+2*i+1}", w=[vm], r=[vm, b + 2 * i, b + 2 * i + 1])

    def maxlist(jt):
        b = SB + 8 * jt
        out = []
        if jt == 0:
            out.append(lambda: e.valu(f"v_max3_f32 v{vm}, v{b}, v{b+1}, v{b+2}", w=[vm], r=[b, b + 1, b + 2]))
            out.append(lambda: e.valu(f"v_max3_f32 v{vm}, v{vm}, v{b+3}, v{b+4}", w=[vm], r=[vm, b + 3, b + 4]))
            out.append(lambda: e.valu(f"v_max3_f32 v{vm}, v{vm}, v{b+5}, v{b+6}", w=[vm], r=[vm, b + 5, b + 6]))
            out.append(lambda: e.valu(f"v_max_f32 v{vm}, v{vm}, v{b+7}", w=[vm], r=[vm, b + 7]))
        else:
            for i in range(4):
                out.append(lambda i=i: e.valu(f"v_max3_f32 v{vm}, v{vm}, v{b+2*i}, v{b+2*i+1}", w=[vm], r=[vm, b + 2 * i, b + 2 * i + 1]))
        return out

    def qk2(ta, tb, tk):
        if ta.j == 0 and ta.hd == 0:
            load_qfrags(cfg.Q0B)
        for n, t in enumerate((ta, tb)):
            V(e, f"v_add_u32 v{TT[2*n]}, {t.addr}, v{kA[0]}", [TT[2*n]], [kA[0]])
            V(e, f"v_add_u32 v{TT[2*n+1]}, {t.addr}, v{kA[1]}", [TT[2*n+1]], [kA[1]])
        pairs = [(n, tp, s_) for n in range(2) for s_ in range(6) for tp in range(2)]
        def rd(i):
            n, tp, s_ = pairs[i]
            dsr128(e, FR + 4 * (i % 12), TT[2 * n + s_ % 2], tp * 6144 + (s_ // 2) * 128)
        def mm(i):
            n, tp, s_ = pairs[i]
            t = (ta, tb)[n]
            d = SB + 4 * (2 * t.j + tp)
            mfma16(e, d, FR + 4 * (i % 12), QF + 4 * s_, None if s_ == 0 else d)
        for i in range(12): rd(i)
        if cfg.b_pos == 0: do_issue(tk)
        mx = []
        if ta.j > 0:
            mx = maxlist(ta.j - 2) + maxlist(ta.j - 1)
        for i in range(24):
            mm(i)
            if i + 12 < 24: rd(i + 12)
            if i < len(mx): mx[i]()
            if cfg.b_pos == 1 and i == 5: do_issue(tk)
            if cfg.b_pos == 2 and i == 11: do_issue(tk)
        if cfg.b_pos == 3: do_issue(tk)

    def softmax_fin():
        maxtile(14); maxtile(15)
        V(e, f"v_mov_b32 v{t0}, v{vm}", [t0], [vm])
        e.I(f"v_permlane32_swap_b32 v{t0}, v{vm}", 'permlane', w=[t0, vm], r=[t0, vm])
        V(e, f"v_max_f32 v{vm}, v{vm}, v{t0}", [vm], [vm, t0])
        V(e, f"v_mov_b32 v{t0}, v{vm}", [t0], [vm])
        e.I(f"v_permlane16_swap_b32 v{t0}, v{vm}", 'permlane', w=[t0, vm], r=[t0, vm])
        V(e, f"v_max_f32 v{vm}, v{vm}, v{t0}", [vm], [vm, t0])
        V(e, f"v_mul_f32 v{vmc}, s{S_C}, v{vm}", [vmc], [vm])

    def expstep(sp):
        b = SB + 8 * sp
        for i in range(8):
            e.valu(f"v_fma_f32 v{b+i}, v{b+i}, s{S_C}, -v{vmc}", w=[b + i], r=[b + i, vmc])
        for i in range(8):
            e.I(f"v_exp_f32 v{b+i}, v{b+i}", 'trans', w=[b + i], r=[b + i])
        for i in range(4):
            cvtpk(e, b + i, b + 2 * i, b + 2 * i + 1)

    def explist(sp):
        b = SB + 8 * sp
        out = []
        for i in range(8):
            out.append(lambda i=i: e.valu(f"v_fma_f32 v{b+i}, v{b+i}, s{S_C}, -v{vmc}", w=[b + i], r=[b + i, vmc]))
        for i in range(8):
            out.append(lambda i=i: e.I(f"v_exp_f32 v{b+i}, v{b+i}", 'trans', w=[b + i], r=[b + i]))
        for i in range(4):
            out.append(lambda i=i: cvtpk(e, b + i, b + 2 * i, b + 2 * i + 1))
        return out

    def pv2(ta, tb, tk):
        sl = ta.sl
        last = (tb.j == 7)
        if tk == S['tQ1'] + 1:
            load_qfrags(cfg.Q1B)
        AR = [TT, [4, 5, 6, 7]]
        for n, t in enumerate((ta, tb)):
            for dt in range(4):
                V(e, f"v_add_u32 v{AR[n][dt]}, {t.addr}, v{vA[dt]}", [AR[n][dt]], [vA[dt]])
        pairs = [(q, dt) for q in range(4) for dt in range(4)]
        def rd(i):
            q, dt = pairs[i]
            n, ks = q // 2, q % 2
            for h in range(2):
                dsrtr(e, FR + 4 * (i % 12) + 2 * h, AR[n][dt], ks * 4096 + h * 2048)
        def mm(i):
            q, dt = pairs[i]
            P = SB + 8 * (2 * ta.j + q)
            first = (ta.j == 0 and q == 0)
            mfma16(e, OACC + 4 * dt, FR + 4 * (i % 12), P, None if first else OACC + 4 * dt)
            if sl == 0 and dt == 3:
                mfma16(e, LACC, ONES, P, None if first else LACC)
        for i in range(12): rd(i)
        if cfg.b_pos == 0: do_issue(tk)
        if sl == 0:
            if ta.j == 0:
                softmax_fin_deferred()
                for f in explist(0): f()
            elif not cfg.exp_ahead:
                for f in explist(2 * ta.j): f()
        for q in range(4):
            nxt = []
            if sl == 0:
                sp_next = 2 * ta.j + q + 1
                if q < 3 or (cfg.exp_ahead and sp_next < 16):
                    nxt = explist(sp_next)
            for dt in range(4):
                i = 4 * q + dt
                mm(i)
                if i + 12 < 16: rd(i + 12)
                for f in nxt[5 * dt:5 * dt + 5]: f()
            if cfg.b_pos == q + 1: do_issue(tk)
        if last:
            if sl == 0:
                e.I(f"v_rcp_f32 v{vinvl}, v{LACC}", 'trans', w=[vinvl], r=[LACC])
            for dt in range(4):
                o = OACC + 4 * dt
                for i in range(4):
                    V(e, f"v_mul_f32 v{o+i}, v{o+i}, v{vinvl}", [o + i], [o + i, vinvl])
                cvtpk(e, o, o, o + 1)
                cvtpk(e, o + 1, o + 2, o + 3)
                dsw64(e, oA[dt], o, 0)

    def softmax_fin_deferred():
        maxtile(14); maxtile(15)
        u = 27
        V(e, f"v_mov_b32 v{u}, v{vm}", [u], [vm])
        e.I(f"v_permlane32_swap_b32 v{u}, v{vm}", 'permlane', w=[u, vm], r=[u, vm])
        V(e, f"v_max_f32 v{vm}, v{vm}, v{u}", [vm], [vm, u])
        V(e, f"v_mov_b32 v{u}, v{vm}", [u], [vm])
        e.I(f"v_permlane16_swap_b32 v{u}, v{vm}", 'permlane', w=[u, vm], r=[u, vm])
        V(e, f"v_max_f32 v{vm}, v{vm}, v{u}", [vm], [vm, u])
        V(e, f"v_mul_f32 v{vmc}, s{S_C}, v{vm}", [vmc], [vm])

    for tk in range(0, S['nticks']):
        if tk > 0:
            e.comment(f"---- B tick {tk}")
            if cfg.prof:
                e.raw("    s_memtime s[80:81]")
                e.raw("    s_waitcnt lgkmcnt(0)")
                e.lgkm = []
            e.barrier()
            if cfg.prof:
                e.raw(f"    v_writelane_b32 v31, s80, {tk}")
            ts = cons.get(tk)
            fine.cur = tk
            if ts is None:
                do_issue(tk)
            elif ts[0].kind == 'k':
                qk2(ts[0], ts[1], tk)
            else:
                pv2(ts[0], ts[1], tk)
        if tk == 0: stamp(e, cfg, 3)
        lstamp2(e, cfg, 1, 0, tk, S)
        for t in needB.get(tk + 1, []):
            e.wait_tile(t)
        lstamp2(e, cfg, 1, 1, tk, S)
        if tk == 0: stamp(e, cfg, 4)
    if cfg.prof:
        e.raw("    s_memtime s[80:81]")
        e.raw("    s_waitcnt lgkmcnt(0)")
        e.raw(f"    v_writelane_b32 v31, s80, 63")
        e.raw(f"    v_writelane_b32 v31, s82, 0")
        for n in range(5):
            e.raw(f"    v_writelane_b32 v31, s{STAMPS[n]}, {56+n}")
        e.raw(f"    s_lshl_b32 s84, s{S_WG}, 3")
        e.raw(f"    s_add_u32 s84, s84, s{S_WAVE}")
        e.raw(f"    s_lshl_b32 s84, s84, 10")
        e.raw(f"    s_add_u32 s84, s84, {64<<20}")
        e.raw(f"    s_add_u32 s88, s{S_PTR+14}, s84")
        e.raw(f"    s_addc_u32 s89, s{S_PTR+15}, 0")
        e.raw(f"    s_and_b32 s89, s89, 0xffff")
        e.raw(f"    s_mov_b32 s90, 1024")
        e.raw(f"    s_mov_b32 s91, 0x20000")
        e.raw(f"    v_lshlrev_b32 v28, 2, v0")
        e.raw(f"    buffer_store_dword v31, v28, s[88:91], 0 offen")
        e.raw(f"    buffer_store_dword v29, v28, s[88:91], 0 offen offset:256")
        e.raw(f"    buffer_store_dword v30, v28, s[88:91], 0 offen offset:512")
    if cfg.inred:
        e.raw("    s_barrier")
        e.raw(f"    s_cmp_eq_u32 s{S_W}, 0")
        e.raw("    s_cbranch_scc0 L_Bwait")
        e.raw(f"    s_lshl_b32 s56, s{S_B}, 4")
        e.raw(f"    s_add_u32 s58, s{S_PTR+12}, s56")
        e.raw(f"    s_addc_u32 s59, s{S_PTR+13}, 0")
        e.raw("    v_mov_b32 v2, 0")
        e.raw("    v_mov_b32 v3, 1")
        e.raw("    s_mov_b64 s[60:61], exec")
        e.raw("    s_mov_b64 exec, 1")
        e.raw("    global_atomic_add v2, v3, s[58:59]")
        e.raw("    s_mov_b32 s62, 0")
        e.raw("L_poll:")
        e.raw("    global_load_dword v4, v2, s[58:59] sc1")
        e.raw("    s_waitcnt vmcnt(0)")
        e.raw("    v_readfirstlane_b32 s63, v4")
        e.raw("    s_add_u32 s62, s62, 1")
        e.raw("    s_nop 2")
        e.raw("    s_cmp_ge_u32 s63, 16")
        e.raw("    s_cbranch_scc1 L_polldone")
        e.raw(f"    s_cmp_ge_u32 s62, {cfg.spin_max}")
        e.raw("    s_cbranch_scc1 L_polldone")
        e.raw("    s_sleep 1")
        e.raw("    s_branch L_poll")
        e.raw("L_polldone:")
        e.raw("    s_mov_b64 exec, s[60:61]")
        e.raw("L_Bwait:")
        e.raw("    s_barrier")
        e.raw(f"    s_mov_b32 s56, s{S_W}")
        e.raw("    s_branch L_RED")
        e.nbar += 2
    else:
        e.raw("    s_endpgm")
    return e

def lstamp2(e, cfg, grp, kind, tk, S):
    if not cfg.prof or tk > 62 or tk < cfg.prof_from: return
    if cfg.h_pol is not None and grp == 0 and kind == 0: return
    e.raw("    s_memtime s[96:97]")
    e.raw("    s_waitcnt lgkmcnt(0)")
    e.lgkm = []
    reg = {(0, 0): 91, (0, 1): 92, (1, 0): 29, (1, 1): 30}[(grp, kind)]
    if cfg.h_pol is not None and grp == 0:
        reg = 95
    e.raw(f"    v_writelane_b32 v{reg}, s96, {tk}")

def gen_A(cfg, S):
    e = Em('A')
    e.skip = cfg.skipA; e.skiptile = cfg.skiptile
    e.label("L_A")
    dreg = dict(K=[90, 91, 92], V=[93, 94], WQ=[4, 5, 6], X=[88, 89])
    wA = [7, 8, 9]; xA = [10, 11, 90, 91]; t0, t1, t2, t3 = 12, 13, 14, 15
    QACC = 32; XR = 96
    FS = [16, 20, 24, 28, 80, 84]
    rest, lst = build_srds(e, cfg, 'WQ')
    issue, needA = plan(S, 'A')
    touches = {}
    if cfg.touch:
        touches.setdefault(cfg.touch_wq1, []).append(('wq1',))
        for t in S['WO']:
            if t.a == 0:
                touches.setdefault(max(cfg.touch_wq1 + 1, t.issue - cfg.touch_wo_lead), []).append(('wo', t.hd, t.sl))
    def do_issue(tk, part='all'):
        for t in issue.get(tk, []):
            early = (t.consume[0] - t.issue) <= cfg.early_lead and tk > cfg.a_end_until
            if cfg.w_end and t.kind in ('wo', 'wq1'): early = False
            if part == 'all' or (part == 'start') == early:
                dma_tile(e, t, cfg, dreg)
        if part == 'start': return
        for tc in touches.get(tk, []):
            if tc[0] == 'wq1':
                e.salu(f"s_mul_i32 s{S_T0}, s{S_B}, {40*12288}")
                e.salu(f"s_add_u32 s{S_T0}, s{S_T0}, s{S_WQCOL}")
                e.salu(f"s_add_u32 s{S_T0}, s{S_T0}, 384")
                e.I(f"buffer_load_dword v93, v94, s[{SRD_WQ}:{SRD_WQ+3}], s{S_T0} offen", 'vload', w=[93], r=[94])
            else:
                e.salu(f"s_mul_i32 s{S_T0}, s{S_B}, {40*128}")
                e.salu(f"s_add_u32 s{S_T0}, s{S_T0}, {(tc[1]*192 + 64*tc[2])*1280}")
                e.I(f"buffer_load_dword v93, v95, s[{SRD_WO}:{SRD_WO+3}], s{S_T0} offen", 'vload', w=[93], r=[95])
    stamp(e, cfg, 1)
    do_issue(0)
    stamp(e, cfg, 2)
    for k in rest: lst[k]()
    if cfg.smem_pf:
        e.salu(f"s_mul_i32 s{S_T0}, s{S_B}, 15360")
        e.salu(f"s_add_u32 s{S_T0}, s{S_T0}, s{S_OWO}")
        e.salu(f"s_mul_i32 s{S_T1}, s{S_W}, 1920")
        e.salu(f"s_add_u32 s{S_T0}, s{S_T0}, s{S_T1}")
        e.salu(f"s_add_u32 s{S_T0}, s{S_T0}, {245760 + 7680}")
        e.salu(f"s_add_u32 s14, s{S_PTR+8}, s{S_T0}")
        e.salu(f"s_addc_u32 s15, s{S_PTR+9}, 0")
        for i in range(15):
            e.raw(f"    s_load_dword s95, s[14:15], {i*128}")
    if cfg.touch:
        V(e, f"v_add_u32 v{t0}, s{S_W64}, v0", [t0], [0])
        V(e, f"v_mul_u32_u24 v{t1}, 171, v{t0}", [t1], [t0])
        V(e, f"v_lshrrev_b32 v{t1}, 9, v{t1}", [t1], [t1])
        V(e, f"v_mul_u32_u24 v{t2}, 3, v{t1}", [t2], [t1])
        V(e, f"v_sub_u32 v{t2}, v{t0}, v{t2}", [t2], [t0, t2])
        V(e, f"v_lshlrev_b32 v{t2}, 7, v{t2}", [t2], [t2])
        e.salu(f"s_mov_b32 s{S_T1}, 12288")
        V(e, f"v_mul_lo_u32 v{t1}, v{t1}, s{S_T1}", [t1], [t1])
        V(e, f"v_add_u32 v{t1}, v{t1}, v{t2}", [t1], [t1, t2])
        V(e, f"v_cmp_gt_u32 vcc, 120, v{t0}", ['vcc'], [t0])
        V(e, f"v_mov_b32 v{t2}, 0x7fffffff", [t2])
        e.valu(f"v_cndmask_b32 v94, v{t2}, v{t1}, vcc", w=[94], r=[t1, t2, 'vcc'])
        V(e, f"v_lshlrev_b32 v{t1}, 7, v{t0}", [t1], [t0])
        V(e, f"v_cmp_gt_u32 vcc, 40, v{t0}", ['vcc'], [t0])
        e.valu(f"v_cndmask_b32 v95, v{t2}, v{t1}, vcc", w=[95], r=[t1, t2, 'vcc'])
    calc_dWQ(e, dreg['WQ'], t0, t1, t2)
    V(e, f"v_lshrrev_b32 v{t0}, 5, v0", [t0], [0])
    V(e, f"v_lshlrev_b32 v{t0}, 3, v{t0}", [t0], [t0])
    V(e, f"v_bfe_u32 v{t1}, v0, 2, 2", [t1], [0])
    V(e, f"v_add_u32 v{t0}, v{t0}, v{t1}", [t0], [t0, t1])
    V(e, f"v_mul_u32_u24 v{t0}, 384, v{t0}", [t0], [t0])
    V(e, f"v_and_b32 v{t2}, 1, v0", [t2], [0])
    V(e, f"v_lshlrev_b32 v{t2}, 3, v{t2}", [t2], [t2])
    V(e, f"v_add_u32 v{t0}, v{t0}, v{t2}", [t0], [t0, t2])
    V(e, f"v_and_b32 v{t1}, 2, v{t1}", [t1], [t1])
    V(e, f"v_lshlrev_b32 v{t1}, 1, v{t1}", [t1], [t1])
    V(e, f"v_bfe_u32 v{t2}, v0, 4, 1", [t2], [0])
    V(e, f"v_lshlrev_b32 v{t2}, 1, v{t2}", [t2], [t2])
    V(e, f"v_bfe_u32 v{t3}, v0, 1, 1", [t3], [0])
    V(e, f"v_add_u32 v{t2}, v{t2}, v{t3}", [t2], [t2, t3])
    V(e, f"v_add_u32 v{t2}, s{S_DH12}, v{t2}", [t2], [t2])
    for j in range(3):
        V(e, f"v_add_u32 v{t3}, {4*j}, v{t2}", [t3], [t2])
        V(e, f"v_xor_b32 v{t3}, v{t3}, v{t1}", [t3], [t3, t1])
        V(e, f"v_lshlrev_b32 v{t3}, 4, v{t3}", [t3], [t3])
        V(e, f"v_add_u32 v{wA[j]}, v{t0}, v{t3}", [wA[j]], [t0, t3])
    e.salu(f"s_and_b32 s{S_T0}, s{S_W}, 1")
    e.salu(f"s_lshl_b32 s{S_T1}, s{S_T0}, 5")
    V(e, f"v_and_b32 v{t0}, 31, v0", [t0], [0])
    V(e, f"v_add_u32 v{t0}, s{S_T1}, v{t0}", [t0], [t0])
    V(e, f"v_bfe_u32 v{t1}, v{t0}, 1, 3", [t1], [t0])
    V(e, f"v_lshrrev_b32 v{t2}, 5, v0", [t2], [0])
    V(e, f"v_lshlrev_b32 v{t0}, 7, v{t0}", [t0], [t0])
    V(e, f"v_add_u32 v{t0}, {cfg.xbase}, v{t0}", [t0], [t0])
    for m in range(4):
        V(e, f"v_add_u32 v{t3}, {2*m}, v{t2}", [t3], [t2])
        V(e, f"v_xor_b32 v{t3}, v{t3}, v{t1}", [t3], [t3, t1])
        V(e, f"v_lshlrev_b32 v{t3}, 4, v{t3}", [t3], [t3])
        V(e, f"v_add_u32 v{xA[m]}, v{t0}, v{t3}", [xA[m]], [t0, t3])

    consA = {}
    for t in S['W0'] + S['W1t']:
        consA.setdefault(t.consume[0], []).append(t)
    woc = {}
    for t in S['WO']:
        woc.setdefault(t.consume[0], []).append(t)

    st = {'wB': False}
    wBr = [t0, t1, t2]
    def qproj2(ts, tk):
        regs = []
        for n, t in enumerate(ts):
            if t.addr + 12288 > 65536:
                if not st['wB']:
                    for j in range(3):
                        V(e, f"v_add_u32 v{wBr[j]}, 32768, v{wA[j]}", [wBr[j]], [wA[j]])
                    st['wB'] = True
                regs.append((wBr, t.addr - 32768))
            else:
                regs.append((wA, t.addr))
        def reads(q):
            n, s = q // 2, q % 2
            t = ts[n]
            if t.hd == 0:
                m = q
                xo = (t.i // 2) * 8192
                if xo >= 65536:
                    V(e, f"v_add_u32 v{t3}, 65536, v{xA[m]}", [t3], [xA[m]])
                    dsr128(e, XR + 4 * (2 * t.i + s), t3, xo - 65536)
                else:
                    dsr128(e, XR + 4 * (2 * t.i + s), xA[m], xo)
            wr, wb = regs[n]
            for j in range(3):
                for h in range(2):
                    dsrtr(e, FS[3 * (q % 2) + j] + 2 * h, wr[j], wb + s * 16 * 384 + h * 4 * 384)
        def mm(q):
            n, s = q // 2, q % 2
            t = ts[n]
            for j in range(3):
                d = QACC + 16 * j
                mfma32(e, d, FS[3 * (q % 2) + j], XR + 4 * (2 * t.i + s), None if (t.i == 0 and s == 0) else d)
        def rdx_abs(blk, m):
            xo = S['X'][blk].addr - cfg.xbase
            dst = XR + 4 * (4 * blk + m)
            if xo >= 65536:
                V(e, f"v_add_u32 v{t3}, 65536, v{xA[m]}", [t3], [xA[m]])
                dsr128(e, dst, t3, xo - 65536)
            else:
                dsr128(e, dst, xA[m], xo)
        def rdx(q):
            pass
        def rdw(q, j):
            n, s_ = q // 2, q % 2
            wr, wb = regs[n]
            for h in range(2):
                dsrtr(e, FS[3 * (q % 2) + j] + 2 * h, wr[j], wb + s_ * 16 * 384 + h * 4 * 384)
        def mm1(q, j):
            n, s_ = q // 2, q % 2
            t = ts[n]
            d = QACC + 16 * j
            mfma32(e, d, FS[3 * (q % 2) + j], XR + 4 * (2 * t.i + s_), None if (t.i == 0 and s_ == 0) else d)
        extra = []
        if ts[0].hd == 0:
            blks = [t.j for t in S['X'] if t.consume[0] == tk]
            cur = ts[0].i // 2
            if cur in blks:
                for m in range(4): rdx_abs(cur, m)
            extra = [(blk, m) for blk in blks if blk != cur for m in range(4)]
        for j in range(3): rdw(0, j)
        for j in range(3): rdw(1, j)
        do_issue(tk, 'start')
        for q in range(4):
            for j in range(3):
                mm1(q, j)
                if q + 2 < 4: rdw(q + 2, j)
                for _ in range(3):
                    if extra: rdx_abs(*extra.pop(0))
        do_issue(tk, 'end')

    def qfin(qb):
        st['wB'] = False
        e.salu(f"s_and_b32 s{S_T0}, s{S_W}, 1")
        e.salu(f"s_lshl_b32 s{S_T1}, s{S_T0}, 5")
        V(e, f"v_and_b32 v{t0}, 31, v0", [t0], [0])
        V(e, f"v_add_u32 v{t0}, s{S_T1}, v{t0}", [t0], [t0])
        V(e, f"v_bfe_u32 v{t1}, v{t0}, 1, 3", [t1], [t0])
        V(e, f"v_mul_u32_u24 v{t0}, 384, v{t0}", [t0], [t0])
        V(e, f"v_lshrrev_b32 v{t2}, 5, v0", [t2], [0])
        V(e, f"v_lshlrev_b32 v{t2}, 3, v{t2}", [t2], [t2])
        V(e, f"v_add_u32 v{t0}, v{t0}, v{t2}", [t0], [t0, t2])
        if qb:
            V(e, f"v_add_u32 v{t0}, {qb}, v{t0}", [t0], [t0])
        for j in range(3):
            for g in range(4):
                a = QACC + 16 * j + 4 * g
                cvtpk(e, a, a, a + 1)
                cvtpk(e, a + 1, a + 2, a + 3)
                e.salu(f"s_add_u32 s{S_T0}, s{S_DH12}, {4*j+g}")
                tt = t2 if g % 2 == 0 else t3
                V(e, f"v_xor_b32 v{tt}, s{S_T0}, v{t1}", [tt], [t1])
                V(e, f"v_lshl_add_u32 v{tt}, v{tt}, 4, v{t0}", [tt], [tt, t0])
                dsw64(e, tt, a, 0)

    dWO = [1, 2, 3, 88, 89]; woA = [6, 7, 8, 9]; ofA = [10, 11, 12, 13]
    OF = 32
    AS = [48, 52, 56, 60, 64, 68, 72, 76, 80, 84, 88, 92]
    OUT = XR
    def setup_out1():
        calc_dWO(e, dWO, 15, 90)
        dreg['WO'] = dWO
    def setup_out2():
        a0, a1, a2, a3 = 20, 21, 22, 23
        V(e, f"v_lshrrev_b32 v{a0}, 5, v0", [a0], [0])
        V(e, f"v_lshlrev_b32 v{a0}, 3, v{a0}", [a0], [a0])
        V(e, f"v_bfe_u32 v{a1}, v0, 2, 2", [a1], [0])
        V(e, f"v_add_u32 v{a0}, v{a0}, v{a1}", [a0], [a0, a1])
        V(e, f"v_mul_u32_u24 v{a0}, 1280, v{a0}", [a0], [a0])
        V(e, f"v_bfe_u32 v{a2}, v0, 1, 1", [a2], [0])
        V(e, f"v_lshlrev_b32 v{a2}, 3, v{a2}", [a2], [a2])
        V(e, f"v_add_u32 v{a0}, v{a0}, v{a2}", [a0], [a0, a2])
        V(e, f"v_bfe_u32 v{a2}, v0, 4, 1", [a2], [0])
        V(e, f"v_lshlrev_b32 v{a2}, 1, v{a2}", [a2], [a2])
        V(e, f"v_and_b32 v{a3}, 1, v0", [a3], [0])
        V(e, f"v_add_u32 v{a2}, v{a2}, v{a3}", [a2], [a2, a3])
        V(e, f"v_lshl_add_u32 v{a0}, v{a2}, 4, v{a0}", [a0], [a2, a0])
        e.salu(f"s_lshr_b32 s{S_T0}, s{S_W}, 1")
        e.salu(f"s_mul_i32 s{S_T0}, s{S_T0}, 10")
        for j in range(4):
            e.salu(f"s_add_u32 s{S_T1}, s{S_T0}, {j}")
            V(e, f"v_xor_b32 v{a2}, s{S_T1}, v{a1}", [a2], [a1])
            V(e, f"v_lshl_add_u32 v{woA[j]}, v{a2}, 6, v{a0}", [woA[j]], [a2, a0])
        e.salu(f"s_and_b32 s{S_T0}, s{S_W}, 1")
        e.salu(f"s_lshl_b32 s{S_T1}, s{S_T0}, 5")
        V(e, f"v_and_b32 v{a0}, 31, v0", [a0], [0])
        V(e, f"v_add_u32 v{a0}, s{S_T1}, v{a0}", [a0], [a0])
        V(e, f"v_bfe_u32 v{a1}, v{a0}, 1, 3", [a1], [a0])
        V(e, f"v_lshlrev_b32 v{a0}, 7, v{a0}", [a0], [a0])
        V(e, f"v_add_u32 v{a0}, {cfg.OB}, v{a0}", [a0], [a0])
        V(e, f"v_lshrrev_b32 v{a2}, 5, v0", [a2], [0])
        for ss in range(4):
            if cfg.wo_rot:
                e.salu(f"s_add_u32 s{S_T0}, s13, {ss}")
                e.salu(f"s_and_b32 s{S_T0}, s{S_T0}, 3")
                e.salu(f"s_lshl_b32 s{S_T0}, s{S_T0}, 1")
                V(e, f"v_add_u32 v{a3}, s{S_T0}, v{a2}", [a3], [a2])
            else:
                V(e, f"v_add_u32 v{a3}, {2*ss}, v{a2}", [a3], [a2])
            V(e, f"v_xor_b32 v{a3}, v{a3}, v{a1}", [a3], [a3, a1])
            V(e, f"v_lshl_add_u32 v{ofA[ss]}, v{a3}, 4, v{a0}", [ofA[ss]], [a3, a0])

    wost = {}
    def wo_reads(t, js, slots):
        if t.addr + 20480 <= 65536:
            regs, base = woA, t.addr
        else:
            key = t.addr
            if key not in wost:
                sets_ = [[16, 17, 18, 19], [20, 21, 22, 23], [24, 25, 26, 27], [28, 29, 30, 31]]
                idx = wost.get('n', 0)
                regs = sets_[idx % 4]
                for k2 in [k for k, v in wost.items() if k != 'n' and v is regs]:
                    del wost[k2]
                wost['n'] = idx + 1
                for j in range(4):
                    V(e, f"v_add_u32 v{regs[j]}, {t.addr}, v{woA[j]}", [regs[j]], [woA[j]])
                wost[key] = regs
            regs, base = wost[key], 0
        for j, sl in zip(js, slots):
            areg = regs[j % 4]
            for h in range(2):
                dsrtr(e, sl + 2 * h, areg, base + h * 4 * 1280 + (j // 4) * 256)

    def outproj(t, tk):
        first_ever = (t.hd == 0 and t.sl == 0 and t.a == 0)
        if t.a == 0:
            for ss in range(4):
                dsr128(e, OF + 4 * ss, ofA[ss], 0)
        wo_reads(t, list(range(10)), AS[:10])
        do_issue(tk, 'start')
        for j in range(10):
            d = OUT + 16 * j
            mfma32(e, d, AS[j], OF + 4 * t.a, None if first_ever else d)
        do_issue(tk, 'end')

    def outproj_final(ts, tk):
        sl_ = ts[0].sl
        for ss in range(4):
            dsr128(e, OF + 4 * ss, ofA[ss], 0)
        tl = sorted(ts, key=lambda t: t.a)
        sv = 14
        V(e, f"v_lshlrev_b32 v{sv}, 4, v0", [sv], [0])
        e.salu(f"s_mul_i32 s{S_T2}, s{S_W}, {20*1024}")
        sets = [AS[0:4], AS[4:8], AS[8:12]]
        def reads(j):
            for a in range(4):
                wo_reads(tl[a], [j], [sets[j % 3][a]])
        def store(j):
            d = OUT + 16 * j
            for o in range(2):
                b = d + 8 * o
                for i in range(4):
                    cvtpk(e, b + i, b + 2 * i, b + 2 * i + 1)
                e.salu(f"s_add_u32 s{S_T3}, s{S_T2}, {(2*j+o)*1024}")
                e.I(f"buffer_store_dwordx4 {vr(b,4)}, v{sv}, s[{SRD_P}:{SRD_P+3}], s{S_T3} offen{cfg.st_flags}", 'vstore', r=R(b, 4) + [sv])
        reads(0); reads(1)
        for j in range(10):
            if j + 2 < 10:
                reads(j + 2)
            d = OUT + 16 * j
            for a in range(4):
                mfma32(e, d, sets[j % 3][a], OF + 4 * a, d)
            if j >= 2:
                store(j - 2)
        store(8); store(9)

    for tk in range(0, S['nticks']):
        if tk > 0:
            e.comment(f"---- A tick {tk}")
            e.barrier()
            if tk in consA:
                qproj2(consA[tk], tk)
            elif tk == S['tQ0']:
                qfin(cfg.Q0B)
                if cfg.h_pol is not None:
                    calc_dK(e, dreg['K'], t0, t1); calc_dV(e, dreg['V'], t0, t1)
                do_issue(tk); setup_out1()
            elif tk == S['tQ1']:
                qfin(cfg.Q1B)
                do_issue(tk)
            elif tk == S['tQ1'] + 1:
                setup_out2()
                do_issue(tk)
                assert tk not in woc
            elif tk in woc:
                lst_ = woc[tk]
                if len(lst_) == 1:
                    outproj(lst_[0], tk)
                else:
                    do_issue(tk)
                    if cfg.prof:
                        e.raw("    v_lshlrev_b32 v14, 2, v0")
                        e.raw("    v_add_u32 v14, 65536, v14")
                        e.raw(f"    s_lshr_b32 s84, s{S_W1024}, 1")
                        e.raw("    v_add_u32 v14, s84, v14")
                        if cfg.h_pol is not None: e.raw("    v_mov_b32 v92, v95")
                        e.raw("    ds_write_b32 v14, v91 offset:0")
                        e.raw("    ds_write_b32 v14, v92 offset:256")
                        e.raw("    s_waitcnt lgkmcnt(0)")
                    outproj_final(lst_, tk)
                    if cfg.prof:
                        e.raw("    s_waitcnt lgkmcnt(0)")
                        e.lgkm = []
                        e.raw("    v_lshlrev_b32 v15, 2, v0")
                        e.raw("    v_add_u32 v15, 65536, v15")
                        e.raw(f"    s_lshr_b32 s84, s{S_W1024}, 1")
                        e.raw("    v_add_u32 v15, s84, v15")
                        e.raw("    s_waitcnt vmcnt(0)")
                        e.vm = []
                        e.raw("    ds_read_b32 v91, v15 offset:0")
                        e.raw("    ds_read_b32 v92, v15 offset:256")
                        e.raw("    s_waitcnt lgkmcnt(0)")
            else:
                do_issue(tk)
        if tk == 0: stamp(e, cfg, 3)
        if tk < S['nticks'] - 1: lstamp2(e, cfg, 0, 0, tk, S)
        for t in needA.get(tk + 1, []):
            e.wait_tile(t)
        if tk < S['nticks'] - 1: lstamp2(e, cfg, 0, 1, tk, S)
        if tk == 0: stamp(e, cfg, 4)
    if cfg.prof:
        e.raw("    s_memtime s[80:81]")
        e.raw("    s_waitcnt vmcnt(0)")
        e.raw("    s_memtime s[86:87]")
        e.raw("    s_memrealtime s[10:11]")
        e.raw("    s_getreg_b32 s12, hwreg(HW_REG_XCC_ID)")
        e.raw("    s_waitcnt lgkmcnt(0)")
        e.raw(f"    s_lshl_b32 s84, s{S_WG}, 3")
        e.raw(f"    s_add_u32 s84, s84, s{S_WAVE}")
        e.raw(f"    s_lshl_b32 s84, s84, 10")
        e.raw(f"    s_add_u32 s84, s84, {64<<20}")
        e.raw(f"    s_add_u32 s88, s{S_PTR+14}, s84")
        e.raw(f"    s_addc_u32 s89, s{S_PTR+15}, 0")
        e.raw(f"    s_and_b32 s89, s89, 0xffff")
        e.raw(f"    s_mov_b32 s90, 1024")
        e.raw(f"    s_mov_b32 s91, 0x20000")
        e.raw(f"    v_writelane_b32 v91, s82, 0")
        e.raw(f"    v_writelane_b32 v91, s80, 1")
        e.raw(f"    v_writelane_b32 v91, s86, 2")
        e.raw(f"    v_writelane_b32 v91, s8, 8")
        e.raw(f"    v_writelane_b32 v91, s10, 9")
        e.raw(f"    v_writelane_b32 v91, s12, 10")
        for n in range(5):
            e.raw(f"    v_writelane_b32 v91, s{STAMPS[n]}, {3+n}")
        e.raw(f"    v_lshlrev_b32 v28, 2, v0")
        e.raw(f"    buffer_store_dword v91, v28, s[88:91], 0 offen offset:256")
        e.raw(f"    buffer_store_dword v92, v28, s[88:91], 0 offen offset:512")
    if cfg.inred:
        e.raw("    s_waitcnt vmcnt(0)")
        e.raw("    s_barrier")
        e.raw("    s_barrier")
        e.raw(f"    s_cmp_eq_u32 s{S_W}, 0")
        e.raw("    s_cbranch_scc0 L_exit")
        e.raw("    s_mov_b32 s56, 4")
        e.raw("    s_branch L_RED")
        e.nbar += 2
    else:
        e.raw("    s_endpgm")
    return e

def gen_red(cfg):
    L = []
    A = lambda t: L.append("    " + t)
    L.append("L_RED:")
    A(f"s_mul_i32 s57, s{S_HP}, 5")
    A("s_add_u32 s57, s57, s56")
    A(f"s_mul_i32 s58, s{S_B}, {16*81920}")
    A(f"s_add_u32 s32, s{S_PTR+14}, s58")
    A(f"s_addc_u32 s33, s{S_PTR+15}, 0")
    A("s_and_b32 s33, s33, 0xffff")
    A(f"s_mov_b32 s34, {16*81920}")
    A("s_mov_b32 s35, 0x20000")
    A("s_lshl_b32 s59, s57, 10")
    A("v_lshlrev_b32 v2, 4, v0")
    A("v_add_u32 v2, s59, v2")
    for h in range(16):
        A(f"s_mov_b32 s{60+h}, {h*81920}")
    for h in range(16):
        A(f"buffer_load_dwordx4 v[{8+4*h}:{11+4*h}], v2, s[32:35], s{60+h} offen sc1")
    A("s_mul_hi_u32 s40, s57, 214748365")
    A("s_mul_i32 s41, s40, 20")
    A("s_sub_u32 s41, s57, s41")
    A("s_and_b32 s42, s40, 1")
    A("s_lshr_b32 s43, s40, 1")
    A("s_mul_i32 s43, s43, 320")
    A("s_lshl_b32 s41, s41, 4")
    A("s_add_u32 s43, s43, s41")
    A("s_lshl_b32 s42, s42, 5")
    A(f"s_lshl_b32 s44, s{S_B}, 6")
    A("s_add_u32 s42, s42, s44")
    A("s_mul_i32 s42, s42, 1280")
    A("s_lshl_b32 s43, s43, 1")
    A("s_add_u32 s42, s42, s43")
    A("v_and_b32 v3, 31, v0")
    A("v_mul_u32_u24 v3, 1280, v3")
    A("v_lshrrev_b32 v4, 5, v0")
    A("v_lshlrev_b32 v4, 4, v4")
    A("v_add_u32 v3, v3, v4")
    A(f"s_mov_b32 s44, s{S_PTR+10}")
    A(f"s_and_b32 s45, s{S_PTR+11}, 0xffff")
    A(f"s_mov_b32 s46, {16*64*640*2}")
    A("s_mov_b32 s47, 0x20000")
    for h in range(16):
        A(f"s_waitcnt vmcnt({15-h})")
        for i in range(4):
            src = 8 + 4 * h + i
            if h == 0:
                A(f"v_lshlrev_b32 v{72+2*i}, 16, v{src}")
                A(f"v_and_b32 v{73+2*i}, 0xffff0000, v{src}")
            else:
                A(f"v_lshlrev_b32 v5, 16, v{src}")
                A(f"v_and_b32 v6, 0xffff0000, v{src}")
                A(f"v_add_f32 v{72+2*i}, v{72+2*i}, v5")
                A(f"v_add_f32 v{73+2*i}, v{73+2*i}, v6")
    for i in range(4):
        A(f"v_cvt_pk_bf16_f32 v{80+i}, v{72+2*i}, v{73+2*i}")
    A("buffer_store_dwordx4 v[80:83], v3, s[44:47], s42 offen")
    A("s_endpgm")
    return L

def generate(cfg, fn):
    S = build_schedule(cfg)
    P = prologue(cfg); A = gen_A(cfg, S); B = gen_B(cfg, S)
    assert A.nbar == B.nbar, (A.nbar, B.nbar)
    L = []
    if cfg.inred:
        L.append(f"; @launch grid=(256,1,1) block=(512,1,1) lds=163840")
    else:
        L.append(f"; @launch kernel={KN} grid=(256,1,1) block=(512,1,1) lds=163840")
        L.append(f"; @launch kernel={KN2} grid=(320,1,1) block=(256,1,1) lds=0")
    L.append('.amdgcn_target "amdgcn-amd-amdhsa--gfx950"')
    L.append(".text")
    L.append(f".globl {KN}")
    L.append(".p2align 8")
    L.append(f".type {KN},@function")
    L.append(f"{KN}:")
    L += P.lines + A.lines + B.lines
    if cfg.inred:
        L += gen_red(cfg)
    L.append("L_exit:")
    L.append("    s_endpgm")
    if not cfg.inred:
        L += gen_reduce()
    L.append('.section .rodata,"a"')
    L.append(".p2align 6")
    L += kd(KN, 256)
    if not cfg.inred:
        L.append(".p2align 6")
        L += kd(KN2, 88)
    open(fn, "w").write("\n".join(L) + "\n")
    print("ticks", S['nticks'], "A instr", A.ninstr, A.stats, "B instr", B.ninstr, B.stats, file=sys.stderr)
    return S

if __name__ == "__main__":
    cfg = Cfg()
    cfg.prof_lds = 72 * 1024 if False else 79 * 1024
    cfg.prof_from = 12
    cfg.prof_t = {0: (14, 15), 1: (28, 29)}
    cfg.final_addr = [136 * 1024, 0, 20 * 1024, 40 * 1024]
    if "--prof" in sys.argv: cfg.prof = True
    for a in sys.argv[2:]:
        if "=" in a:
            k, v = a.split("=", 1)
            setattr(cfg, k, eval(v))
    S = generate(cfg, sys.argv[1] if len(sys.argv) > 1 else "k4.s")
    if "-v" in sys.argv:
        for t in S['allt']:
            print(t.name, hex(t.addr), "issue", t.issue, "by", t.by, "consume", t.consume)
```
